```python
import torch

def _softmax(x, axis=-1):
    return torch.softmax(x, dim=axis)
def _gelu(x):
    return torch.nn.functional.gelu(x, approximate="tanh")
def _silu(x):
    return torch.nn.functional.silu(x)
def _sigmoid(x):
    return torch.sigmoid(x)
def _layernorm(x, axis=-1, eps=1e-5):
    m = x.mean(dim=axis, keepdim=True)
    v = x.var(dim=axis, keepdim=True, unbiased=False)
    return (x - m) / torch.sqrt(v + eps)
def _scatter_add(tgt, idx, src, axis=0):
    return tgt.clone().index_add_(axis, idx, src)
def _segment_sum(src, seg, n):
    out = torch.zeros((n,) + src.shape[1:], dtype=src.dtype)
    return out.index_add_(0, seg, src)
def _pad(x, pw):
    flat = tuple(v for pair in reversed(pw) for v in pair)
    return torch.nn.functional.pad(x, flat)

kernel_name = 'recurrent_scan__ssm_conv_s4__moe_arch_mod__prompt'

def setup_inputs():

    _w = (lambda a: (lambda t: t.to(torch.bfloat16) if t.is_floating_point() else t)(torch.as_tensor(a)))
    def _A_setup():
        B, L, D, N = 1, 2048, 512, 128
        A_re = -(lambda _x: torch.exp(torch.as_tensor(_x)))((lambda *s: torch.randn(*s, dtype=torch.bfloat16) * 6.4)(D, N))
        A_im = torch.pi * (lambda *s: torch.randn(*s, dtype=torch.bfloat16) * 0.05)(D, N)
        B_re = (lambda *s: torch.randn(*s, dtype=torch.bfloat16) * 0.1)(D, N)
        B_im = (lambda *s: torch.randn(*s, dtype=torch.bfloat16) * 0.1)(D, N)
        C_re = (lambda *s: torch.randn(*s, dtype=torch.bfloat16) * 0.1)(D, N)
        C_im = (lambda *s: torch.randn(*s, dtype=torch.bfloat16) * 0.1)(D, N)
        log_dt = (lambda *s: torch.randn(*s, dtype=torch.bfloat16) * 0.05)(D) * 0.5 - 4.0
        Dskip = (lambda *s: torch.randn(*s, dtype=torch.bfloat16) * 0.05)(D)
        return {
            "u": _w((lambda *s: torch.randn(*s, dtype=torch.bfloat16) * 0.05)(B, L, D)),
            "A_re": _w(A_re),
            "A_im": _w(A_im),
            "B_re": _w(B_re),
            "B_im": _w(B_im),
            "C_re": _w(C_re),
            "C_im": _w(C_im),
            "log_dt": _w(log_dt),
            "Dskip": _w(Dskip),
        }
    _A_in = _A_setup()

    def _B_setup():
        B, S, D, F, C = 1, 2048, 512, 1376, 1
        return {
            "x": _w((lambda *s: torch.randn(*s, dtype=torch.bfloat16) * 0.05)(B, S, D)),
            "w_r": _w((lambda *s: torch.randn(*s, dtype=torch.bfloat16) * 6.4)(D)),
            "w_gate": _w((lambda *s: torch.randn(*s, dtype=torch.bfloat16) * 0.1)(D, F)),
            "w_up": _w((lambda *s: torch.randn(*s, dtype=torch.bfloat16) * 0.1)(D, F)),
            "w_down": _w((lambda *s: torch.randn(*s, dtype=torch.bfloat16) * 0.1)(F, D)),
        }
    _B_in = _B_setup()

    return {
        "A_u": _A_in["u"],
        "A_A_re": _A_in["A_re"],
        "A_A_im": _A_in["A_im"],
        "A_B_re": _A_in["B_re"],
        "A_B_im": _A_in["B_im"],
        "A_C_re": _A_in["C_re"],
        "A_C_im": _A_in["C_im"],
        "A_log_dt": _A_in["log_dt"],
        "A_Dskip": _A_in["Dskip"],
        "B_x": _B_in["x"],
        "B_w_r": _B_in["w_r"],
        "B_w_gate": _B_in["w_gate"],
        "B_w_up": _B_in["w_up"],
        "B_w_down": _B_in["w_down"],
    }

def reference(A_u, A_A_re, A_A_im, A_B_re, A_B_im, A_C_re, A_C_im, A_log_dt, A_Dskip, B_x, B_w_r, B_w_gate, B_w_up, B_w_down):
    def _A_ref(u, A_re, A_im, B_re, B_im, C_re, C_im, log_dt, Dskip):
        Bsz, L, D = u.shape
        dt = torch.exp(log_dt)[:, None]
        A = A_re + 1j * A_im
        Bc = B_re + 1j * B_im
        Cc = C_re + 1j * C_im
        logdA = dt * A
        dB = dt * Bc
        l = (lambda x, dt: x.to(dt))(torch.arange(L), A_re.dtype)
        P = torch.exp(logdA[:, :, None] * l[None, None, :])
        K = torch.einsum("dn,dnl,dn->dl", Cc, P, dB).real
        L2 = 2 * L
        Kp = _pad(K, ((0, 0), (0, L)))
        up = (lambda x, *d: x.permute(*d))(u, 0, 2, 1)
        up = _pad(up, ((0, 0), (0, 0), (0, L)))
        Kf = (lambda x, axes=(-2,-1): torch.fft.rfft2(x.float(), dim=axes))(Kp[:, None, :], axes=(-2, -1))
        Uf = (lambda x, axes=(-2,-1): torch.fft.rfft2(x.float(), dim=axes))(up[:, :, None, :], axes=(-2, -1))
        Yf = Uf * Kf[None, :, :, :]
        y = (lambda x, s, axes=(-2,-1): torch.fft.irfft2(x, s=s, dim=axes).to(torch.bfloat16))(Yf, (1, L2), axes=(-2, -1))[:, :, 0, :L]
        y = (lambda x, *d: x.permute(*d))(y, 0, 2, 1) + u * Dskip[None, None, :]
        return y

    def _B_ref(x, w_r, w_gate, w_up, w_down):
        B, S, D = x.shape
        C = 1
        r = x @ w_r
        idx = torch.argsort(-r, axis=-1)[:, :C]
        idx_e = (lambda x, n, axis: torch.repeat_interleave(x, n, dim=axis))(idx.reshape(B, C, 1), D, axis=2)
        x_sel = (lambda x, i, axis: torch.take_along_dim(x, i, dim=axis))(x, idx_e, axis=1)
        g = _silu(x_sel @ w_gate)
        u = x_sel @ w_up
        y = (g * u) @ w_down
        r_sel = _sigmoid((lambda x, i, axis: torch.take_along_dim(x, i, dim=axis))(r, idx, axis=1))
        y = y * r_sel.reshape(B, C, 1)
        b_off = (torch.arange(B) * S).reshape(B, 1)
        flat_idx = (idx + b_off).reshape(B * C)
        zero = (x * 0.0).reshape(B * S, D)
        upd = _scatter_add(zero, flat_idx, y.reshape(B * C, D), axis=0)
        return x + upd.reshape(B, S, D)

    x = A_u
    xn = _layernorm(x, axis=-1)
    s = _A_ref(xn, A_A_re, A_A_im, A_B_re, A_B_im, A_C_re, A_C_im, A_log_dt, A_Dskip)
    g = _silu(_B_ref(xn, B_w_r, B_w_gate, B_w_up, B_w_down))
    return x + s * g
```

```python
import re

TRANS = ("v_exp_f32", "v_log_f32", "v_rcp_f32", "v_rsq_f32", "v_sqrt_f32", "v_sin_f32", "v_cos_f32")


def regs_of(tok):
    tok = tok.strip()
    tok = tok.replace("abs(", "").replace(")", "").lstrip("-").replace("|", "")
    m = re.fullmatch(r"([vsa])(\d+)", tok)
    if m:
        return {(m.group(1), int(m.group(2)))}
    m = re.fullmatch(r"([vsa])\[(\d+):(\d+)\]", tok)
    if m:
        return {(m.group(1), i) for i in range(int(m.group(2)), int(m.group(3)) + 1)}
    if tok == "vcc":
        return {("s", "vcc")}
    if tok in ("vcc_lo", "vcc_hi"):
        return {("s", "vcc")}
    if tok == "exec":
        return {("s", "exec")}
    if tok == "m0":
        return {("s", "m0")}
    return set()


class Ins:
    def __init__(self, text):
        self.text = text
        t = text.split(";")[0].strip()
        self.is_label = t.endswith(":")
        self.is_dir = t.startswith(".")
        self.w = set()
        self.r = set()
        self.dppsrc = set()
        self.srcc = set()
        self.mn = ""
        self.states = 0
        if self.is_label or self.is_dir or not t:
            return
        parts = t.split(None, 1)
        self.mn = mn = parts[0]
        rest = parts[1] if len(parts) > 1 else ""
        ops = []
        depth = 0
        cur = ""
        for ch in rest:
            if ch == "[":
                depth += 1
            if ch == "]":
                depth -= 1
            if ch == "," and depth == 0:
                ops.append(cur.strip())
                cur = ""
            else:
                cur += ch
        if cur.strip():
            ops.append(cur.strip())
        if ops:
            last = ops[-1].split()
            ops[-1] = last[0]
            self.mods = " ".join(last[1:])
        else:
            self.mods = ""
        self.ops = ops
        self.states = 1
        if mn == "s_nop":
            self.states = int(ops[0]) + 1
        self.valu = mn.startswith("v_") and not mn.startswith("v_mfma")
        self.mfma = mn.startswith("v_mfma")
        self.trans = any(mn.startswith(x) for x in TRANS)
        self.dot = mn.startswith("v_dot")
        self.dpp = "_dpp" in mn
        self.perml = mn.startswith("v_permlane")
        self.vmem = mn.startswith(("global_", "buffer_"))
        self.ds = mn.startswith("ds_")
        self.salu = mn.startswith("s_")
        R = [regs_of(o) for o in ops]
        U = lambda l: set().union(*l) if l else set()
        if self.mfma:
            self.w = R[0]
            self.r = U(R[1:])
            self.srcc = R[3]
            self.srcab = R[1] | R[2]
        elif self.valu:
            if mn.startswith("v_cmpx"):
                self.w = R[0] | {("s", "exec")}
                self.r = U(R[1:])
            elif self.perml:
                self.w = R[0] | R[1]
                self.r = R[0] | R[1]
            elif mn.startswith(("v_add_co", "v_sub_co", "v_addc_co")):
                self.w = R[0] | R[1]
                self.r = U(R[2:])
            else:
                self.w = R[0]
                self.r = U(R[1:])
                if mn.startswith(("v_fmac", "v_dot2c", "v_writelane")) or self.dpp:
                    self.r |= R[0]
                if self.dpp:
                    self.dppsrc = R[1]
        elif self.ds:
            if mn.startswith(("ds_read", "ds_bpermute", "ds_permute", "ds_swizzle")) or "_rtn" in mn:
                self.w = R[0]
                self.r = U(R[1:])
            else:
                self.r = U(R)
            if "addtid" in mn:
                self.r |= {("s", "m0")}
        elif self.vmem:
            if "load" in mn:
                self.w = R[0]
                self.r = U(R[1:])
            else:
                self.r = U(R)
                self.wide = mn.endswith(("x3", "x4"))
                self.sdata = R[1] if mn.startswith("global_") else R[0]
        elif self.salu:
            if mn.startswith(("s_cmp", "s_cbranch", "s_branch", "s_waitcnt", "s_barrier", "s_nop", "s_sleep", "s_setprio", "s_endpgm")):
                self.r = U(R)
            else:
                self.w = R[0] if R else set()
                self.r = U(R[1:])
                if "saveexec" in mn:
                    self.w |= {("s", "exec")}

    def real(self):
        return self.states > 0


def need(prev, cur):
    n = 0
    vw = {x for x in prev.w if x[0] in "va"}
    sw = {x for x in prev.w if x[0] == "s"}
    if prev.valu:
        if cur.valu:
            if cur.dpp and (vw & cur.dppsrc):
                n = max(n, 2)
            if cur.dpp and ("s", "exec") in sw:
                n = max(n, 5)
            if cur.perml and (vw & cur.r):
                n = max(n, 2)
            if cur.mn.startswith(("v_readlane", "v_readfirstlane")) and (vw & cur.r):
                n = max(n, 1)
            if cur.mn.startswith(("v_readlane", "v_writelane")) and (sw & cur.r):
                n = max(n, 4)
            if sw & cur.r:
                n = max(n, 2)
            if cur.mn.startswith("v_cndmask") and ("s", "vcc") in sw:
                n = max(n, 2)
            if prev.trans and not cur.trans and (vw & cur.r):
                n = max(n, 1)
            if prev.dot and (vw & (cur.r | cur.w)):
                same_c = cur.mn == prev.mn and len(cur.ops) >= 4 and (vw & regs_of(cur.ops[3])) and not (vw & (regs_of(cur.ops[1]) | regs_of(cur.ops[2])))
                if not same_c:
                    n = max(n, 3)
            if "op_sel" in prev.mods and not prev.mn.startswith("v_pk") and (vw & cur.r):
                n = max(n, 1)
        if cur.mfma:
            if vw & cur.r:
                n = max(n, 2)
            if ("s", "exec") in sw:
                n = max(n, 4)
        if cur.vmem and (sw & cur.r):
            n = max(n, 5)
        if (cur.vmem or cur.ds) and (prev.trans or prev.dot) and (vw & cur.r):
            n = max(n, 3 if prev.dot else 1)
        if cur.salu and (sw & cur.r):
            n = max(n, 1)
    if prev.mfma:
        p4 = "16x16" in prev.mn
        if cur.mfma:
            if prev.w & cur.srcab:
                n = max(n, 8 if p4 else 12)
            if (prev.w & cur.srcc) and prev.w != cur.srcc:
                n = max(n, 6 if p4 else 10)
        else:
            if prev.w & (cur.r | cur.w):
                n = max(n, 8 if p4 else 12)
            if cur.valu and (prev.srcc & cur.w):
                n = max(n, 3 if p4 else 7)
    if prev.vmem and getattr(prev, "wide", False) and (prev.sdata & cur.w):
        n = max(n, 2)
    if prev.salu and ("s", "m0") in prev.w and ("s", "m0") in cur.r and not cur.salu:
        n = max(n, 1)
    return n


class Prog:
    def __init__(self):
        self.lines = []

    def __call__(self, text):
        for l in text.strip("\n").split("\n"):
            l = l.strip()
            if l:
                self.lines.append(l)

    def label(self, name):
        self.lines.append(name + ":")

    def emit(self, pad=True):
        out = []
        hist = []
        npad = 0
        for l in self.lines:
            ins = Ins(l)
            if not ins.real():
                out.append(l if ins.is_label or ins.is_dir else "    " + l)
                continue
            if pad:
                dist = 0
                req = 0
                for p in reversed(hist):
                    k = need(p, ins) - dist
                    req = max(req, k)
                    dist += p.states
                    if dist > 20:
                        break
                if req > 0:
                    nop = Ins("s_nop %d" % (req - 1))
                    out.append("    s_nop %d" % (req - 1))
                    hist.append(nop)
                    npad += 1
            out.append("    " + l)
            hist.append(ins)
            if ins.mn in ("s_branch", "s_endpgm"):
                hist = []
            hist = hist[-24:]
        self.npad = npad
        return "\n".join(out) + "\n"


def vr(a, n=1):
    return "v%d" % a if n == 1 else "v[%d:%d]" % (a, a + n - 1)


def sr(a, n=1):
    return "s%d" % a if n == 1 else "s[%d:%d]" % (a, a + n - 1)


def interleave(*chains):
    out = []
    chains = [list(c) for c in chains]
    while any(chains):
        for c in chains:
            if c:
                out.append(c.pop(0))
    return out


def schedule(lines, lat_pk=2, lat_valu=1, lat_trans=3, lat_ds=16, keep_ds_order=True):
    ins = [Ins(l) for l in lines]
    n = len(ins)
    succ = [[] for _ in range(n)]
    npred = [0] * n
    lastw = {}
    readers = {}
    lastmem = None

    def lat(p, c):
        k = need(p, c) + 1
        if p.mfma:
            return max(k, 4)
        if p.trans:
            return max(k, lat_trans)
        if p.mn.startswith("v_pk") or p.dot:
            return max(k, lat_pk)
        if p.ds:
            return max(k, lat_ds)
        return max(k, lat_valu)

    def edge(a, b, l):
        succ[a].append((b, l))
        npred[b] += 1

    for i, x in enumerate(ins):
        rs = set(x.r)
        ws = set(x.w)
        if x.salu and not x.mn.startswith("s_mov"):
            ws.add(("s", "scc"))
        for r in rs:
            if r in lastw:
                edge(lastw[r], i, lat(ins[lastw[r]], x))
        for w in ws:
            if w in lastw:
                edge(lastw[w], i, max(1, need(ins[lastw[w]], x) + 1))
            for q in readers.get(w, []):
                if q != i:
                    edge(q, i, max(1, need(ins[q], x) + 1))
        if (x.ds or x.vmem) and keep_ds_order:
            if lastmem is not None:
                edge(lastmem, i, 1)
            lastmem = i
        for r in rs:
            readers.setdefault(r, []).append(i)
        for w in ws:
            lastw[w] = i
            readers[w] = []
    prio = [0] * n
    for i in range(n - 1, -1, -1):
        prio[i] = max([l + prio[b] for b, l in succ[i]] + [1])
    ready_at = [0] * n
    avail = [i for i in range(n) if npred[i] == 0]
    out = []
    t = 0
    while avail:
        ok = [i for i in avail if ready_at[i] <= t]
        if ok:
            i = max(ok, key=lambda q: (prio[q], -q))
        else:
            i = min(avail, key=lambda q: (ready_at[q], -prio[q]))
            t = ready_at[i]
        avail.remove(i)
        out.append(lines[i])
        cost = 2 if ins[i].trans or ins[i].mfma else 1
        for b, l in succ[i]:
            ready_at[b] = max(ready_at[b], t + l)
            npred[b] -= 1
            if npred[b] == 0:
                avail.append(b)
        t += cost
    assert len(out) == n
    return out
```

```python
import sys, math, struct, argparse
from asmlib import Prog, vr, sr, schedule, interleave

NAME = "recurrent_scan__ssm_conv_s4__moe_arch_mod__prompt_kernel"

WS_ST = 0x1000
WS_CHK = 0x8000
WS_FP = 0x28000
WS_DBG = 0x80000
WS_XD = 0x100000
WS_DUMP = 0x400000

REG = 16384
TROW = 288
KC1 = 4480
FOFF = 8960
ZIDX = 768
U0 = 65536
USTR = 5136
RBUF = U0 + 4 * USTR
FLG = RBUF + 1024
LDS_BYTES = FLG + 64

LOG2E = 1.4426950408889634
INV2PI = 0.15915494309189535


def f2u(x):
    return struct.unpack("<I", struct.pack("<f", x))[0]


def hx(x):
    return "0x%08x" % (x & 0xFFFFFFFF)


HK = [0x9E37F1B5, 0x7B45C2D3, 0x5A8D3EE9, 0xC3A5B671]
HM = [0x2C1B3C6E, 0x4A7D5E92, 0x61F28B34, 0x1D8E7A56]
POLL_MAX = 4000

S_X, S_ARE, S_AIM, S_BRE, S_BIM, S_CRE, S_CIM, S_LDT = 4, 6, 8, 10, 12, 14, 16, 18
S_DSK, S_WR, S_WG, S_WU, S_WD, S_OUT, S_WS = 20, 24, 26, 28, 30, 32, 36
S_EP, S_NONCE, S_WAVE, S_XCD, S_J, S_CQ, S_RHO = 38, 39, 40, 41, 42, 43, 44
S_HI = 56
S_STAMP = 72


class Gen:
    def __init__(self, stamps=False, dump=None):
        self.p = Prog()
        self.stamps = stamps
        self.dump = dump or set()
        self.nst = 0

    def stamp(self, i):
        if self.stamps:
            self.p("s_memrealtime %s\ns_waitcnt lgkmcnt(0)" % sr(S_STAMP + 2 * i, 2))

    def stamp_flush(self):
        if not self.stamps:
            return
        p = self.p
        p("s_mov_b64 exec, -1")
        p("s_mul_i32 s47, s2, 9\ns_add_u32 s47, s47, s%d\ns_lshl_b32 s47, s47, 6\ns_add_u32 s47, s47, %d" % (S_WAVE, WS_DBG))
        p("v_mov_b32 v2, 0")
        for i in range(10):
            p("v_writelane_b32 v2, s%d, %d" % (S_STAMP + 2 * i, i))
        p("v_mbcnt_lo_u32_b32 v1, -1, 0\nv_mbcnt_hi_u32_b32 v1, -1, v1\nv_lshl_add_u32 v1, v1, 2, s47")
        p("s_mov_b64 exec, 0xffff")
        p("global_store_dword v1, v2, %s" % sr(S_WS, 2))
        p("s_mov_b64 exec, -1")

    def dump_lds(self, tag, lds_off_expr_sgpr, nbytes, slot):
        if tag not in self.dump:
            return
        p = self.p
        p("s_waitcnt lgkmcnt(0)")
        p("s_lshl_b32 s48, s2, 3\ns_add_u32 s48, s48, %s\ns_lshl_b32 s48, s48, 14\ns_add_u32 s48, s48, %d" % (slot, WS_DUMP))
        p("v_lshl_add_u32 v1, v0, 4, %s" % lds_off_expr_sgpr)
        p("v_lshl_add_u32 v2, v0, 4, s48")
        for o in range(0, nbytes, 1024):
            p("ds_read_b128 v[160:163], v1 offset:%d\ns_waitcnt lgkmcnt(0)" % o)
            p("global_store_dwordx4 v2, v[160:163], %s\nv_add_u32 v2, 1024, v2\ns_nop 1" % sr(S_WS, 2))
        p("s_waitcnt vmcnt(0)")

    def nonce(self):
        self.p("s_mul_i32 s%d, s%d, 0x9E3779B1\ns_add_u32 s%d, s%d, 1" % (S_NONCE, S_EP, S_NONCE, S_NONCE))

    def hash_consts(self, hc, tmp):
        p = self.p
        p("v_and_b32 %s, 3, v0" % vr(tmp))
        for k in range(4):
            p("s_mov_b32 s47, %s" % hx(HM[k]))
            p("v_mul_lo_u32 %s, %s, s47" % (vr(hc + k), vr(tmp)))
            p("v_add_u32 %s, %s, %s" % (vr(hc + k), hx(HK[k]), vr(hc + k)))
            p("v_or_b32 %s, 0x00010001, %s" % (vr(hc + k), vr(hc + k)))

    def hinit(self, h):
        p = self.p
        p("v_mov_b32 %s, 0\ns_mov_b64 exec, s[60:61]\nv_mov_b32 %s, s%d\ns_mov_b64 exec, -1" % (vr(h), vr(h), S_NONCE))

    def entry(self):
        p = self.p
        p("s_cmp_ge_u32 s2, 256\ns_cbranch_scc1 L_end")
        p("s_load_dwordx16 s[4:19], s[0:1], 0\ns_load_dwordx16 s[20:35], s[0:1], 64\ns_load_dwordx2 s[36:37], s[0:1], 128")
        if self.stamps:
            for i in range(10):
                p("s_mov_b32 s%d, 0" % (S_STAMP + 2 * i))
            p("s_memrealtime %s" % sr(S_STAMP, 2))
        p("v_lshrrev_b32 v1, 6, v0\nv_and_b32 v0, 63, v0\nv_readfirstlane_b32 s%d, v1" % S_WAVE)
        p("s_and_b32 s%d, s2, 7\ns_lshr_b32 s%d, s2, 3\ns_lshr_b32 s%d, s%d, 1\ns_lshl_b32 s45, s%d, 4\ns_add_u32 s%d, s%d, s45\ns_and_b32 s%d, s%d, 1"
          % (S_XCD, S_J, S_CQ, S_J, S_XCD, S_CQ, S_CQ, S_RHO, S_J))
        p("s_and_b32 s46, s%d, 3\ns_lshl_b32 s47, s2, 13" % S_WAVE)
        p("s_cmp_lt_u32 s%d, 4\ns_cbranch_scc1 C_init" % S_WAVE)
        p("s_cmp_ge_u32 s%d, 8\ns_cbranch_scc1 F_init" % S_WAVE)
        p("s_lshl_b32 s48, s46, 11\ns_add_u32 s47, s47, s48")
        p("v_lshl_add_u32 v1, v0, 4, s47\nv_lshlrev_b32 v2, 4, v0")
        p("s_waitcnt lgkmcnt(0)")
        p("global_load_dwordx4 v[4:7], v1, %s\nglobal_load_dwordx4 v[8:11], v1, %s offset:1024\nglobal_load_dwordx4 v[12:15], v2, %s"
          % (sr(S_X, 2), sr(S_X, 2), sr(S_WR, 2)))
        p("s_load_dword s%d, %s, 0\ns_branch A_main" % (S_EP, sr(S_WS, 2)))
        p.label("C_init")
        p("s_lshl_b32 s48, s46, 8\ns_add_u32 s47, s47, s48")
        p("v_lshrrev_b32 v1, 1, v0\nv_lshl_add_u32 v1, v1, 2, s47\nv_add_u32 v2, 0x1000, v1")
        p("s_lshl_b32 s48, s%d, 2\ns_add_u32 s48, s48, s46\ns_lshl_b32 s48, s48, 8\nv_lshl_add_u32 v3, v0, 2, s48" % S_CQ)
        p("s_lshl_b32 s49, s%d, 3" % S_CQ)
        p("s_waitcnt lgkmcnt(0)")
        for S in range(2):
            for row in range(8):
                p("global_load_dword %s, %s, %s offset:%d" % (vr(96 + 8 * S + row), "v1" if row < 4 else "v2", sr(S_X, 2), (row & 3) * 1024 + 128 * S))
        for i, s in enumerate((S_ARE, S_AIM, S_BRE, S_BIM, S_CRE, S_CIM)):
            p("global_load_dword %s, v3, %s" % (vr(4 + i), sr(s, 2)))
        p("s_load_dword s%d, %s, 0\ns_load_dwordx2 s[50:51], %s, s49\ns_branch C_main" % (S_EP, sr(S_WS, 2), sr(S_LDT, 2)))
        p.label("F_init")
        p("s_getpc_b64 s[48:49]\nv_lshlrev_b32 v1, 7, v0\nv_add_u32 v2, 8192, v1\nv_min_u32 v3, CODE_TAIL-16384, v1\nv_add_u32 v3, 16384, v3")
        p("global_load_dword v4, v1, s[48:49]\nglobal_load_dword v5, v2, s[48:49]\nglobal_load_dword v11, v3, s[48:49]")
        p("v_lshl_add_u32 v1, v0, 2, s47")
        p("s_waitcnt lgkmcnt(0)")
        p("global_load_dword v6, v1, %s" % sr(S_X, 2))
        p("s_load_dword s%d, %s, 0\ns_branch F_main" % (S_EP, sr(S_WS, 2)))

    def cmul(self, d, x, y):
        return ["v_pk_mul_f32 %s, %s, %s op_sel:[0,0] op_sel_hi:[1,0]" % (vr(d, 2), vr(x, 2), vr(y, 2)),
                "v_pk_fma_f32 %s, %s, %s, %s op_sel:[1,1,0] op_sel_hi:[0,1,1] neg_lo:[1,0,0]" % (vr(d, 2), vr(x, 2), vr(y, 2), vr(d, 2))]

    def kgen_pass(self, h):
        PRM = 4
        Z1, Z8, Z128, ZR = 48, 50, 52, 54
        LR, WR_, PR, CR, T = 66, 70, 78, 86, 92
        L = []
        un = (lambda d, s: "v_lshlrev_b32 %s, 16, %s" % (vr(d), vr(s))) if h == 0 else (lambda d, s: "v_and_b32 %s, s%d, %s" % (vr(d), S_HI, vr(s)))
        L += [un(T, PRM), un(T + 1, PRM + 1)]
        L += ["v_mul_f32 %s, s62, %s" % (vr(T), vr(T)), "v_mul_f32 %s, s62, %s" % (vr(T + 1), vr(T + 1))]
        tmp = [PR, PR + 2, PR + 4]
        for (z, k), t in zip(((Z1, 1), (Z8, 8), (Z128, 128)), tmp):
            L += ["v_mul_f32 %s, %s, %s" % (vr(t), hx(f2u(LOG2E * k)), vr(T)),
                  "v_mul_f32 %s, %s, %s" % (vr(t + 1), hx(f2u(INV2PI * k)), vr(T + 1)),
                  "v_exp_f32 %s, %s" % (vr(t), vr(t)),
                  "v_fract_f32 %s, %s" % (vr(t + 1), vr(t + 1)),
                  "v_cos_f32 %s, %s" % (vr(z), vr(t + 1)),
                  "v_sin_f32 %s, %s" % (vr(z + 1), vr(t + 1)),
                  "v_pk_mul_f32 %s, %s, %s op_sel:[0,0] op_sel_hi:[1,0]" % (vr(z, 2), vr(z, 2), vr(t, 2))]
        L += [un(LR + 2, PRM + 2), un(LR + 3, PRM + 3), un(T + 2, PRM + 4), un(T + 3, PRM + 5)]
        L += ["v_mul_f32 %s, s62, %s" % (vr(LR + 2), vr(LR + 2)), "v_mul_f32 %s, s62, %s" % (vr(LR + 3), vr(LR + 3))]
        L += self.cmul(LR, LR + 2, T + 2)
        cnt = [0, 0]

        def put(row, z, conj=False):
            c = CR + 3 * int(conj) + cnt[int(conj)] % 3
            cnt[int(conj)] += 1
            return ["v_cvt_pk_bf16_f32 %s, %s, %s%s" % (vr(c), vr(z), "-" if conj else "", vr(z + 1)),
                    "ds_write_addtid_b32 %s offset:%d" % (vr(c), row * TROW)]
        zr = {1: Z1}
        for r in range(2, 8):
            zr[r] = ZR + 2 * (r - 2)
        sL, sW, sP = [], [], []
        for j in range(16):
            cur, nxt = LR + 2 * (j & 1), LR + 2 * ((j + 1) & 1)
            if j < 15:
                sL += self.cmul(nxt, cur, Z8)
            sL += put(41 + j, cur, True)
        sP += ["ds_write_addtid_b32 v35 offset:0"]
        sP += put(1, Z1)
        for r, (a, b) in ((2, (1, 1)), (3, (2, 1)), (4, (2, 2)), (5, (4, 1)), (6, (4, 2)), (7, (4, 3))):
            sP += self.cmul(zr[r], zr[a], zr[b]) + put(r, zr[r])
        pc = [0]
        wreg = {1: Z128}
        rows_for = {1: [(8 + r, r) for r in range(8)], 2: [(16 + q, 2 * q) for q in range(4)], 3: [(20 + q, 2 * q) for q in range(4)]}
        for m in range(4, 8):
            rows_for[m] = [(24 + 2 * (m - 4), 0), (25 + 2 * (m - 4), 4)]
        for m in range(8, 17):
            rows_for[m] = [(32 + m - 8, 0)]
        for m in range(1, 17):
            if m > 1:
                wreg[m] = WR_ + 2 * (m & 3)
                sW += self.cmul(wreg[m], wreg[m - 1], Z128)
            for row, r in rows_for[m]:
                if r == 0:
                    sW += put(row, wreg[m])
                else:
                    t = PR + 2 * (pc[0] & 3)
                    pc[0] += 1
                    sW += self.cmul(t, wreg[m], zr[r]) + put(row, t)
        body = L + merge_prop(sP + sW, sL)
        return schedule(body, keep_ds_order=False)

    def role_C(self):
        p = self.p
        XP, G0, G1, H0, H1, HC, HI, VSEL, VDA, VCA = 96, 112, 116, 120, 121, 122, 126, 127, 128, 129
        E, VA, VB, VTAB, VF, VYW, D = 10, 21, 22, 30, 31, 34, 36
        p.label("C_main")
        p("s_lshl_b32 s45, s46, 14\ns_mov_b32 m0, s45\ns_mov_b32 s%d, 0xffff0000" % S_HI)
        p("s_mov_b32 s60, 0x11111111\ns_mov_b32 s61, 0x11111111")
        p("v_and_b32 v1, 1, v0\nv_mul_u32_u24 v1, 0x020202, v1\nv_lshl_or_b32 v1, v1, 8, v1\nv_add_u32 %s, 0x05040100, v1" % vr(VSEL))
        self.hash_consts(HC, 1)
        p("s_lshl_b32 s47, s2, 13\ns_lshl_b32 s48, s46, 11\ns_add_u32 s47, s47, s48\ns_add_u32 s47, s47, %d\nv_lshl_add_u32 %s, v0, 4, s47" % (WS_XD, vr(VDA)))
        p("s_lshl_b32 s47, s2, 9\ns_lshl_b32 s48, s46, 7\ns_add_u32 s47, s47, s48\ns_add_u32 s47, s47, %d" % WS_CHK)
        p("v_and_b32 v1, 1, v0\nv_lshlrev_b32 v1, 6, v1\nv_and_b32 v2, 60, v0\nv_add3_u32 %s, v1, v2, s47" % vr(VCA))
        p("s_add_u32 s47, s%d, 2048\ns_add_u32 s48, s45, %d" % (S_RHO, FOFF))
        p("v_lshlrev_b32 v1, 1, v0\nv_sub_u32 v1, s47, v1")
        for n, (k, e) in enumerate(((7, 0), (7, 1), (11, 0), (11, 1), (13, 0), (13, 1))):
            p("v_add_u32 v2, %d, v1\nv_cvt_f32_u32 v2, v2\nv_cvt_pk_bf16_f32 v2, v2, v2\nv_and_b32 v2, 0xffff, v2\nv_add_u32 v2, %d, v2\nv_lshl_add_u32 %s, v2, 2, s48"
              % (-128 * k - e, -0x4280, vr(E + n)))
        p("v_add_u32 v2, %d, v1\nv_lshl_add_u32 %s, v2, 2, s48\nv_add_u32 %s, -4, %s" % (-128 * 15, vr(E + 6), vr(E + 7), vr(E + 6)))
        p("s_add_u32 s49, s48, 1024\nv_add_u32 v2, 512, %s\nv_min_u32 %s, s49, v2" % (vr(E + 6), vr(E + 8)))
        for e in range(2):
            p("v_add_u32 v2, %d, v1\nv_min_u32 v2, %d, v2\nv_lshl_add_u32 %s, v2, 2, s48" % (-2048 - e, ZIDX, vr(E + 9 + e)))
        p("v_and_b32 v1, 15, v0\nv_lshrrev_b32 v2, 4, v0")
        p("v_and_b32 v3, 1, v0\nv_mul_u32_u24 v3, %d, v3\nv_lshl_add_u32 v3, v2, 4, v3\nv_lshlrev_b32 %s, 2, v1\nv_sub_u32 v3, v3, %s\ns_add_u32 s47, s45, 64\nv_add_u32 %s, s47, v3"
          % (KC1 + 4, vr(VA), vr(VA), vr(VA)))
        p("v_mul_u32_u24 v3, %d, v1\nv_lshl_add_u32 v3, v2, 4, v3\nv_add_u32 %s, s45, v3" % (TROW, vr(VTAB)))
        p("s_mul_i32 s47, s46, %d\ns_add_u32 s47, s47, %d\nv_lshl_add_u32 v3, v1, 2, v2" % (USTR, U0))
        for kk in range(8):
            p("v_add_u32 %s, %d, v3\nv_lshrrev_b32 v35, 3, %s\nv_and_b32 v35, 2, v35\nv_xor_b32 %s, v35, %s\nv_lshl_add_u32 %s, %s, 4, s47"
              % (vr(VB + kk), 32 - 4 * kk, vr(VB + kk), vr(VB + kk), vr(VB + kk), vr(VB + kk), vr(VB + kk)))
        p("v_and_b32 v3, 1, v2\nv_lshlrev_b32 v3, 2, v3\nv_lshrrev_b32 v35, 1, v2\nv_lshl_add_u32 v3, v35, 7, v3\nv_lshl_add_u32 v3, v1, 3, v3\nv_lshl_add_u32 %s, v3, 2, s48" % vr(VF))
        p("v_sub_u32 v3, 2, v35\nv_lshlrev_b32 v3, v3, v1\nv_lshl_add_u32 v3, v2, 6, v3\nv_add_u32 v3, 256, v3\nv_lshl_add_u32 %s, v3, 2, s48" % vr(VF + 1))
        p("v_mul_u32_u24 v3, 120, v35\nv_add3_u32 %s, %s, v3, 8" % (vr(VF + 2), vr(VF + 1)))
        p("s_lshl_b32 s47, s46, 6\ns_add_u32 s47, s47, s45\nv_lshl_add_u32 %s, v0, 4, s47" % vr(VYW))
        p("v_lshl_add_u32 v3, v2, 6, v1\nv_add_u32 v3, 512, v3\nv_lshl_add_u32 v3, v3, 2, s48")
        p("v_mov_b32 v35, 0x3f80")
        p("s_waitcnt lgkmcnt(0)")
        p("s_lshl_b32 s47, s46, 4\ns_lshr_b64 s[50:51], s[50:51], s47\ns_lshl_b32 s50, s50, 16")
        p("v_mov_b32 v1, s50\nv_mul_f32 v1, %s, v1\nv_exp_f32 v1, v1\nv_cvt_pk_bf16_f32 v1, v1, v1\nv_and_b32 v1, s%d, v1\nv_readfirstlane_b32 s62, v1" % (hx(f2u(LOG2E)), S_HI))
        self.nonce()
        self.hinit(HI)
        p("s_barrier")
        p("s_waitcnt vmcnt(6)")
        self.stamp(1)
        L = []
        for S, G, H in ((0, G0, H0), (1, G1, H1)):
            for q in range(4):
                L.append("v_perm_b32 %s, %s, %s, %s" % (vr(G + q), vr(XP + 8 * S + 2 * q + 1), vr(XP + 8 * S + 2 * q), vr(VSEL)))
            L.append("global_store_dwordx4 %s, %s, %s offset:%d sc1" % (vr(VDA), vr(G, 4), sr(S_WS, 2), 1024 * S))
        for q in range(4):
            for G, H in ((G0, H0), (G1, H1)):
                L.append("v_dot2_u32_u16 %s, %s, %s, %s" % (vr(H), vr(G + q), vr(HC + q), vr(HI if q == 0 else H)))
        for qp in ("[1,0,3,2]", "[2,3,0,1]"):
            for H in (H0, H1):
                L.append("v_add_u32_dpp %s, %s, %s quad_perm:%s row_mask:0xf bank_mask:0xf" % (vr(H), vr(H), vr(H), qp))
        p("\n".join(L))
        p("s_mov_b32 vcc_lo, 0x22222222\ns_mov_b32 vcc_hi, 0x22222222\nv_cndmask_b32 %s, %s, %s, vcc" % (vr(H0), vr(H0), vr(H1)))
        p("s_mov_b32 exec_lo, 0x33333333\ns_mov_b32 exec_hi, 0x33333333")
        p("global_store_dword %s, %s, %s sc1" % (vr(VCA), vr(H0), sr(S_WS, 2)))
        p("s_mov_b64 exec, -1")
        p("s_waitcnt vmcnt(3)")
        self.stamp(2)
        FR = 96
        for h in range(2):
            p("\n".join(self.kgen_pass(h)))
            for ks in range(4):
                p("ds_read_b128 %s, %s offset:%d" % (vr(FR + 16 * ks, 4), vr(VTAB), 41 * TROW + 64 * ks))
                for t in range(3):
                    p("ds_read_b128 %s, %s offset:%d" % (vr(FR + 16 * ks + 4 + 4 * t, 4), vr(VTAB), 16 * t * TROW + 64 * ks))
                if ks == 2:
                    p("s_waitcnt lgkmcnt(8)")
                    self.kg_mfma(h, 0, FR, D)
            for ks in range(1, 4):
                p("s_waitcnt lgkmcnt(%d)" % (12 - 4 * ks))
                self.kg_mfma(h, ks, FR, D)
        self.stamp(3)
        p("v_mov_b32 v1, 0\nv_mov_b32 v2, s48")
        p("ds_write_b128 %s, %s" % (vr(VF), vr(D, 4)))
        p("ds_write_b64 %s, %s\nds_write_b64 %s, %s" % (vr(VF + 1), vr(D + 4, 2), vr(VF + 2), vr(D + 6, 2)))
        for r in range(4):
            p("ds_write_b32 v3, %s offset:%d" % (vr(D + 8 + r), 64 * r))
        p("ds_write_b32 v2, v1 offset:%d" % (4 * ZIDX))
        src = {}
        for k in range(8):
            src[k] = (E, 64 * (7 - k), E + 1, 64 * (7 - k))
        for k in range(8, 12):
            src[k] = (E + 2, 128 * (11 - k), E + 3, 128 * (11 - k))
        for k in range(12, 14):
            src[k] = (E + 4, 256 * (13 - k), E + 5, 256 * (13 - k))
        src[14] = (E + 8, 0, E + 7, 512)
        src[15] = (E + 6, 0, E + 7, 0)
        src[16] = (E + 9, 0, E + 10, 0)
        groups = [list(range(0, 6)), list(range(6, 12)), list(range(12, 17))]

        def rd(g):
            for k in g:
                a0, o0, a1, o1 = src[k]
                p("ds_read_b32 %s, %s offset:%d\nds_read_b32 %s, %s offset:%d" % (vr(96 + 2 * k), vr(a0), o0, vr(97 + 2 * k), vr(a1), o1))

        def wr(g):
            for k in g:
                p("v_cvt_pk_bf16_f32 %s, %s, %s" % (vr(132 + k), vr(96 + 2 * k), vr(97 + 2 * k)))
            for k in g:
                p("ds_write_addtid_b32 %s offset:%d\nds_write_addtid_b32 %s offset:%d" % (vr(132 + k), 256 * k, vr(132 + k), KC1 + 4 + 256 * k))
        rd(groups[0])
        p("s_waitcnt lgkmcnt(0)")
        rd(groups[1])
        for k in groups[0]:
            p("v_cvt_pk_bf16_f32 %s, %s, %s" % (vr(132 + k), vr(96 + 2 * k), vr(97 + 2 * k)))
        p("s_waitcnt lgkmcnt(0)")
        rd(groups[2])
        for k in groups[1]:
            p("v_cvt_pk_bf16_f32 %s, %s, %s" % (vr(132 + k), vr(96 + 2 * k), vr(97 + 2 * k)))
        p("s_waitcnt lgkmcnt(0)")
        for k in groups[2]:
            p("v_cvt_pk_bf16_f32 %s, %s, %s" % (vr(132 + k), vr(96 + 2 * k), vr(97 + 2 * k)))
        for k in range(17):
            p("ds_write_addtid_b32 %s offset:%d\nds_write_addtid_b32 %s offset:%d" % (vr(132 + k), 256 * k, vr(132 + k), KC1 + 4 + 256 * k))
        self.dump_lds("K", "s45", 12288, "s46")
        ACC, FA, FB = 48, 96, 128

        def rdA(k0, j):
            b = FA + 16 * (k0 & 1) + 4 * j
            o = 4032 - 64 * k0 - 1024 * j
            return ["ds_read_b64 %s, %s offset:%d" % (vr(b, 2), vr(VA), o), "ds_read_b64 %s, %s offset:%d" % (vr(b + 2, 2), vr(VA), o + 8)]

        def rdB(k0, q):
            b = FB + 16 * (k0 & 1) + 4 * q
            return ["ds_read_b128 %s, %s offset:%d" % (vr(b, 4), vr(VB + (k0 & 7)), 1024 * q + 512 * (1 - (k0 >> 3)))]

        def reads(k0):
            return rdA(k0, 0) + rdB(k0, 0) + rdB(k0, 1) + rdB(k0, 2) + rdB(k0, 3) + rdA(k0, 1) + rdA(k0, 2) + rdA(k0, 3)
        order = [(0, 0), (0, 1), (0, 2), (0, 3), (1, 0), (1, 1), (1, 2), (2, 0), (2, 1), (3, 0)]
        needn = [3, 4, 5, 6, 8, 8, 8, 10, 10, 12]
        for l in rdA(0, 0) + rdA(0, 1) + rdA(0, 2) + rdA(0, 3):
            p(l)
        p("s_waitcnt lgkmcnt(0)")
        self.stamp(4)
        p("s_barrier\ns_setprio 2")
        self.stamp(5)
        for q in range(4):
            p(rdB(0, q)[0])
        for k0 in range(16):
            nxt = reads(k0 + 1) if k0 < 15 else []
            issued = 0
            for m, (j, q) in enumerate(order):
                if k0 == 0:
                    rem = 3 - q if j == 0 else None
                    if rem is not None:
                        p("s_waitcnt lgkmcnt(%d)" % min(15, rem + issued))
                else:
                    if m == 0 or needn[m] != needn[m - 1]:
                        p("s_waitcnt lgkmcnt(%d)" % min(15, 12 - needn[m] + issued))
                T = j + q
                c = "0" if (k0 == 0 and j == 0) else vr(ACC + 4 * T, 4)
                p("v_mfma_f32_16x16x32_bf16 %s, %s, %s, %s" % (vr(ACC + 4 * T, 4), vr(FA + 16 * (k0 & 1) + 4 * j, 4), vr(FB + 16 * (k0 & 1) + 4 * q, 4), c))
                n_iss = 2 if m < 2 else 1
                for _ in range(n_iss):
                    if issued < len(nxt):
                        p(nxt[issued])
                        issued += 1
            assert issued == len(nxt)
        self.stamp(6)
        for T in range(4):
            p("ds_write_b128 %s, %s offset:%d" % (vr(VYW), vr(ACC + 4 * T, 4), 1024 * T))
        p("s_lshl_b32 s47, s46, 2\ns_add_u32 s47, s47, %d\nv_mov_b32 v1, s47\nv_mov_b32 v2, 1" % FLG)
        p("s_waitcnt lgkmcnt(0)\nds_write_b32 v1, v2")
        self.stamp(7)
        self.stamp_flush()
        p("s_endpgm")

    def kg_mfma(self, h, ks, FR, D):
        for t in range(3):
            c = "0" if (h == 0 and ks == 0) else vr(D + 4 * t, 4)
            self.p("v_mfma_f32_16x16x32_bf16 %s, %s, %s, %s" % (vr(D + 4 * t, 4), vr(FR + 16 * ks + 4 + 4 * t, 4), vr(FR + 16 * ks, 4), c))

    def role_A(self):
        p = self.p
        HC, HI, VXD, VCK, VST, VU, VY, VO, VSEL, VD, VSTA, IDX, VR = 68, 72, 73, 77, 81, 83, 84, 85, 89, 90, 91, 92, 93
        p.label("A_main")
        p("s_mov_b32 s%d, 0xffff0000\ns_mov_b32 s60, 0x11111111\ns_mov_b32 s61, 0x11111111" % S_HI)
        p("v_and_b32 v1, 3, v0\ns_lshl_b32 s47, s%d, 3\nv_lshl_add_u32 v2, v1, 1, s47\nglobal_load_ushort %s, v2, %s" % (S_CQ, vr(VD), sr(S_DSK, 2)))
        p("v_mov_b32 v64, 0\nv_mov_b32 v65, 0\nv_mov_b32 v66, 0\nv_mov_b32 v67, 0")
        p("s_mul_i32 s47, s46, %d\ns_add_u32 s47, s47, %d\nv_lshl_add_u32 v2, v0, 4, s47\nds_write_b128 v2, v[64:67]" % (USTR, U0))
        p("v_mov_b32 v2, %d\nds_write_b128 v2, v[64:67]\nds_write_b128 v2, v[64:67] offset:16" % FLG)
        self.hash_consts(HC, 2)
        p("v_and_b32 v2, 60, v0\nv_add_u32 v2, s46, v2")
        p("s_lshl_b32 s47, s%d, 6\ns_add_u32 s47, s47, %d\nv_lshlrev_b32 v3, 13, v2\nv_lshl_add_u32 v3, v1, 4, v3\nv_add_u32 %s, s47, v3" % (S_CQ, WS_XD, vr(VXD)))
        p("s_lshl_b32 s47, s%d, 2\ns_add_u32 s47, s47, %d\nv_lshl_add_u32 %s, v2, 9, s47" % (S_CQ, WS_CHK, vr(VCK)))
        p("s_lshl_b32 s47, s%d, 3\ns_lshl_b32 s48, s%d, 10\ns_add_u32 s47, s47, s48\nv_lshlrev_b32 v3, 13, v2\nv_lshl_add_u32 v3, v1, 11, v3\nv_add_u32 %s, s47, v3" % (S_CQ, S_RHO, vr(VO)))
        for k in range(1, 4):
            p("v_add_u32 %s, %d, %s\nv_add_u32 %s, %d, %s\nv_add_u32 %s, %d, %s" % (vr(VXD + k), k << 19, vr(VXD), vr(VCK + k), k << 15, vr(VCK), vr(VO + k), k << 19, vr(VO)))
        p("s_lshl_b32 s47, s46, 10\ns_add_u32 s47, s47, %d\nv_lshl_add_u32 %s, v0, 4, s47\nv_add_u32 %s, 8192, %s" % (WS_ST + 4096, vr(VST), vr(VST + 1), vr(VST)))
        p("v_add_u32 v3, 64, v2\nv_lshrrev_b32 %s, 3, v3\nv_and_b32 %s, 2, %s\nv_xor_b32 v3, %s, v3\nv_lshlrev_b32 v3, 4, v3\nv_mul_u32_u24 %s, %d, v1\nv_add_u32 %s, %s, v3\nv_add_u32 %s, %d, %s"
          % (vr(VU), vr(VU), vr(VU), vr(VU), vr(VU), USTR, vr(VU), vr(VU), vr(VU), U0, vr(VU)))
        p("s_lshl_b32 s47, s46, 8\nv_mul_u32_u24 v3, %d, v1\nv_and_b32 %s, 60, v0\nv_lshl_add_u32 v3, %s, 2, v3\nv_add_u32 %s, s47, v3" % (REG + 64, vr(VY), vr(VY), vr(VY)))
        p("v_and_b32 v3, 1, v0\nv_mov_b32 %s, 0x05040100\nv_mov_b32 v2, 0x03020706\nv_cmp_eq_u32 vcc, 1, v3\nv_cndmask_b32 %s, %s, v2, vcc" % (vr(VSEL), vr(VSEL), vr(VSEL)))
        p("s_and_b32 s47, s2, 0xc0\ns_and_b32 s48, s2, 3\ns_lshl_b32 s48, s48, 4\ns_add_u32 s47, s47, s48\ns_bfe_u32 s48, s2, 0x40002\ns_add_u32 s47, s47, s48")
        p("s_lshl_b32 s47, s47, 2\ns_add_u32 s47, s47, s46\ns_lshl_b32 s47, s47, 4\ns_add_u32 s47, s47, %d\nv_mov_b32 %s, s47" % (WS_ST, vr(VSTA)))
        p("s_lshl_b32 s47, s2, 3\ns_lshl_b32 s48, s46, 1\ns_add_u32 s47, s47, s48\ns_sub_u32 s47, 0xffff, s47\nv_lshrrev_b32 v3, 5, v0\nv_sub_u32 %s, s47, v3" % vr(IDX))
        p("s_lshl_b32 s47, s46, 8\ns_add_u32 s47, s47, %d\nv_lshl_add_u32 %s, v0, 2, s47" % (RBUF, vr(VR)))
        p("s_mov_b32 s52, 0\ns_mov_b32 s53, -1\ns_mov_b32 s57, %d" % POLL_MAX)
        p("s_mov_b32 s64, s%d\ns_mov_b32 s65, s%d\ns_mov_b32 s66, 2097152\ns_mov_b32 s67, 0x00020000" % (S_OUT, S_OUT + 1))
        p("s_lshl_b32 s63, s%d, 1\ns_mul_i32 s63, s63, 0x01010000\ns_add_u32 s63, s63, 0x01000c0c" % S_RHO)
        p("s_waitcnt lgkmcnt(0)")
        self.nonce()
        self.hinit(HI)
        p("v_mov_b32 v67, s%d" % S_NONCE)
        p("s_barrier")
        p("s_waitcnt vmcnt(1)")
        self.stamp(1)
        XA, XB, W = 16, 24, 32
        L = []
        for base, src in ((XA, 4), (XB, 8), (W, 12)):
            for q in range(4):
                L += ["v_lshlrev_b32 %s, 16, %s" % (vr(base + 2 * q), vr(src + q)), "v_and_b32 %s, s%d, %s" % (vr(base + 2 * q + 1), S_HI, vr(src + q))]
        L += ["v_readfirstlane_b32 s50, %s" % vr(XA), "v_readfirstlane_b32 s51, %s" % vr(XB)]
        for q in range(4):
            L.append("v_pk_add_f32 %s, %s, s[50:51] op_sel:[0,0] op_sel_hi:[1,0] neg_lo:[0,1] neg_hi:[0,1]" % (vr(XA + 2 * q, 2), vr(XA + 2 * q, 2)))
            L.append("v_pk_add_f32 %s, %s, s[50:51] op_sel:[0,1] op_sel_hi:[1,1] neg_lo:[0,1] neg_hi:[0,1]" % (vr(XB + 2 * q, 2), vr(XB + 2 * q, 2)))
        S1, S2, S3, SW = (40, 42), (44, 46), (48, 50), 52
        for r, X in enumerate((XA, XB)):
            L.append("v_pk_add_f32 %s, %s, %s" % (vr(S1[r], 2), vr(X, 2), vr(X + 2, 2)))
            L.append("v_pk_mul_f32 %s, %s, %s" % (vr(S2[r], 2), vr(X, 2), vr(X, 2)))
            L.append("v_pk_mul_f32 %s, %s, %s" % (vr(S3[r], 2), vr(X, 2), vr(W, 2)))
            for q in range(1, 4):
                if q > 1:
                    L.append("v_pk_add_f32 %s, %s, %s" % (vr(S1[r], 2), vr(S1[r], 2), vr(X + 2 * q, 2)))
                L.append("v_pk_fma_f32 %s, %s, %s, %s" % (vr(S2[r], 2), vr(X + 2 * q, 2), vr(X + 2 * q, 2), vr(S2[r], 2)))
                L.append("v_pk_fma_f32 %s, %s, %s, %s" % (vr(S3[r], 2), vr(X + 2 * q, 2), vr(W + 2 * q, 2), vr(S3[r], 2)))
            for S in (S1, S2, S3):
                L.append("v_add_f32 %s, %s, %s" % (vr(S[r]), vr(S[r]), vr(S[r] + 1)))
        L.append("v_pk_add_f32 %s, %s, %s" % (vr(SW, 2), vr(W, 2), vr(W + 2, 2)))
        L.append("v_pk_add_f32 %s, %s, %s" % (vr(54, 2), vr(W + 4, 2), vr(W + 6, 2)))
        L.append("v_pk_add_f32 %s, %s, %s" % (vr(SW, 2), vr(SW, 2), vr(54, 2)))
        L.append("v_add_f32 %s, %s, %s" % (vr(SW), vr(SW), vr(SW + 1)))
        L.append("v_mov_b32 %s, %s" % (vr(SW + 1), vr(SW)))
        for a, b in ((S1[0], S1[1]), (S2[0], S2[1]), (S3[0], S3[1]), (SW, SW + 1)):
            L.append("v_permlane32_swap_b32 %s, %s" % (vr(a), vr(b)))
            L.append("v_add_f32 %s, %s, %s" % (vr(a), vr(a), vr(b)))
        T1, T2, T3, TW = S1[0], S2[0], S3[0], SW
        for ctl in ("row_ror:8 row_mask:0xf", "row_ror:4 row_mask:0xf", "row_ror:2 row_mask:0xf", "row_ror:1 row_mask:0xf", "row_bcast:15 row_mask:0xa"):
            for T in (T1, T2, T3, TW):
                L.append("v_add_f32_dpp %s, %s, %s %s bank_mask:0xf" % (vr(T), vr(T), vr(T), ctl))
        X0, DM, MEAN, VAR, t, MS, KEY = 56, 57, 58, 59, 60, 65, 66
        L += ["v_mov_b32 %s, s50" % vr(X0), "v_mov_b32 %s, s51" % vr(t), "v_cndmask_b32 %s, %s, %s, s[52:53]" % (vr(X0), vr(X0), vr(t)),
              "v_mul_f32 %s, %s, %s" % (vr(DM), hx(f2u(1 / 512)), vr(T1)),
              "v_mul_f32 %s, %s, %s" % (vr(VAR), hx(f2u(1 / 512)), vr(T2)),
              "v_add_f32 %s, %s, %s" % (vr(MEAN), vr(X0), vr(DM)),
              "v_fma_f32 %s, -%s, %s, %s" % (vr(VAR), vr(DM), vr(DM), vr(VAR)),
              "v_max_f32 %s, 0, %s" % (vr(VAR), vr(VAR)),
              "v_cvt_pk_bf16_f32 %s, %s, %s" % (vr(VAR), vr(VAR), vr(VAR)),
              "v_and_b32 %s, s%d, %s" % (vr(VAR), S_HI, vr(VAR)),
              "v_add_f32 %s, %s, %s" % (vr(VAR), hx(f2u(1e-5)), vr(VAR)),
              "v_cvt_pk_bf16_f32 %s, %s, %s" % (vr(VAR), vr(VAR), vr(VAR)),
              "v_and_b32 %s, s%d, %s" % (vr(VAR), S_HI, vr(VAR)),
              "v_sqrt_f32 %s, %s" % (vr(VAR), vr(VAR)),
              "v_cvt_pk_bf16_f32 %s, %s, %s" % (vr(MS), vr(MEAN), vr(VAR)),
              "v_lshlrev_b32 %s, 16, %s" % (vr(61), vr(MS)),
              "v_and_b32 %s, s%d, %s" % (vr(62), S_HI, vr(MS)),
              "v_rcp_f32 %s, %s" % (vr(62), vr(62)),
              "v_sub_f32 %s, %s, %s" % (vr(61), vr(61), vr(X0)),
              "v_fma_f32 %s, -%s, %s, %s" % (vr(61), vr(61), vr(TW), vr(T3)),
              "v_mul_f32 %s, %s, %s" % (vr(61), vr(61), vr(62)),
              "v_cvt_pk_bf16_f32 %s, %s, %s" % (vr(61), vr(61), vr(61)),
              "v_ashrrev_i32 %s, 31, %s" % (vr(62), vr(61)),
              "v_or_b32 %s, 0x80000000, %s" % (vr(62), vr(62)),
              "v_xor_b32 %s, %s, %s" % (vr(61), vr(61), vr(62)),
              "v_and_or_b32 %s, %s, s%d, %s" % (vr(KEY), vr(61), S_HI, vr(IDX)),
              "v_readlane_b32 s54, %s, 16" % vr(MS), "v_readlane_b32 s55, %s, 16" % vr(KEY),
              "v_mov_b32 v64, s54", "v_max_u32 %s, s55, %s" % (vr(KEY), vr(KEY))]
        p("\n".join(schedule(L)))
        p("s_mov_b32 exec_lo, 0\ns_mov_b32 exec_hi, 0x80000000")
        p("global_store_dwordx4 %s, v[64:67], %s sc1" % (vr(VSTA), sr(S_WS, 2)))
        p("s_mov_b64 exec, -1")
        self.stamp(2)
        p("s_waitcnt vmcnt(0)")
        p("v_lshlrev_b32 %s, 16, %s" % (vr(VD), vr(VD)))
        self.stamp(3)
        XD, ST, CK, XN = 4, 20, 36, 40
        p.label("A_poll")
        for k in range(4):
            p("global_load_dwordx4 %s, %s, %s sc1" % (vr(XD + 4 * k, 4), vr(VXD + k), sr(S_WS, 2)))
            p("global_load_dwordx4 %s, %s, %s offset:%d sc1" % (vr(ST + 4 * k, 4), vr(VST + (k >> 1)), sr(S_WS, 2), -4096 if (k & 1) == 0 else 0))
            p("global_load_dword %s, %s, %s sc1" % (vr(CK + k), vr(VCK + k), sr(S_WS, 2)))
        p("s_mov_b64 s[58:59], 0")
        for k in range(4):
            p("s_waitcnt vmcnt(%d)" % (9 - 3 * k))
            MA, MB, RA, RB, H = 56, 57, 58, 59, 60
            x, st = XD + 4 * k, ST + 4 * k
            L = ["v_lshlrev_b32 %s, 16, %s" % (vr(MA), vr(st)), "v_and_b32 %s, s%d, %s" % (vr(RA), S_HI, vr(st)), "v_rcp_f32 %s, %s" % (vr(RA), vr(RA)),
                 "v_lshlrev_b32 %s, 16, %s" % (vr(MB), vr(st + 1)), "v_and_b32 %s, s%d, %s" % (vr(RB), S_HI, vr(st + 1)), "v_rcp_f32 %s, %s" % (vr(RB), vr(RB))]
            for q in range(4):
                L.append("v_dot2_u32_u16 %s, %s, %s, %s" % (vr(H), vr(x + q), vr(HC + q), vr(HI if q == 0 else H)))
            for qp in ("[1,0,3,2]", "[2,3,0,1]"):
                L.append("v_add_u32_dpp %s, %s, %s quad_perm:%s row_mask:0xf bank_mask:0xf" % (vr(H), vr(H), vr(H), qp))
            for q in range(4):
                lo, hi = 96 + 2 * q, 97 + 2 * q
                bc = "quad_perm:[%d,%d,%d,%d] row_mask:0xf bank_mask:0xf" % (q, q, q, q)
                L += ["v_lshlrev_b32 %s, 16, %s" % (vr(lo), vr(x + q)), "v_and_b32 %s, s%d, %s" % (vr(hi), S_HI, vr(x + q)),
                      "v_subrev_f32_dpp %s, %s, %s %s" % (vr(lo), vr(MA), vr(lo), bc), "v_subrev_f32_dpp %s, %s, %s %s" % (vr(hi), vr(MB), vr(hi), bc),
                      "v_mul_f32_dpp %s, %s, %s %s" % (vr(lo), vr(RA), vr(lo), bc), "v_mul_f32_dpp %s, %s, %s %s" % (vr(hi), vr(RB), vr(hi), bc),
                      "v_cvt_pk_bf16_f32 %s, %s, %s" % (vr(XN + 4 * k + q), vr(lo), vr(hi))]
            L.append("ds_write_b128 %s, %s offset:%d" % (vr(VU), vr(XN + 4 * k, 4), 1024 * k))
            L += ["v_cmp_ne_u32 s[48:49], s%d, %s" % (S_NONCE, vr(st + 3)), "s_or_b64 s[58:59], s[58:59], s[48:49]",
                  "v_cmp_ne_u32 s[50:51], %s, %s" % (vr(H), vr(CK + k)), "s_or_b64 s[58:59], s[58:59], s[50:51]"]
            p("\n".join(schedule(L)))
        p("v_max3_u32 v61, %s, %s, %s\nv_max_u32 v61, v61, %s\nds_write_b32 %s, v61" % (vr(ST + 2), vr(ST + 6), vr(ST + 10), vr(ST + 14), vr(VR)))
        p("s_cmp_eq_u64 s[58:59], 0\ns_cbranch_scc1 A_ready\ns_sub_u32 s57, s57, 1\ns_cmp_lg_u32 s57, 0\ns_cbranch_scc1 A_poll")
        p.label("A_ready")
        p("s_waitcnt lgkmcnt(0)")
        self.stamp(4)
        p("s_barrier")
        if "U" in self.dump:
            p("s_mul_i32 s49, s46, %d\ns_add_u32 s49, s49, %d\ns_add_u32 s47, s46, 4" % (USTR, U0))
            self.dump_lds("U", "s49", 5120, "s47")
        GG, BB, YY = 96, 112, 128
        L = []
        for i in range(16):
            g, b, t = GG + i, BB + i, 144 + (i & 7)
            L += ["v_perm_b32 %s, 0, %s, s63" % (vr(g), vr(XN + i)), "v_perm_b32 %s, 0, %s, s63" % (vr(b), vr(XD + i)),
                  "v_mul_f32 %s, %s, %s" % (vr(t), hx(f2u(-LOG2E)), vr(g)), "v_exp_f32 %s, %s" % (vr(t), vr(t)),
                  "v_add_f32 %s, 1.0, %s" % (vr(t), vr(t)), "v_rcp_f32 %s, %s" % (vr(t), vr(t)),
                  "v_mul_f32 %s, %s, %s" % (vr(t + 8), vr(g), vr(VD)),
                  "v_mul_f32 %s, %s, %s" % (vr(g), vr(g), vr(t)),
                  "v_fmac_f32 %s, %s, %s" % (vr(b), vr(t + 8), vr(g))]
        p("\n".join(schedule(L)))
        self.stamp(5)
        p("v_mov_b32 v1, %d\ns_mov_b32 s57, 200000" % FLG)
        p.label("A_wsel")
        p("ds_read_b32 v2, v1 offset:16\ns_waitcnt lgkmcnt(0)\nv_readfirstlane_b32 s47, v2\ns_cmp_lg_u32 s47, 0\ns_cbranch_scc1 A_gsel")
        p("s_sleep 1\ns_sub_u32 s57, s57, 1\ns_cmp_lg_u32 s57, 0\ns_cbranch_scc1 A_wsel")
        p.label("A_gsel")
        p("s_sub_u32 s47, s47, 1\ns_lshl_b32 s47, s47, 10\ns_lshl_b32 s48, s%d, 3\ns_add_u32 s47, s47, s48\nv_mov_b32 v3, 0x7ffffff0" % S_CQ)
        for k in range(4):
            p("v_cmp_ne_u32 vcc, s47, %s\nv_cndmask_b32 %s, v3, %s, vcc" % (vr(VO + k), vr(VO + k), vr(VO + k)))
        p("s_mov_b32 s57, 200000")
        p.label("A_wy")
        p("ds_read_b128 v[56:59], v1\ns_waitcnt lgkmcnt(0)\nv_and_b32 v56, v56, v57\nv_and_b32 v58, v58, v59\nv_and_b32 v56, v56, v58\nv_readfirstlane_b32 s47, v56\ns_cmp_lg_u32 s47, 0\ns_cbranch_scc1 A_gy")
        p("s_sleep 1\ns_sub_u32 s57, s57, 1\ns_cmp_lg_u32 s57, 0\ns_cbranch_scc1 A_wy")
        p.label("A_gy")
        self.stamp(6)
        for k in range(4):
            p("ds_read_b128 %s, %s offset:%d" % (vr(YY + 4 * k, 4), vr(VY), 1024 * k))
        for k in range(4):
            p("s_waitcnt lgkmcnt(%d)" % (3 - k))
            y = YY + 4 * k
            P0, P1, T0, T1_, R0, R1, O = 4 + 8 * k, 5 + 8 * k, 6 + 8 * k, 7 + 8 * k, 8 + 8 * k, 9 + 8 * k, 10 + 8 * k
            L = ["v_fma_f32 %s, %s, %s, %s" % (vr(y + q), vr(y + q), vr(GG + 4 * k + q), vr(BB + 4 * k + q)) for q in range(4)]
            L += ["v_cvt_pk_bf16_f32 %s, %s, %s" % (vr(P0), vr(y), vr(y + 1)), "v_cvt_pk_bf16_f32 %s, %s, %s" % (vr(P1), vr(y + 2), vr(y + 3))]
            p("\n".join(L))
        for k in range(4):
            P0, P1, T0, T1_ = 4 + 8 * k, 5 + 8 * k, 6 + 8 * k, 7 + 8 * k
            p("v_mov_b32_dpp %s, %s quad_perm:[1,0,3,2] row_mask:0xf bank_mask:0xf\nv_mov_b32_dpp %s, %s quad_perm:[1,0,3,2] row_mask:0xf bank_mask:0xf" % (vr(T0), vr(P0), vr(T1_), vr(P1)))
        for k in range(4):
            P0, P1, T0, T1_, R0, R1 = 4 + 8 * k, 5 + 8 * k, 6 + 8 * k, 7 + 8 * k, 8 + 8 * k, 9 + 8 * k
            p("v_perm_b32 %s, %s, %s, %s\nv_perm_b32 %s, %s, %s, %s" % (vr(R0), vr(T0), vr(P0), vr(VSEL), vr(R1), vr(T1_), vr(P1), vr(VSEL)))
        p("s_mov_b32 vcc_lo, 0x33333333\ns_mov_b32 vcc_hi, 0x33333333")
        for k in range(4):
            p("v_cndmask_b32_dpp %s, %s, %s, vcc quad_perm:[2,3,0,1] row_mask:0xf bank_mask:0xf" % (vr(10 + 8 * k), vr(9 + 8 * k), vr(8 + 8 * k)))
        p("s_not_b64 vcc, vcc")
        for k in range(4):
            p("v_cndmask_b32_dpp %s, %s, %s, vcc quad_perm:[2,3,0,1] row_mask:0xf bank_mask:0xf" % (vr(11 + 8 * k), vr(8 + 8 * k), vr(9 + 8 * k)))
            p("buffer_store_dwordx2 %s, %s, s[64:67], 0 offen" % (vr(10 + 8 * k, 2), vr(VO + k)))
        self.stamp(7)
        if self.stamps:
            p("s_waitcnt vmcnt(0)")
        self.stamp(8)
        self.stamp_flush()
        p("s_endpgm")

    def role_F(self):
        p = self.p
        WG_, WU_, WD_ = 4, 36, 68
        VW, VWD, XS, SG, XQ, DQ, XNP, AC = 100, 104, 108, 112, 116, 117, 118, 124
        p.label("F_main")
        p("s_mov_b32 s%d, 0xffff0000" % S_HI)
        p("v_lshlrev_b32 v2, 15, v0\nglobal_load_dword v7, v2, %s" % sr(S_OUT, 2))
        p("v_add_u32 v3, %d, v2\nglobal_load_dword v8, v3, %s" % (WS_XD, sr(S_WS, 2)))
        p("s_mul_i32 s50, s%d, 43\ns_add_u32 s51, s50, 43\ns_lshr_b32 s50, s50, 1\ns_lshr_b32 s51, s51, 1\ns_add_u32 s52, s50, s%d" % (S_XCD, S_J))
        p("s_lshl_b32 s47, s%d, 4\nv_lshrrev_b32 v1, 2, v0\nv_add_u32 v1, s47, v1\nv_mul_u32_u24 v1, 2752, v1" % S_J)
        p("s_lshl_b32 s47, s50, 4\ns_lshl_b32 s48, s51, 4\nv_add_u32 v2, s47, v1\nv_and_b32 v2, 0xffffff80, v2\nv_add_u32 v1, s48, v1")
        p("v_and_b32 v3, 3, v0\nv_lshl_add_u32 v3, v3, 7, v2\nv_cmp_lt_u32 vcc, v3, v1\nv_cndmask_b32 v9, v2, v3, vcc")
        p("s_mul_i32 s47, s%d, 43\nv_min_u32 v1, 42, v0\nv_add_u32 v1, s47, v1\ns_lshl_b32 s47, s50, 13\nv_lshl_add_u32 v10, v1, 7, s47\nv_min_u32 v10, %d, v10" % (S_J, 1376 * 1024 - 128))
        p("s_min_u32 s53, s52, 171\ns_lshl_b32 s47, s53, 4\nv_mul_u32_u24 v1, %d, v0\nv_add_u32 %s, s47, v1" % (8 * 2752, vr(VW)))
        for q in range(1, 4):
            p("v_add_u32 %s, %d, %s" % (vr(VW + q), 2 * 2752 * q, vr(VW)))
        p("s_lshl_b32 s47, s53, 13\nv_lshl_add_u32 %s, v0, 4, s47\nv_add_u32 %s, 4096, %s" % (vr(VWD), vr(VWD + 1), vr(VWD)))
        p("v_lshrrev_b32 v1, 4, v0\ns_lshl_b32 s47, s%d, 3\nv_lshl_add_u32 %s, v1, 1, s47" % (S_CQ, vr(VWD + 2)))
        p("v_lshlrev_b32 v1, 4, v0\nv_add_u32 %s, %d, v1" % (vr(VWD + 3), RBUF))
        p("s_waitcnt lgkmcnt(0)")
        self.nonce()
        p("s_barrier")
        p("s_waitcnt vmcnt(2)")
        self.stamp(1)
        p("global_load_dword v4, v9, %s\nglobal_load_dword v5, v9, %s\nglobal_load_dword v6, v10, %s" % (sr(S_WG, 2), sr(S_WU, 2), sr(S_WD, 2)))
        p("global_load_ushort %s, %s, %s" % (vr(DQ), vr(VWD + 2), sr(S_DSK, 2)))
        p("s_barrier\ns_setprio 3")
        self.stamp(2)
        p("ds_read_b128 v[120:123], %s\ns_waitcnt lgkmcnt(0)" % vr(VWD + 3))
        p("v_max3_u32 v120, v120, v121, v122\nv_max_u32 v120, v120, v123")
        for n in (8, 4, 2, 1):
            p("v_max_u32_dpp v120, v120, v120 row_ror:%d row_mask:0xf bank_mask:0xf" % n)
        p("v_readlane_b32 s47, v120, 0\nv_readlane_b32 s48, v120, 16\nv_readlane_b32 s49, v120, 32\nv_readlane_b32 s54, v120, 48")
        p("s_max_u32 s47, s47, s48\ns_max_u32 s49, s49, s54\ns_max_u32 s55, s47, s49")
        p("s_and_b32 s47, s55, 0xffff\ns_sub_u32 s54, 0xffff, s47\ns_and_b32 s54, s54, 2047")
        p("s_lshl_b32 s47, s54, 10\nv_lshl_add_u32 v1, v0, 4, s47\nglobal_load_dwordx4 %s, v1, %s" % (vr(XS, 4), sr(S_X, 2)))
        p("v_add_u32 %s, s47, %s\nglobal_load_ushort %s, %s, %s" % (vr(VWD + 2), vr(VWD + 2), vr(XQ), vr(VWD + 2), sr(S_X, 2)))
        p("s_lshr_b32 s47, s54, 3\ns_and_b32 s48, s47, 0xc0\ns_and_b32 s49, s47, 3\ns_lshl_b32 s49, s49, 4\ns_add_u32 s48, s48, s49\ns_bfe_u32 s49, s47, 0x40002\ns_add_u32 s48, s48, s49")
        p("s_lshl_b32 s48, s48, 2\ns_bfe_u32 s49, s54, 0x20001\ns_add_u32 s48, s48, s49\ns_lshl_b32 s48, s48, 4\ns_add_u32 s48, s48, %d\nv_mov_b32 v2, s48" % WS_ST)
        p("global_load_dwordx2 %s, v2, %s sc1" % (vr(SG, 2), sr(S_WS, 2)))
        p("s_add_u32 s47, s54, 1\nv_mov_b32 v1, %d\nv_mov_b32 v2, s47\nds_write_b32 v1, v2 offset:16" % FLG)
        p("s_cmp_lg_u32 s2, 0\ns_cbranch_scc1 F_noep\nv_mov_b32 v1, 0\nv_mov_b32 v2, s%d\nglobal_store_dword v1, v2, %s" % (S_NONCE, sr(S_WS, 2)))
        p.label("F_noep")
        self.stamp(3)
        p("s_cmp_ge_u32 s52, s51\ns_cbranch_scc1 F_nounit")
        for m in range(8):
            p("global_load_dwordx4 %s, %s, %s offset:%d" % (vr(WG_ + 4 * m, 4), vr(VW + (m >> 1)), sr(S_WG, 2), 2752 * (m & 1)))
            p("global_load_dwordx4 %s, %s, %s offset:%d" % (vr(WU_ + 4 * m, 4), vr(VW + (m >> 1)), sr(S_WU, 2), 2752 * (m & 1)))
        for m in range(8):
            p("global_load_dwordx4 %s, %s, %s offset:%d" % (vr(WD_ + 4 * m, 4), vr(VWD + (m >> 2)), sr(S_WD, 2), 1024 * (m & 3)))
        p("s_waitcnt vmcnt(24)")
        self.xnorm_sel(XS, SG, XNP)
        p("s_mov_b32 s58, 0x05040100\ns_mov_b32 s59, 0x07060302")
        for pr in range(4):
            p("s_waitcnt vmcnt(%d)" % (20 - 4 * pr))
            L = []
            n = 0
            for mat, Wb in enumerate((WG_, WU_)):
                for q in range(4):
                    a, b = Wb + 8 * pr + q, Wb + 8 * pr + 4 + q
                    for hf in range(2):
                        t = 140 + (n % 12)
                        n += 1
                        acc = AC + 8 * mat + 2 * q + hf
                        L += ["v_perm_b32 %s, %s, %s, s%d" % (vr(t), vr(b), vr(a), 58 + hf),
                              "v_dot2_f32_bf16 %s, %s, %s, %s" % (vr(acc), vr(t), vr(XNP + pr), "0" if pr == 0 else vr(acc))]
            p("\n".join(schedule(L)))
        L = []
        for mat in range(2):
            for f in range(4):
                a, b = AC + 8 * mat + f, AC + 8 * mat + 4 + f
                L += ["v_permlane32_swap_b32 %s, %s" % (vr(a), vr(b)), "v_add_f32 %s, %s, %s" % (vr(a), vr(a), vr(b))]
            for f in range(2):
                a, b = AC + 8 * mat + f, AC + 8 * mat + 2 + f
                L += ["v_permlane16_swap_b32 %s, %s" % (vr(a), vr(b)), "v_add_f32 %s, %s, %s" % (vr(a), vr(a), vr(b))]
            for n in (8, 4, 2, 1):
                for f in range(2):
                    a = AC + 8 * mat + f
                    L.append("v_add_f32_dpp %s, %s, %s row_ror:%d row_mask:0xf bank_mask:0xf" % (vr(a), vr(a), vr(a), n))
        g0, g1, u0, u1 = AC, AC + 1, AC + 8, AC + 9
        L += ["v_cvt_pk_bf16_f32 v140, %s, %s" % (vr(g0), vr(g1)), "v_cvt_pk_bf16_f32 v141, %s, %s" % (vr(u0), vr(u1)),
              "v_lshlrev_b32 %s, 16, v140" % vr(g0), "v_and_b32 %s, s%d, v140" % (vr(g1), S_HI),
              "v_lshlrev_b32 %s, 16, v141" % vr(u0), "v_and_b32 %s, s%d, v141" % (vr(u1), S_HI)]
        for g, t in ((g0, 142), (g1, 143)):
            L += ["v_mul_f32 %s, %s, %s" % (vr(t), hx(f2u(-LOG2E)), vr(g)), "v_exp_f32 %s, %s" % (vr(t), vr(t)), "v_add_f32 %s, 1.0, %s" % (vr(t), vr(t)),
                  "v_rcp_f32 %s, %s" % (vr(t), vr(t)), "v_mul_f32 %s, %s, %s" % (vr(g), vr(g), vr(t))]
        L += ["v_cvt_pk_bf16_f32 v140, %s, %s" % (vr(g0), vr(g1)), "v_lshlrev_b32 %s, 16, v140" % vr(g0), "v_and_b32 %s, s%d, v140" % (vr(g1), S_HI),
              "v_mul_f32 %s, %s, %s" % (vr(g0), vr(g0), vr(u0)), "v_mul_f32 %s, %s, %s" % (vr(g1), vr(g1), vr(u1)),
              "v_cvt_pk_bf16_f32 v140, %s, %s" % (vr(g0), vr(g1))]
        L += ["v_readlane_b32 s%d, v140, %d" % (68 + R, 16 * R) for R in range(4)]
        p("\n".join(schedule(L)))
        p("s_waitcnt vmcnt(0)")
        L = []
        n = 0
        for pr in range(4):
            for q in range(4):
                a, b = WD_ + 8 * pr + q, WD_ + 8 * pr + 4 + q
                for hf in range(2):
                    t = 140 + (n % 12)
                    n += 1
                    acc = AC + 2 * q + hf
                    L += ["v_perm_b32 %s, %s, %s, s%d" % (vr(t), vr(b), vr(a), 58 + hf),
                          "v_dot2_f32_bf16 %s, %s, s%d, %s" % (vr(acc), vr(t), 68 + pr, "0" if pr == 0 else vr(acc))]
        L.append("v_mov_b32 v152, s%d" % S_NONCE)
        for i in range(4):
            L.append("s_mov_b32 s%d, 0x%08x" % (60 + i, 0x07060500 + i))
        for e in range(8):
            L.append("v_perm_b32 %s, %s, v152, s%d" % (vr(AC + e), vr(AC + e), 60 + (e & 3)))
        L += ["s_lshl_b32 s47, s52, 11", "s_add_u32 s47, s47, %d" % WS_FP, "v_lshl_add_u32 v1, v0, 4, s47"]
        p("\n".join(schedule(L)))
        p("global_store_dwordx4 v1, %s, %s sc1\nglobal_store_dwordx4 v1, %s, %s offset:1024 sc1" % (vr(AC, 4), sr(S_WS, 2), vr(AC + 4, 4), sr(S_WS, 2)))
        p("s_branch F_row")
        p.label("F_nounit")
        p("s_waitcnt vmcnt(0)")
        self.xnorm_sel(XS, SG, XNP, only_stats=True)
        p.label("F_row")
        self.stamp(4)
        p("s_setprio 0\ns_and_b32 s47, s54, 1\ns_cmp_lg_u32 s47, s%d\ns_cbranch_scc1 F_done" % S_RHO)
        p("v_lshlrev_b32 %s, 16, %s\nv_lshlrev_b32 %s, 16, %s" % (vr(XQ), vr(XQ), vr(DQ), vr(DQ)))
        p("v_sub_f32 v4, %s, v114\nv_mul_f32 v4, v4, v115\nv_cvt_pk_bf16_f32 v4, v4, v4\nv_and_b32 v4, s%d, v4" % (vr(XQ), S_HI))
        p("s_ashr_i32 s47, s55, 31\ns_not_b32 s47, s47\ns_or_b32 s47, s47, 0x80000000\ns_xor_b32 s47, s47, s55\ns_and_b32 s47, s47, 0xffff0000")
        p("v_mov_b32 v5, s47\nv_mul_f32 v5, %s, v5\nv_exp_f32 v5, v5\nv_add_f32 v5, 1.0, v5\nv_rcp_f32 v5, v5\nv_cvt_pk_bf16_f32 v5, v5, v5\nv_and_b32 v5, s%d, v5" % (hx(f2u(-LOG2E)), S_HI))
        p("s_lshr_b32 s47, s54, 9\ns_lshl_b32 s47, s47, 10\ns_bfe_u32 s48, s54, 0x20003\ns_lshl_b32 s48, s48, 8\ns_add_u32 s47, s47, s48")
        p("s_bfe_u32 s48, s54, 0x40005\ns_lshl_b32 s48, s48, 4\ns_add_u32 s47, s47, s48\ns_bfe_u32 s48, s54, 0x20001\ns_lshl_b32 s48, s48, 2\ns_add_u32 s47, s47, s48")
        p("v_lshrrev_b32 v6, 4, v0\nv_mul_u32_u24 v6, %d, v6\nv_add_u32 v6, s47, v6" % (REG + 64))
        p("s_and_b32 s47, s%d, 1\ns_lshl_b32 s47, s47, 10\ns_lshr_b32 s48, s%d, 1\ns_lshl_b32 s48, s48, 4\ns_add_u32 s47, s47, s48\ns_add_u32 s47, s47, %d" % (S_CQ, S_CQ, WS_FP))
        p("v_lshl_add_u32 v7, v0, 11, s47\nv_add_u32 v8, 0x20000, v7\nv_min_u32 v9, 43, v0\nv_lshl_add_u32 v9, v9, 11, s47\nv_add_u32 v9, 0x40000, v9")
        p("s_mov_b32 s57, %d\ns_mov_b32 s58, 0x0c0c0400\ns_mov_b32 s59, 0x04000c0c" % POLL_MAX)
        p("s_waitcnt vmcnt(0)")
        p.label("F_poll")
        for i in range(3):
            p("global_load_dwordx4 %s, %s, %s sc1" % (vr(12 + 4 * i, 4), vr(7 + i), sr(S_WS, 2)))
        p("s_mov_b64 s[60:61], 0\ns_waitcnt vmcnt(0)")
        for i in range(3):
            b = 12 + 4 * i
            p("v_perm_b32 v24, %s, %s, s58\nv_perm_b32 v25, %s, %s, s59\nv_or_b32 v24, v24, v25\nv_cmp_ne_u32 vcc, s%d, v24\ns_or_b64 s[60:61], s[60:61], vcc"
              % (vr(b + 1), vr(b), vr(b + 3), vr(b + 2), S_NONCE))
        p("s_cmp_eq_u64 s[60:61], 0\ns_cbranch_scc1 F_got\ns_sub_u32 s57, s57, 1\ns_cmp_lg_u32 s57, 0\ns_cbranch_scc1 F_poll")
        p.label("F_got")
        self.stamp(5)
        p("v_pk_add_f32 v[12:13], v[12:13], v[16:17]\nv_pk_add_f32 v[14:15], v[14:15], v[18:19]")
        p("s_mov_b32 exec_lo, -1\ns_mov_b32 exec_hi, 0xfff")
        p("v_pk_add_f32 v[12:13], v[12:13], v[20:21]\nv_pk_add_f32 v[14:15], v[14:15], v[22:23]")
        p("s_mov_b64 exec, -1\ns_nop 1")
        p("v_permlane32_swap_b32 v12, v14\nv_permlane32_swap_b32 v13, v15\nv_add_f32 v12, v12, v14\nv_add_f32 v13, v13, v15\nv_permlane16_swap_b32 v12, v13\nv_add_f32 v12, v12, v13")
        for n in (8, 4, 2, 1):
            p("v_add_f32_dpp v12, v12, v12 row_ror:%d row_mask:0xf bank_mask:0xf" % n)
        rb = lambda r: "v_cvt_pk_bf16_f32 %s, %s, %s\nv_and_b32 %s, s%d, %s" % (r, r, r, r, S_HI, r)
        p(rb("v12") + "\nv_mul_f32 v12, v12, v5\n" + rb("v12") + "\nv_add_f32 v12, v12, v4\n" + rb("v12"))
        p("v_mul_f32 v13, %s, v12\nv_exp_f32 v13, v13\nv_add_f32 v13, 1.0, v13\nv_rcp_f32 v13, v13\nv_mul_f32 v12, v12, v13" % hx(f2u(-LOG2E)))
        p("v_mov_b32 v1, %d\ns_mov_b32 s57, 200000" % FLG)
        p.label("F_wy")
        p("ds_read_b128 v[16:19], v1\ns_waitcnt lgkmcnt(0)\nv_and_b32 v16, v16, v17\nv_and_b32 v18, v18, v19\nv_and_b32 v16, v16, v18\nv_readfirstlane_b32 s47, v16\ns_cmp_lg_u32 s47, 0\ns_cbranch_scc1 F_gy")
        p("s_sleep 1\ns_sub_u32 s57, s57, 1\ns_cmp_lg_u32 s57, 0\ns_cbranch_scc1 F_wy")
        p.label("F_gy")
        p("ds_read_b32 v13, v6\ns_waitcnt lgkmcnt(0)")
        p("v_fmac_f32 v13, v4, %s\nv_fma_f32 v13, v13, v12, %s\nv_cvt_pk_bf16_f32 v13, v13, v13" % (vr(DQ), vr(XQ)))
        p("s_mov_b32 exec_lo, 0x00010001\ns_mov_b32 exec_hi, 0x00010001")
        p("global_store_short %s, v13, %s" % (vr(VWD + 2), sr(S_OUT, 2)))
        p.label("F_done")
        self.stamp(6)
        self.stamp_flush()
        p.label("L_end")
        p("s_endpgm")

    def xnorm_sel(self, XS, SG, XNP, only_stats=False):
        p = self.p
        p("s_and_b32 s47, s54, 1\ns_cmp_eq_u32 s47, 1\ns_cselect_b64 vcc, -1, 0\nv_cndmask_b32 v113, %s, %s, vcc" % (vr(SG), vr(SG + 1)))
        p("v_lshlrev_b32 v114, 16, v113\nv_and_b32 v115, s%d, v113\nv_rcp_f32 v115, v115" % S_HI)
        if only_stats:
            return
        L = []
        for q in range(4):
            lo, hi = 140 + 2 * q, 141 + 2 * q
            L += ["v_lshlrev_b32 %s, 16, %s" % (vr(lo), vr(XS + q)), "v_and_b32 %s, s%d, %s" % (vr(hi), S_HI, vr(XS + q)),
                  "v_sub_f32 %s, %s, v114" % (vr(lo), vr(lo)), "v_sub_f32 %s, %s, v114" % (vr(hi), vr(hi)),
                  "v_mul_f32 %s, %s, v115" % (vr(lo), vr(lo)), "v_mul_f32 %s, %s, v115" % (vr(hi), vr(hi)),
                  "v_cvt_pk_bf16_f32 %s, %s, %s" % (vr(XNP + q), vr(lo), vr(hi))]
        p("\n".join(schedule(L)))

    def build(self, header):
        self.entry()
        self.role_A()
        self.role_C()
        self.role_F()
        body = self.p.emit()
        s = header
        s += "; @launch grid=(256,1,1) block=(576,1,1) lds=%d\n" % LDS_BYTES
        s += '.amdgcn_target "amdgcn-amd-amdhsa--gfx950"\n.text\n.globl %s\n.p2align 8\n.type %s,@function\n%s:\n' % (NAME, NAME, NAME)
        s += body
        s += "L_code_end:\n.set CODE_TAIL, L_code_end - F_init - 8\n.if CODE_TAIL < 16384\n.error \"code shorter than the prefetch window\"\n.endif\n"
        s += """.section .rodata,"a"
.p2align 6
.amdhsa_kernel %s
  .amdhsa_next_free_vgpr 168
  .amdhsa_next_free_sgpr 96
  .amdhsa_accum_offset 168
  .amdhsa_group_segment_fixed_size 0
  .amdhsa_kernarg_size 136
  .amdhsa_user_sgpr_count 2
  .amdhsa_user_sgpr_kernarg_segment_ptr 1
  .amdhsa_system_sgpr_workgroup_id_x 1
.end_amdhsa_kernel
""" % NAME
        return s


def merge_prop(a, b):
    out = []
    i = j = 0
    while i < len(a) or j < len(b):
        if j >= len(b) or (i < len(a) and i * len(b) <= j * len(a)):
            out.append(a[i]); i += 1
        else:
            out.append(b[j]); j += 1
    return out


if __name__ == "__main__":
    ap = argparse.ArgumentParser()
    ap.add_argument("out")
    ap.add_argument("--stamps", action="store_true")
    ap.add_argument("--dump", default="")
    a = ap.parse_args()
    ref = open("recurrent_scan__ssm_conv_s4__moe_arch_mod__prompt.s.ref").read().split("\n")
    header = "\n".join(l for l in ref if l.startswith(";") and "@launch" not in l and not l.startswith("; Override") and not l.startswith("; grid=")) + "\n"
    g = Gen(stamps=a.stamps, dump=set(a.dump.split(",")) if a.dump else None)
    open(a.out, "w").write(g.build(header))
    print("wrote", a.out, "pads", g.p.npad)
```

```python
import sys, math, struct, argparse
from asmlib import Prog, vr, sr, schedule

NAME = "recurrent_scan__ssm_conv_s4__moe_arch_mod__prompt_kernel"

WS_ST = 0x1000
WS_CHK = 0x8000
WS_FP = 0x28000
WS_DBG = 0x80000
WS_XD = 0x100000
WS_DUMP = 0x400000
WS_SPAN = 0x300000

REG = 16384
TROW = 272
LO0 = 21
KC1 = 4480
FOFF = 8960
YOFF = 8960
YT = 1280
ZIDX = 768
U0 = 65536
USTR = 5120
FLG = U0 + 4 * USTR
XR = FLG + 256
ON = XR + 1024
WGL = ON + 1024
WUL = WGL + 8192 + 128
TA0 = WUL + 8192
TASTR = 53 * TROW
LDS_BYTES = TA0 + 4 * TASTR

LOG2E = 1.4426950408889634
INV2PI = 0.15915494309189535
HK = [0x9E37F1B5, 0x7B45C2D3, 0x5A8D3EE9, 0xC3A5B671]
POLL_MAX = 4000
SPIN_MAX = 200000

S_X, S_ARE, S_AIM, S_BRE, S_BIM, S_CRE, S_CIM, S_LDT = 4, 6, 8, 10, 12, 14, 16, 18
S_DSK, S_WR, S_WG, S_WU, S_WD, S_OUT, S_WS = 20, 24, 26, 28, 30, 32, 36
S_EP, S_NONCE, S_WAVE, S_XCD, S_J, S_CQ, S_RHO = 38, 39, 40, 41, 42, 43, 44
S_HI = 56
S_HK = 72
S_STAMP = 76


def f2u(x):
    return struct.unpack("<I", struct.pack("<f", x))[0]


def hx(x):
    return "0x%08x" % (x & 0xFFFFFFFF)


def lanemask(f):
    m = 0
    for l in range(64):
        if f(l):
            m |= 1 << l
    return m


def setmask(reg, m):
    if reg in ("exec", "vcc"):
        return "s_mov_b32 %s_lo, %s\ns_mov_b32 %s_hi, %s" % (reg, hx(m), reg, hx(m >> 32))
    return "s_mov_b32 s%d, %s\ns_mov_b32 s%d, %s" % (reg, hx(m), reg + 1, hx(m >> 32))


def merge_prop(a, b):
    out = []
    i = j = 0
    while i < len(a) or j < len(b):
        if j >= len(b) or (i < len(a) and i * len(b) <= j * len(a)):
            out.append(a[i]); i += 1
        else:
            out.append(b[j]); j += 1
    return out


DPPF = "row_mask:0xf bank_mask:0xf"


class Gen:
    def __init__(self, stamps=False, dump=None, padto=0, opt=None):
        self.p = Prog()
        self.stamps = stamps
        self.dump = dump or set()
        self.padto = padto
        self.opt = opt or {}
        self.role = 0

    def stamp(self, i):
        if self.opt.get("ev") == self.role * 100 + i:
            self.p("s_memrealtime s[100:101]\ns_waitcnt lgkmcnt(0)")
        if self.stamps:
            self.p("s_memrealtime %s\ns_waitcnt lgkmcnt(0)" % sr(S_STAMP + 2 * i, 2))

    def stamp_flush(self):
        if self.opt.get("ev", -1) // 100 == self.role:
            self.p.label("EV_pad")
            self.p("s_memrealtime s[98:99]\ns_waitcnt lgkmcnt(0)\ns_sub_u32 s98, s98, s100\ns_cmp_lt_u32 s98, 2000\ns_cbranch_scc1 EV_pad")
        if not self.stamps:
            return
        p = self.p
        p("s_mov_b64 exec, -1")
        p("s_mul_i32 s47, s2, 9\ns_add_u32 s47, s47, s%d\ns_lshl_b32 s47, s47, 6\ns_add_u32 s47, s47, %d" % (S_WAVE, WS_DBG))
        p("v_mov_b32 v2, 0")
        for i in range(13):
            p("v_writelane_b32 v2, s%d, %d" % (S_STAMP + 2 * i, i))
        p("v_mbcnt_lo_u32_b32 v1, -1, 0\nv_mbcnt_hi_u32_b32 v1, -1, v1\nv_lshl_add_u32 v1, v1, 2, s47")
        p("s_mov_b64 exec, 0xffff")
        p("global_store_dword v1, v2, %s" % sr(S_WS, 2))
        p("s_mov_b64 exec, -1")

    def dump_lds(self, tag, lds_sgpr, nbytes, slot):
        if tag not in self.dump:
            return
        p = self.p
        p("s_waitcnt lgkmcnt(0)")
        p("s_lshl_b32 s49, s2, 3\ns_add_u32 s49, s49, %s\ns_lshl_b32 s49, s49, 14\ns_add_u32 s49, s49, %d" % (slot, WS_DUMP))
        p("v_lshl_add_u32 v1, v0, 4, %s" % lds_sgpr)
        p("v_lshl_add_u32 v2, v0, 4, s49")
        for o in range(0, nbytes, 1024):
            p("ds_read_b128 v[160:163], v1 offset:%d\ns_waitcnt lgkmcnt(0)" % o)
            p("global_store_dwordx4 v2, v[160:163], %s\nv_add_u32 v2, 1024, v2\ns_nop 1" % sr(S_WS, 2))
        p("s_waitcnt vmcnt(0)")

    def nonce(self):
        self.p("s_mul_i32 s%d, s%d, 0x9E3779B1\ns_add_u32 s%d, s%d, 1" % (S_NONCE, S_EP, S_NONCE, S_NONCE))

    def hk(self):
        for k in range(4):
            self.p("s_mov_b32 s%d, %s" % (S_HK + k, hx(HK[k])))

    def hash_ops(self, G, H, HI, ROT):
        L = ["v_dot2_u32_u16 %s, %s, s%d, %s" % (vr(H), vr(G + q), S_HK + q, vr(HI if q == 0 else H)) for q in range(4)]
        L.append("v_alignbit_b32 %s, %s, %s, %s" % (vr(H), vr(H), vr(H), vr(ROT)))
        for qp in ("[1,0,3,2]", "[2,3,0,1]"):
            L.append("v_add_u32_dpp %s, %s, %s quad_perm:%s %s" % (vr(H), vr(H), vr(H), qp, DPPF))
        return L

    def srd(self, d, ptr, size):
        self.p("s_mov_b32 s%d, s%d\ns_mov_b32 s%d, s%d\ns_mov_b32 s%d, %d\ns_mov_b32 s%d, 0x00020000" % (d, ptr, d + 1, ptr + 1, d + 2, size, d + 3))

    def spin(self, name, body, sres):
        p = self.p
        p("s_mov_b32 s57, %d" % SPIN_MAX)
        p.label(name + "_w")
        p(body)
        p("s_cmp_lg_u32 %s, 0\ns_cbranch_scc1 %s_g" % (sres, name))
        p("s_sleep 1\ns_sub_u32 s57, s57, 1\ns_cmp_lg_u32 s57, 0\ns_cbranch_scc1 %s_w" % name)
        p.label(name + "_g")

    def entry(self):
        p = self.p
        p("s_cmp_ge_u32 s2, 256\ns_cbranch_scc1 L_end")
        p("s_load_dwordx16 s[4:19], s[0:1], 0\ns_load_dwordx16 s[20:35], s[0:1], 64\ns_load_dwordx2 s[36:37], s[0:1], 128")
        if self.stamps:
            for i in range(13):
                p("s_mov_b32 s%d, 0" % (S_STAMP + 2 * i))
            p("s_memrealtime %s" % sr(S_STAMP, 2))
        p("v_lshrrev_b32 v1, 6, v0\nv_and_b32 v0, 63, v0\nv_readfirstlane_b32 s%d, v1" % S_WAVE)
        p("s_and_b32 s%d, s2, 7\ns_lshr_b32 s%d, s2, 3\ns_lshr_b32 s%d, s%d, 1\ns_lshl_b32 s45, s%d, 4\ns_add_u32 s%d, s%d, s45\ns_and_b32 s%d, s%d, 1"
          % (S_XCD, S_J, S_CQ, S_J, S_XCD, S_CQ, S_CQ, S_RHO, S_J))
        if self.opt.get("naive"):
            p("s_lshr_b32 s%d, s2, 1\ns_and_b32 s%d, s2, 1" % (S_CQ, S_RHO))
        p("s_add_u32 s46, s%d, 3\ns_and_b32 s46, s46, 3\ns_lshl_b32 s47, s2, 13" % S_WAVE)
        p("s_cmp_gt_u32 s%d, 4\ns_cbranch_scc1 A_init\ns_cmp_lg_u32 s%d, 0\ns_cbranch_scc1 C_init" % (S_WAVE, S_WAVE))
        if self.padto:
            p("s_memrealtime s[100:101]")
        p("s_setprio 3\ns_mov_b32 s48, 0x3f803f80\ns_mov_b32 s49, s48")
        p("v_and_b32 v1, 48, v0\nv_bfe_u32 v68, v0, 2, 2\nv_and_b32 v69, 1, v0\nv_lshl_add_u32 v68, v68, 1, v69\nv_lshl_add_u32 v69, v68, 10, v1\nv_add_u32 v69, s47, v69")
        for q in range(32):
            p("v_mov_b64 %s, s[48:49]" % vr(4 + 2 * q, 2))
        p(setmask(50, lanemask(lambda l: (l & 3) == 3)))
        p(setmask(52, lanemask(lambda l: (l & 3) != 2)))
        p(setmask("exec", lanemask(lambda l: (l & 2) == 0)))
        p("s_waitcnt lgkmcnt(0)")
        p("v_mov_b32 v3, s%d\nv_add_co_u32 v2, vcc, s%d, v69\nv_addc_co_u32 v3, vcc, 0, v3, vcc" % (S_X + 1, S_X))
        p("s_mov_b64 exec, s[50:51]")
        p("v_mov_b32 v3, s%d\nv_add_co_u32 v2, vcc, s%d, v1\nv_addc_co_u32 v3, vcc, 0, v3, vcc" % (S_WR + 1, S_WR))
        p("s_mov_b64 exec, s[52:53]")
        for ks in range(16):
            p("global_load_dwordx4 %s, v[2:3], off offset:%d" % (vr(4 + 4 * ks, 4), 64 * ks))
        p("s_mov_b64 exec, -1")
        p("s_load_dword s%d, %s, 0\ns_branch F_main" % (S_EP, sr(S_WS, 2)))
        p.label("C_init")
        p("s_setprio 1\ns_lshl_b32 s48, s46, 8\ns_add_u32 s47, s47, s48")
        p("v_and_b32 v1, 60, v0\nv_lshl_add_u32 v1, v1, 1, s47\nv_and_b32 v2, 3, v0\nv_lshl_add_u32 v1, v2, 11, v1")
        p("s_lshl_b32 s48, s%d, 2\ns_add_u32 s48, s48, s46\ns_lshl_b32 s48, s48, 8\nv_lshl_add_u32 v3, v0, 2, s48" % S_CQ)
        p("s_lshl_b32 s49, s%d, 3" % S_CQ)
        p("s_waitcnt lgkmcnt(0)")
        self.stamp(9)
        for S in range(2):
            for r in range(2):
                p("global_load_dwordx2 %s, v1, %s offset:%d" % (vr(96 + 4 * S + 2 * r, 2), sr(S_X, 2), 1024 * r + 128 * S))
        for i, s in enumerate((S_ARE, S_AIM, S_BRE, S_BIM, S_CRE, S_CIM)):
            p("global_load_dword %s, v3, %s" % (vr(4 + i), sr(s, 2)))
        p("s_load_dword s%d, %s, 0\ns_load_dwordx2 s[50:51], %s, s49\ns_load_dwordx2 s[58:59], %s, s49\ns_branch C_main" % (S_EP, sr(S_WS, 2), sr(S_LDT, 2), sr(S_DSK, 2)))
        p.label("A_init")
        p("s_getpc_b64 s[48:49]")
        p.label("A_pc")
        if not self.opt.get("nocode"):
            p("s_lshl_b32 s47, s46, 13\nv_lshl_add_u32 v1, v0, 7, s47\nv_min_u32 v1, L_code_end-A_pc-4, v1\nglobal_load_dword v10, v1, s[48:49]")
        p("s_lshl_b32 s48, s%d, 2\ns_add_u32 s48, s48, s46\ns_lshl_b32 s48, s48, 8\nv_lshl_add_u32 v3, v0, 2, s48" % S_CQ)
        p("s_lshl_b32 s49, s%d, 3" % S_CQ)
        p("s_waitcnt lgkmcnt(0)")
        for i, s in enumerate((S_ARE, S_AIM, S_BRE, S_BIM, S_CRE, S_CIM)):
            p("global_load_dword %s, v3, %s" % (vr(4 + i), sr(s, 2)))
        p("s_load_dwordx2 s[50:51], %s, s49\ns_branch A_main" % sr(S_LDT, 2))

    def dt_setup(self):
        p = self.p
        p("s_mov_b32 s64, %s\ns_mov_b32 s65, %s\ns_mov_b32 s66, %s\ns_mov_b32 s67, %s" % (hx(f2u(LOG2E)), hx(f2u(INV2PI)), hx(f2u(256 * LOG2E)), hx(f2u(256 * INV2PI))))
        p("s_lshl_b32 s47, s46, 4\ns_lshr_b64 s[50:51], s[50:51], s47\ns_lshl_b32 s50, s50, 16")
        p("v_mov_b32 v1, s50\nv_mul_f32 v1, s64, v1\nv_exp_f32 v1, v1\nv_cvt_pk_bf16_f32 v1, v1, v1\nv_and_b32 v1, s%d, v1\nv_readfirstlane_b32 s62, v1\nv_mov_b32 v35, 0x3f80" % S_HI)

    def cmul(self, d, x, y):
        return ["v_pk_mul_f32 %s, %s, %s op_sel:[0,0] op_sel_hi:[1,0]" % (vr(d, 2), vr(x, 2), vr(y, 2)),
                "v_pk_fma_f32 %s, %s, %s, %s op_sel:[1,1,0] op_sel_hi:[0,1,1] neg_lo:[1,0,0]" % (vr(d, 2), vr(x, 2), vr(y, 2), vr(d, 2))]

    def kgen_pass(self, h):
        PRM = 4
        Z1, Z8, ZW, ZR = 52, 54, 56, 58
        LR, WR_, PR, CR, T = 70, 74, 80, 84, 92
        un = (lambda d, s: "v_lshlrev_b32 %s, 16, %s" % (vr(d), vr(s))) if h == 0 else (lambda d, s: "v_and_b32 %s, s%d, %s" % (vr(d), S_HI, vr(s)))
        bc = "op_sel:[0,0] op_sel_hi:[1,0]"
        L = [un(T, PRM), un(T + 1, PRM + 1), "v_pk_mul_f32 %s, %s, s[62:63] %s" % (vr(T, 2), vr(T, 2), bc)]
        for z, sp, t in ((Z1, 64, PR), (ZW, 66, PR + 2)):
            L += ["v_pk_mul_f32 %s, %s, %s" % (vr(t, 2), vr(T, 2), sr(sp, 2)),
                  "v_exp_f32 %s, %s" % (vr(t), vr(t)),
                  "v_fract_f32 %s, %s" % (vr(t + 1), vr(t + 1)),
                  "v_cos_f32 %s, %s" % (vr(z), vr(t + 1)),
                  "v_sin_f32 %s, %s" % (vr(z + 1), vr(t + 1)),
                  "v_pk_mul_f32 %s, %s, %s %s" % (vr(z, 2), vr(z, 2), vr(t, 2), bc)]
        L += [un(LR + 2, PRM + 2), un(LR + 3, PRM + 3), un(T + 2, PRM + 4), un(T + 3, PRM + 5),
              "v_pk_mul_f32 %s, %s, s[62:63] %s" % (vr(LR + 2, 2), vr(LR + 2, 2), bc)]
        L += self.cmul(LR, LR + 2, T + 2)
        cnt = [0, 0]

        def put(row, z, conj=False):
            c = CR + 4 * int(conj) + cnt[int(conj)] % 4
            cnt[int(conj)] += 1
            return ["v_cvt_pk_bf16_f32 %s, %s, %s%s" % (vr(c), vr(z), "-" if conj else "", vr(z + 1)),
                    "ds_write_addtid_b32 %s offset:%d" % (vr(c), row * TROW)]
        zr = {1: Z1}
        for r in range(2, 8):
            zr[r] = ZR + 2 * (r - 2)
        L += self.cmul(zr[2], Z1, Z1) + self.cmul(zr[4], zr[2], zr[2]) + self.cmul(Z8, zr[4], zr[4])
        sL, sH = [], []
        for j in range(32):
            cur, nxt = LR + 2 * (j & 1), LR + 2 * ((j + 1) & 1)
            if j < 31:
                sL += self.cmul(nxt, cur, Z8)
            sL += put(LO0 + j, cur, True)
        sH += ["ds_write_addtid_b32 v35 offset:0"]
        sH += put(1, Z1) + put(2, zr[2]) + put(4, zr[4])
        for r, (a, b) in ((3, (2, 1)), (5, (4, 1)), (6, (4, 2)), (7, (4, 3))):
            sH += self.cmul(zr[r], zr[a], zr[b]) + put(r, zr[r])
        rows_for = {1: [(8, 0), (9, 2), (10, 4), (11, 6)], 2: [(12, 0), (13, 4)], 3: [(14, 0), (15, 4)]}
        for m in range(4, 9):
            rows_for[m] = [(12 + m, 0)]
        wreg = {1: ZW}
        pc = 0
        for m in range(1, 9):
            if m > 1:
                wreg[m] = WR_ + 2 * (m % 3)
                sH += self.cmul(wreg[m], wreg[m - 1], ZW)
            for row, r in rows_for[m]:
                if r == 0:
                    sH += put(row, wreg[m])
                else:
                    t = PR + 2 * (pc & 1)
                    pc += 1
                    sH += self.cmul(t, wreg[m], zr[r]) + put(row, t)
        return schedule(L + merge_prop(sH, sL), keep_ds_order=False)

    def role_C(self):
        self.role = 1
        p = self.p
        G0, G1, H0, H1, HI, ROT, VDA, VCA = 96, 100, 104, 105, 106, 107, 108, 109
        E, VA, VB, VTAB, VF, VYW, D = 10, 20, 21, 29, 30, 34, 36
        p.label("C_main")
        self.stamp(10)
        p("s_lshl_b32 s45, s46, 14\ns_mov_b32 m0, s45\ns_mov_b32 s%d, 0xffff0000" % S_HI)
        self.hk()
        p("v_mul_u32_u24 %s, 7, v2" % vr(ROT))
        p("s_lshl_b32 s47, s2, 13\ns_lshl_b32 s48, s46, 11\ns_add_u32 s47, s47, s48\ns_add_u32 s47, s47, %d\nv_lshl_add_u32 %s, v0, 4, s47" % (WS_XD, vr(VDA)))
        p("s_lshl_b32 s47, s2, 9\ns_lshl_b32 s48, s46, 7\ns_add_u32 s47, s47, s48\ns_add_u32 s47, s47, %d" % WS_CHK)
        p("v_and_or_b32 v1, v0, 60, s47\nv_lshl_add_u32 %s, v2, 6, v1" % vr(VCA))
        p("v_and_b32 v1, 15, v0\nv_lshrrev_b32 v2, 4, v0")
        p("s_add_u32 s47, s45, 64\ns_movk_i32 s52, %d\nv_and_b32 v3, 1, v0\nv_lshl_add_u32 %s, v2, 4, s47\nv_mad_u32_u24 %s, v3, s52, %s\nv_lshlrev_b32 v3, 2, v1\nv_sub_u32 %s, %s, v3"
          % (KC1 + 4, vr(VA), vr(VA), vr(VA), vr(VA), vr(VA)))
        p("s_add_u32 s47, s45, %d\ns_movk_i32 s52, 288\nv_lshl_add_u32 %s, v1, 4, s47\nv_mad_u32_u24 %s, v2, s52, %s" % (YOFF, vr(VYW), vr(VYW), vr(VYW)))
        p("s_mul_i32 s47, s46, %d\ns_add_u32 s47, s47, %d\nv_lshl_add_u32 v1, v1, 6, s47\nv_lshl_add_u32 v1, v2, 4, v1\nv_xor_b32 v2, 32, v1" % (USTR, U0 + 64))
        for kk in range(4):
            p(setmask(52, lanemask(lambda l: ((8 - kk + (l & 15)) >> 2) & 1)))
            p("v_cndmask_b32 %s, v1, v2, s[52:53]\nv_cndmask_b32 %s, v2, v1, s[52:53]" % (vr(VB + kk), vr(VB + kk + 4)))
        p("s_waitcnt lgkmcnt(0)")
        self.nonce()
        p("v_mov_b32 %s, s%d" % (vr(HI), S_NONCE))
        self.dt_setup()
        self.stamp(8)
        p("s_waitcnt vmcnt(8)")
        p("global_store_dwordx4 %s, %s, %s sc1" % (vr(VDA), vr(G0, 4), sr(S_WS, 2)))
        p("s_waitcnt vmcnt(7)")
        p("global_store_dwordx4 %s, %s, %s offset:1024 sc1" % (vr(VDA), vr(G1, 4), sr(S_WS, 2)))
        self.stamp(1)
        p("\n".join(schedule(self.hash_ops(G0, H0, HI, ROT) + self.hash_ops(G1, H1, HI, ROT))))
        p(setmask("vcc", lanemask(lambda l: (l & 3) == 1)))
        p("v_cndmask_b32 %s, %s, %s, vcc" % (vr(H0), vr(H0), vr(H1)))
        p(setmask("exec", lanemask(lambda l: (l & 2) == 0)))
        p("global_store_dword %s, %s, %s sc1" % (vr(VCA), vr(H0), sr(S_WS, 2)))
        p("s_mov_b64 exec, -1\ns_setprio 0")
        p("s_waitcnt vmcnt(3)")
        self.stamp(2)
        FR = 96
        p("v_and_b32 v1, 31, v0\nv_lshrrev_b32 v2, 5, v0")
        p("s_movk_i32 s52, %d\nv_lshl_add_u32 %s, v2, 4, s45\nv_mad_u32_u24 %s, v1, s52, %s" % (TROW, vr(VTAB), vr(VTAB), vr(VTAB)))
        p("\n".join(self.kgen_pass(0)))

        def tab_reads():
            for ks in range(8):
                p("ds_read_b128 %s, %s offset:%d" % (vr(FR + 8 * ks, 4), vr(VTAB), 32 * ks))
                p("ds_read_b128 %s, %s offset:%d" % (vr(FR + 8 * ks + 4, 4), vr(VTAB), LO0 * TROW + 32 * ks))

        def mf(h, ks):
            c = "0" if (h == 0 and ks == 0) else vr(D, 16)
            return "v_mfma_f32_32x32x16_bf16 %s, %s, %s, %s" % (vr(D, 16), vr(FR + 8 * ks, 4), vr(FR + 8 * ks + 4, 4), c)
        tab_reads()
        q0 = Prog()
        q0("s_add_u32 s48, s45, %d\ns_add_u32 s47, s%d, 2048\ns_sub_u32 s49, s48, %d" % (FOFF, S_RHO, 4 * 0x4280))
        q0("v_lshl_add_u32 %s, v2, 4, s48\nv_lshl_add_u32 %s, v1, 5, %s" % (vr(VF), vr(VF), vr(VF)))
        q0("s_movk_i32 s52, 248\nv_sub_u32 v3, 4, v2\nv_lshlrev_b32 v3, v3, v1\nv_lshl_add_u32 v35, v2, 9, s48\nv_add_u32 %s, v3, v35\nv_mad_u32_u24 %s, v2, s52, %s\nv_lshl_add_u32 %s, v1, 2, v35"
           % (vr(VF + 1), vr(VF + 2), vr(VF + 1), vr(VF + 3)))
        q0("v_lshlrev_b32 v1, 1, v0\nv_sub_u32 v1, s47, v1\nv_cvt_f32_u32 v1, v1")
        for n, k in enumerate((7, 11, 13)):
            q0("v_add_f32 v2, %s, v1\nv_add_f32 v3, %s, v1\nv_cvt_pk_bf16_f32 v2, v2, v3" % (hx(f2u(-128.0 * k)), hx(f2u(-128.0 * k - 1))))
            q0("v_mad_u32_u16 %s, v2, 4, s49\nv_mad_u32_u16 %s, v2, 4, s49 op_sel:[1,0,0,0]" % (vr(E + 2 * n), vr(E + 2 * n + 1)))
        q0("s_lshl_b32 s47, s%d, 2\ns_add_u32 s47, s47, s48\ns_add_u32 s52, s47, 508\ns_add_u32 s53, s48, 1024\ns_add_u32 s54, s48, %d" % (S_RHO, 4 * ZIDX))
        q0("v_lshlrev_b32 v1, 3, v0\nv_sub_u32 %s, s52, v1\nv_add_u32 v1, 516, %s\nv_min_u32 %s, s53, v1" % (vr(E + 6), vr(E + 6), vr(E + 7)))
        q0("s_cmp_eq_u32 s%d, 1\ns_cselect_b32 s55, s48, s54" % S_RHO)
        q0("v_mov_b32 %s, s54\nv_mov_b32 %s, s54\nv_writelane_b32 %s, s47, 0\nv_writelane_b32 %s, s55, 0" % (vr(E + 8), vr(E + 9), vr(E + 8), vr(E + 9)))
        q0("s_lshl_b32 s47, s46, 4\ns_lshr_b64 s[58:59], s[58:59], s47\ns_lshl_b32 s58, s58, 16\nv_mov_b32 v35, 0\nv_writelane_b32 v35, s58, 0")
        q0("s_mul_i32 s47, s46, %d\ns_add_u32 s47, s47, %d\ns_sub_u32 s47, s47, s45\nv_add_u32 %s, s47, %s" % (TASTR, TA0, vr(VTAB), vr(VTAB)))
        fill = q0.lines
        step = -(-len(fill) // 9)
        p("\n".join(fill[:step]))
        for ks in range(8):
            p("s_waitcnt lgkmcnt(%d)" % (14 - 2 * ks))
            p(mf(0, ks))
            p("\n".join(fill[(ks + 1) * step:(ks + 2) * step]))
        self.stamp(11)
        p("s_barrier")
        tab_reads()
        p("v_mov_b32 v1, 0\nv_mov_b32 v2, s54")
        for ks in range(8):
            p("s_waitcnt lgkmcnt(%d)" % (14 - 2 * ks))
            p(mf(1, ks))
        self.stamp(3)
        p("ds_write_b32 v2, v1")
        p("v_add_f32 %s, %s, v35" % (vr(D), vr(D)))
        p("ds_write_b64 %s, %s offset:1024\nds_write_b64 %s, %s offset:1032" % (vr(VF + 1), vr(D + 4, 2), vr(VF + 2), vr(D + 6, 2)))
        p("ds_write_b128 %s, %s" % (vr(VF), vr(D, 4)))
        for r in range(4):
            p("ds_write_b32 %s, %s offset:%d" % (vr(VF + 3), vr(D + 8 + r), 2048 + 128 * r))
        src = {}
        for k in range(8):
            src[k] = (E, 64 * (7 - k), E + 1, 64 * (7 - k))
        for k in range(8, 12):
            src[k] = (E + 2, 128 * (11 - k), E + 3, 128 * (11 - k))
        for k in range(12, 14):
            src[k] = (E + 4, 256 * (13 - k), E + 5, 256 * (13 - k))
        src[14] = (E + 7, 0, E + 6, 512)
        src[15] = (E + 6, 4, E + 6, 0)
        src[16] = (E + 8, 0, E + 9, 0)
        q = []

        def issue(line, tag=None):
            p(line)
            q.append(tag)

        def wait_for(tags):
            last = max(i for i, t in enumerate(q) if t in tags)
            n = len(q) - 1 - last
            p("s_waitcnt lgkmcnt(%d)" % min(n, 15))
        LA = 5
        order = list(range(16, -1, -1))

        def rd(k):
            a0, o0, a1, o1 = src[k]
            issue("ds_read_b32 %s, %s offset:%d" % (vr(96 + 2 * k), vr(a0), o0), ("e", k))
            issue("ds_read_b32 %s, %s offset:%d" % (vr(97 + 2 * k), vr(a1), o1), ("e", k))
        for k in order[:LA]:
            rd(k)
        for i, k in enumerate(order):
            wait_for({("e", k)})
            p("v_cvt_pk_bf16_f32 %s, %s, %s" % (vr(132 + k), vr(96 + 2 * k), vr(97 + 2 * k)))
            if i + LA < len(order):
                rd(order[i + LA])
            issue("ds_write_addtid_b32 %s offset:%d" % (vr(132 + k), 256 * k))
            issue("ds_write_addtid_b32 %s offset:%d" % (vr(132 + k), KC1 + 4 + 256 * k))
        self.dump_lds("K", "s45", 12288, "s46")
        ACC, BUF = 48, 64
        stages = [(k0, (0, 1), (0, 1, 2, 3)) for k0 in range(16)] + [(k0, (2, 3), (0, 1)) for k0 in range(16)]

        def areg(s, j):
            return BUF + 24 * (s % 3) + 4 * (j & 1)

        def breg(s, qq):
            return BUF + 24 * (s % 3) + 8 + 4 * qq

        def rdA(s, j):
            k0 = stages[s][0]
            o = 4032 - 64 * k0 - 1024 * j
            return [("ds_read_b64 %s, %s offset:%d" % (vr(areg(s, j), 2), vr(VA), o), s), ("ds_read_b64 %s, %s offset:%d" % (vr(areg(s, j) + 2, 2), vr(VA), o + 8), s)]

        def rdB(s, qq):
            k0 = stages[s][0]
            return [("ds_read_b128 %s, %s offset:%d" % (vr(breg(s, qq), 4), vr(VB + (k0 & 7)), 1024 * qq + 512 * (1 - (k0 >> 3)) + 448 - 64 * (k0 & 7)), s)]

        def reads(s):
            _, js, qs = stages[s]
            return rdA(s, js[0]) + sum((rdB(s, x) for x in qs), []) + rdA(s, js[1])
        for s in (0, 1):
            for l, t in rdA(s, 0) + rdA(s, 1):
                issue(l, t)
        p("s_lshl_b32 s47, s46, 2\ns_add_u32 s47, s47, %d\nv_mov_b32 v1, s47\nv_mov_b32 v2, 1\nv_mov_b32 v3, 2" % FLG)
        p("s_waitcnt lgkmcnt(0)")
        q.clear()
        self.stamp(4)
        p("s_barrier\ns_setprio %d" % self.opt.get("cprio", 2))
        self.stamp(5)
        for s in (0, 1):
            for x in range(4):
                for l, t in rdB(s, x):
                    issue(l, t)
        first = set()
        for s, (k0, js, qs) in enumerate(stages):
            nxt = reads(s + 2) if s + 2 < len(stages) else []
            wait_for({s})
            mm = [(j, x) for j in js for x in qs if j + x < 4]
            if s == 15:
                mm.sort(key=lambda a: (a[0] + a[1] > 1, a[0]))
            if s >= 16:
                mm = [(2, 1), (2, 0), (3, 0)]
            per = -(-len(nxt) // len(mm))
            for m, (j, x) in enumerate(mm):
                T = j + x
                c = vr(ACC + 4 * T, 4) if T in first else "0"
                first.add(T)
                p("v_mfma_f32_16x16x32_bf16 %s, %s, %s, %s" % (vr(ACC + 4 * T, 4), vr(areg(s, j), 4), vr(breg(s, x), 4), c))
                n = per if (s >= 14 or m == 0) else 1
                for _ in range(n):
                    if nxt:
                        issue(*nxt.pop(0))
            assert not nxt
            if s == 16:
                for T in range(2):
                    issue("ds_write_b128 %s, %s offset:%d" % (vr(VYW), vr(ACC + 4 * T, 4), YT * T))
                issue("ds_write_b32 v1, v2")
        self.stamp(6)
        for T in range(2, 4):
            p("ds_write_b128 %s, %s offset:%d" % (vr(VYW), vr(ACC + 4 * T, 4), YT * T))
        p("ds_write_b32 v1, v3")
        self.stamp(7)
        self.stamp_flush()
        p("s_endpgm")

    def role_A(self):
        self.role = 2
        p = self.p
        HI, ROT, VXD, VCK, VST, VU, VY, VO = 3, 136, 137, 138, 139, 140, 141, 142
        XD, ST, CK, XF, XN, PK, R = 4, 20, 36, 40, 72, 104, 108
        p.label("A_main")
        p("s_mov_b32 s%d, 0xffff0000\ns_mul_i32 s47, s46, %d\ns_add_u32 s47, s47, %d\ns_mov_b32 m0, s47" % (S_HI, TASTR, TA0))
        p("v_mov_b32 v12, 0\nv_mov_b32 v13, 0\nv_mov_b32 v14, 0\nv_mov_b32 v15, 0")
        p("s_mul_i32 s48, s46, %d\ns_add_u32 s48, s48, %d\nv_lshl_add_u32 v2, v0, 4, s48\nds_write_b128 v2, v[12:15]" % (USTR, U0))
        p("v_mov_b32 v2, %d\nds_write_b128 v2, v[12:15]\nds_write_b32 v2, v12 offset:16" % FLG)
        p("s_mul_i32 s52, s%d, 43\ns_add_u32 s53, s52, 43\ns_lshr_b32 s52, s52, 1\ns_lshr_b32 s53, s53, 1" % S_XCD)
        p("s_cmp_ge_u32 s46, 2\ns_cbranch_scc1 A_t1")
        p("s_lshl_b32 s47, s%d, 4\nv_lshrrev_b32 v1, 2, v0\nv_add_u32 v1, s47, v1\nv_mul_u32_u24 v1, 2752, v1" % S_J)
        p("s_lshl_b32 s47, s52, 4\ns_lshl_b32 s48, s53, 4\nv_add_u32 v2, s47, v1\nv_and_b32 v2, 0xffffff80, v2\nv_add_u32 v1, s48, v1")
        p("v_and_b32 v3, 3, v0\nv_lshl_add_u32 v3, v3, 7, v2\nv_cmp_lt_u32 vcc, v3, v1\nv_cndmask_b32 v11, v2, v3, vcc")
        p("s_cmp_eq_u32 s46, 0\ns_cselect_b32 s54, s%d, s%d\ns_cselect_b32 s55, s%d, s%d\ns_branch A_t3" % (S_WG, S_WU, S_WG + 1, S_WU + 1))
        p.label("A_t1")
        p("s_cmp_eq_u32 s46, 2\ns_cbranch_scc1 A_t2")
        p("v_lshlrev_b32 v11, 15, v0\ns_mov_b32 s54, s%d\ns_mov_b32 s55, s%d" % (S_OUT, S_OUT + 1))
        p("v_mov_b32 v12, 0x3f803f80\nv_mov_b32 v13, v12\nv_mov_b32 v14, v12\nv_mov_b32 v15, v12\nv_lshlrev_b32 v2, 4, v0\nv_add_u32 v2, %d, v2\nds_write_b128 v2, v[12:15]" % ON)
        p("s_branch A_t3")
        p.label("A_t2")
        p("s_mul_i32 s47, s%d, 43\nv_min_u32 v1, 42, v0\nv_add_u32 v1, s47, v1\ns_lshl_b32 s47, s52, 13\nv_lshl_add_u32 v1, v1, 7, s47\nv_min_u32 v11, %d, v1\ns_mov_b32 s54, s%d\ns_mov_b32 s55, s%d"
          % (S_J, 1376 * 1024 - 128, S_WD, S_WD + 1))
        p.label("A_t3")
        p("s_waitcnt lgkmcnt(0)")
        self.dt_setup()
        self.stamp(1)
        p("s_waitcnt vmcnt(0)")
        body = self.kgen_pass(1)
        cut = self.opt.get("pfat", 60)
        p("\n".join(body[:cut]))
        if not self.opt.get("nopf"):
            p("global_load_dword v10, v11, s[54:55]")
        p("\n".join(body[cut:]))
        self.stamp(12)
        self.hk()
        self.srd(64, S_OUT, 2097152)
        self.srd(68, S_WS, WS_SPAN)
        p("v_and_b32 v1, 3, v0\nv_lshrrev_b32 v2, 2, v0\ns_lshl_b32 s47, s46, 4\nv_add_u32 v2, s47, v2\nv_mul_u32_u24 %s, 7, v1" % vr(ROT))
        p("s_lshl_b32 s47, s%d, 6\ns_add_u32 s47, s47, %d\nv_lshl_add_u32 %s, v2, 13, s47\nv_lshl_add_u32 %s, v1, 4, %s" % (S_CQ, WS_XD, vr(VXD), vr(VXD), vr(VXD)))
        p("s_lshl_b32 s47, s%d, 2\ns_add_u32 s47, s47, %d\nv_lshl_add_u32 %s, v2, 9, s47" % (S_CQ, WS_CHK, vr(VCK)))
        p("s_lshl_b32 s47, s46, 10\ns_add_u32 s47, s47, %d\nv_lshl_add_u32 %s, v0, 4, s47" % (WS_ST, vr(VST)))
        for k in range(1, 4):
            p("s_mov_b32 s%d, %d\ns_mov_b32 s%d, %d\ns_mov_b32 s%d, %d" % (8 + k, k << 19, 12 + k, k << 15, 4 + k, k << 12))
        so = lambda b, k: "0" if k == 0 else "s%d" % (b + k)
        p("v_mov_b32 v104, %d\ns_mov_b32 s57, %d\ns_waitcnt lgkmcnt(0)\ns_barrier\ns_setprio 2" % (FLG, POLL_MAX))
        self.stamp(3)

        def poll_loads():
            for k in range(4):
                p("buffer_load_dwordx4 %s, %s, s[68:71], %s offen sc1" % (vr(XD + 4 * k, 4), vr(VXD), so(8, k)))
                p("buffer_load_dwordx4 %s, %s, s[68:71], %s offen sc1" % (vr(ST + 4 * k, 4), vr(VST), so(4, k)))
                p("buffer_load_dword %s, %s, s[68:71], %s offen sc1" % (vr(CK + k), vr(VCK), so(12, k)))
        poll_loads()
        p("ds_read_b32 %s, v104 offset:28" % vr(HI))
        p("s_lshl_b32 s47, s%d, 3\ns_lshl_b32 s48, s%d, 10\ns_add_u32 s47, s47, s48\nv_lshl_add_u32 %s, v2, 13, s47\nv_lshl_add_u32 %s, v1, 11, %s" % (S_CQ, S_RHO, vr(VO), vr(VO), vr(VO)))
        p("s_and_b32 s47, s46, 1\ns_lshl_b32 s47, s47, 5\ns_lshl_b32 s48, s46, 8\ns_add_u32 s48, s48, %d\nv_lshlrev_b32 v2, 2, v0\nv_xor_b32 v2, s47, v2\nv_add_u32 %s, s48, v2" % (U0 + 1024, vr(VU)))
        p("s_lshl_b32 s47, s46, 6\ns_add_u32 s47, s47, %d\ns_movk_i32 s48, 288\nv_lshl_add_u32 v2, v1, 2, s47\nv_and_b32 v1, 48, v0\nv_add_u32 v2, v1, v2\nv_bfe_u32 v1, v0, 2, 2\nv_mad_u32_u24 %s, v1, s48, v2" % (YOFF, vr(VY)))
        p("v_mov_b32 v1, %d\ns_waitcnt lgkmcnt(0)\nv_readfirstlane_b32 s%d, %s\ns_branch A_chk" % (FLG, S_NONCE, vr(HI)))
        p.label("A_poll")
        poll_loads()
        p.label("A_chk")
        p("s_mov_b64 s[58:59], 0")
        for k in range(4):
            p("s_waitcnt vmcnt(%d)" % (9 - 3 * k))
            if k in (0, 3):
                self.stamp(10 if k == 0 else 11)
            x, st, xf, xn, H = XD + 4 * k, ST + 4 * k, XF + 8 * k, XN + 8 * k, 112
            L = []
            for r in range(2):
                rr = R + 2 * r
                L += ["v_and_b32 %s, s%d, %s" % (vr(rr), S_HI, vr(st + r)), "v_lshlrev_b32 %s, 16, %s" % (vr(rr + 1), vr(st + r)),
                      "v_rcp_f32 %s, %s" % (vr(rr), vr(rr)), "v_mul_f32 %s, -%s, %s" % (vr(rr + 1), vr(rr + 1), vr(rr))]
                for hf in range(2):
                    a = xf + 4 * r + 2 * hf
                    L += ["v_lshlrev_b32 %s, 16, %s" % (vr(a), vr(x + 2 * r + hf)), "v_and_b32 %s, s%d, %s" % (vr(a + 1), S_HI, vr(x + 2 * r + hf)),
                          "v_pk_fma_f32 %s, %s, %s, %s op_sel:[0,0,1] op_sel_hi:[1,0,1]" % (vr(xn + 4 * r + 2 * hf, 2), vr(a, 2), vr(rr, 2), vr(rr, 2))]
            for c in range(4):
                L.append("v_cvt_pk_bf16_f32 %s, %s, %s" % (vr(PK + c), vr(xn + c), vr(xn + 4 + c)))
            for c in (0, 2):
                L.append("ds_write2st64_b32 %s, %s, %s offset0:%d offset1:%d" % (vr(VU), vr(PK + c), vr(PK + c + 1), 4 * k + 20 * c, 4 * k + 20 * (c + 1)))
            L += self.hash_ops(x, H, HI, ROT)
            L += ["v_cmp_ne_u32 s[48:49], s%d, %s" % (S_NONCE, vr(st + 3)), "s_or_b64 s[58:59], s[58:59], s[48:49]",
                  "v_cmp_ne_u32 s[50:51], %s, %s" % (vr(H), vr(CK + k)), "s_or_b64 s[58:59], s[58:59], s[50:51]"]
            p("\n".join(schedule(L)))
        p("s_cmp_eq_u64 s[58:59], 0\ns_cbranch_scc1 A_ready\ns_sub_u32 s57, s57, 1\ns_cmp_lg_u32 s57, 0\ns_cbranch_scc1 A_poll")
        p.label("A_ready")
        if self.stamps:
            p("s_sub_u32 s%d, %d, s57" % (S_STAMP + 18, POLL_MAX + 1))
        p("s_waitcnt lgkmcnt(0)")
        self.stamp(4)
        p("s_barrier\ns_setprio 0")
        if "U" in self.dump:
            p("s_mul_i32 s48, s46, %d\ns_add_u32 s48, s48, %d\ns_add_u32 s47, s46, 4" % (USTR, U0))
            self.dump_lds("U", "s48", 5120, "s47")
            p("v_mov_b32 v1, %d" % FLG)
        GG, BB, YY = 4, 20, 116
        p("s_cmp_eq_u32 s%d, 1\ns_cbranch_scc1 A_pre1" % S_RHO)
        for rho in range(2):
            if rho:
                p.label("A_pre1")
            L = []
            for i in range(16):
                k, c = i >> 2, i & 3
                x, xn, g, t = XF + 8 * k + 4 * rho + c, XN + 8 * k + 4 * rho + c, GG + i, 104 + (i % 8)
                L += ["v_mul_f32 %s, %s, %s" % (vr(t), hx(f2u(-LOG2E)), vr(xn)), "v_exp_f32 %s, %s" % (vr(t), vr(t)),
                      "v_add_f32 %s, 1.0, %s" % (vr(t), vr(t)), "v_rcp_f32 %s, %s" % (vr(t), vr(t)),
                      "v_mul_f32 %s, %s, %s" % (vr(g), vr(xn), vr(t))]
                if rho:
                    L.append("v_mov_b32 %s, %s" % (vr(x - 4), vr(x)))
            p("\n".join(schedule(L)))
            if rho == 0:
                p("s_branch A_pre2")
        p.label("A_pre2")
        self.stamp(5)
        self.spin("A_sel", "ds_read_b32 v2, v1 offset:16\ns_waitcnt lgkmcnt(0)\nv_readfirstlane_b32 s47, v2", "s47")
        p("s_sub_u32 s47, s47, 1\ns_lshl_b32 s47, s47, 10\ns_lshl_b32 s48, s%d, 3\ns_add_u32 s47, s47, s48\nv_mov_b32 v3, 0x7ffffff0" % S_CQ)
        for k in (3, 2, 1, 0):
            p("s_sub_u32 s48, s47, %d\nv_cmp_ne_u32 vcc, s48, %s\nv_cndmask_b32 %s, v3, %s, vcc" % (k << 19, vr(VO), vr(VO + k), vr(VO)))
        for half in range(2):
            body = "ds_read_b128 v[104:107], v1\ns_waitcnt lgkmcnt(0)\nv_min3_u32 v104, v104, v105, v106\nv_min_u32 v104, v104, v107\nv_readfirstlane_b32 s47, v104"
            if half:
                body += "\ns_lshr_b32 s47, s47, 1"
            self.spin("A_y%d" % half, body, "s47")
            p("s_setprio 3")
            self.stamp(6 if half else 2)
            ks = (2 * half, 2 * half + 1)
            for k in ks:
                for c in (0, 2):
                    p("ds_read2st64_b32 %s, %s offset0:%d offset1:%d" % (vr(YY + 4 * k + c, 2), vr(VY), 5 * k + 64 * c, 5 * k + 64 * (c + 1)))
            for n, k in enumerate(ks):
                p("s_waitcnt lgkmcnt(%d)" % (2 - 2 * n))
                y = YY + 4 * k
                for c in range(4):
                    p("v_fma_f32 %s, %s, %s, %s" % (vr(y + c), vr(y + c), vr(GG + 4 * k + c), vr(XF + 8 * k + c)))
                p("v_cvt_pk_bf16_f32 %s, %s, %s\nv_cvt_pk_bf16_f32 %s, %s, %s" % (vr(y), vr(y), vr(y + 1), vr(y + 1), vr(y + 2), vr(y + 3)))
                p("buffer_store_dwordx2 %s, %s, s[64:67], %s offen" % (vr(y, 2), vr(VO + k), so(8, k)))
            p("s_setprio 0")
        self.stamp(7)
        if self.stamps or self.opt.get("ev"):
            p("s_waitcnt vmcnt(0)")
        self.stamp(8)
        self.stamp_flush()
        p("s_endpgm")

    def role_F(self):
        self.role = 3
        p = self.p
        D, IDX, VSTA, VKEY = 72, 70, 71, 76
        p.label("F_main")
        p("s_mov_b32 s%d, 0xffff0000" % S_HI)
        p("s_lshl_b32 s47, s2, 3\ns_sub_u32 s47, 0xffff, s47\nv_sub_u32 %s, s47, v68" % vr(IDX))
        p("s_lshl_b32 s47, s2, 6\ns_add_u32 s47, s47, %d\nv_and_b32 v1, 48, v0\nv_add_u32 %s, s47, v1" % (WS_ST, vr(VSTA)))
        p("v_lshlrev_b32 %s, 6, v0\nv_add_u32 %s, %d, %s" % (vr(VKEY), vr(VKEY), WS_ST + 8, vr(VKEY)))
        self.srd(68, S_WS, WS_SPAN)
        p(setmask(52, lanemask(lambda l: l & 1)))
        p("s_waitcnt lgkmcnt(0)")
        self.nonce()
        p("v_mov_b32 v83, s%d\nv_mov_b32 v77, %d" % (S_NONCE, FLG))
        for ks in range(16):
            if ks % 2 == 0:
                p("s_waitcnt vmcnt(%d)" % (14 - ks))
            if ks == 0:
                self.stamp(1)
            p("v_mfma_f32_16x16x32_bf16 %s, %s, %s, %s" % (vr(D, 4), vr(4 + 4 * ks, 4), vr(4 + 4 * ks, 4), "0" if ks == 0 else vr(D, 4)))
        self.stamp(9)
        MEAN, VAR, TW, t, u, MS, KEY = 4, 5, 6, 7, 8, 80, 82
        rb = lambda r: ["v_cvt_pk_bf16_f32 %s, %s, %s" % (vr(r), vr(r), vr(r)), "v_and_b32 %s, s%d, %s" % (vr(r), S_HI, vr(r))]
        L = ["v_cndmask_b32 %s, %s, %s, s[52:53]" % (vr(VAR), vr(D), vr(D + 1)),
             "v_mul_f32 %s, %s, %s" % (vr(MEAN), hx(f2u(1 / 512)), vr(D + 2)),
             "v_mov_b32_dpp %s, %s quad_perm:[3,3,3,3] %s" % (vr(TW), vr(D + 2), DPPF),
             "v_mul_f32 %s, %s, %s" % (vr(t), vr(MEAN), vr(MEAN)),
             "v_mul_f32 %s, %s, %s" % (vr(VAR), hx(f2u(1 / 512)), vr(VAR)),
             "v_sub_f32 %s, %s, %s" % (vr(VAR), vr(VAR), vr(t)),
             "v_max_f32 %s, 0, %s" % (vr(VAR), vr(VAR))]
        L += rb(VAR) + ["v_add_f32 %s, %s, %s" % (vr(VAR), hx(f2u(1e-5)), vr(VAR))] + rb(VAR)
        L += ["v_sqrt_f32 %s, %s" % (vr(VAR), vr(VAR)),
              "v_cvt_pk_bf16_f32 %s, %s, %s" % (vr(MS), vr(MEAN), vr(VAR)),
              "v_and_b32 %s, s%d, %s" % (vr(u), S_HI, vr(MS)),
              "v_lshlrev_b32 %s, 16, %s" % (vr(t), vr(MS)),
              "v_rcp_f32 %s, %s" % (vr(u), vr(u)),
              "v_fma_f32 %s, -%s, %s, %s" % (vr(t), vr(t), vr(TW), vr(D + 3)),
              "v_mov_b32_dpp %s, %s quad_perm:[1,1,1,1] %s" % (vr(MS + 1), vr(MS), DPPF),
              "v_mul_f32 %s, %s, %s" % (vr(t), vr(t), vr(u)),
              "v_cvt_pk_bf16_f32 %s, %s, %s" % (vr(t), vr(t), vr(t)),
              "v_ashrrev_i32 %s, 31, %s" % (vr(u), vr(t)),
              "v_or_b32 %s, 0x80000000, %s" % (vr(u), vr(u)),
              "v_xor_b32 %s, %s, %s" % (vr(t), vr(t), vr(u)),
              "v_and_or_b32 %s, %s, s%d, %s" % (vr(KEY), vr(t), S_HI, vr(IDX)),
              "v_max_u32_dpp %s, %s, %s quad_perm:[1,0,3,2] %s" % (vr(KEY), vr(KEY), vr(KEY), DPPF)]
        L += ["v_readlane_b32 s%d, %s, %d" % (47 + G, vr(KEY), 20 * G) for G in range(4)]
        L += ["s_max_u32 s47, s47, s48", "s_max_u32 s49, s49, s50", "s_max_u32 s47, s47, s49", "v_mov_b32 %s, s47" % vr(KEY)]
        p("\n".join(schedule(L)))
        p(setmask("exec", lanemask(lambda l: l in (0, 20, 40, 60))))
        p("buffer_store_dwordx4 v[80:83], %s, s[68:71], 0 offen sc1" % vr(VSTA))
        p("s_mov_b64 exec, -1")
        self.stamp(2)
        WD_, VW, VWD, VTR, VXB, VQ, SG, XQ, DQ, AC = 4, 84, 85, 87, 88, 89, 90, 92, 93, 96
        p("s_mul_i32 s50, s%d, 43\ns_add_u32 s51, s50, 43\ns_lshr_b32 s50, s50, 1\ns_lshr_b32 s51, s51, 1\ns_add_u32 s52, s50, s%d\ns_min_u32 s53, s52, 171" % (S_XCD, S_J))
        p("v_and_b32 v1, 35, v0\nv_bfe_u32 v2, v0, 2, 2\nv_lshl_add_u32 v1, v2, 3, v1\nv_bfe_u32 v2, v0, 4, 1\nv_lshl_add_u32 v1, v2, 2, v1\nv_mul_u32_u24 v1, 2752, v1\ns_lshl_b32 s47, s53, 4\nv_add_u32 %s, s47, v1" % vr(VW))
        p("s_lshl_b32 s47, s53, 13\nv_lshl_add_u32 %s, v0, 4, s47\nv_add_u32 %s, 4096, %s" % (vr(VWD), vr(VWD + 1), vr(VWD)))
        p("v_and_b32 v1, 60, v0\nv_lshlrev_b32 v1, 2, v1\nv_and_b32 v2, 1, v0\nv_lshl_add_u32 v1, v2, 3, v1\nv_bfe_u32 v2, v0, 1, 1\ns_movk_i32 s47, %d\nv_mad_u32_u24 v1, v2, s47, v1\nv_add_u32 %s, %d, v1" % (WUL - WGL, vr(VTR), WGL))
        p("v_and_b32 v1, 15, v0\nv_cmp_eq_u32 vcc, 1, v1\nv_mov_b32 v1, %d\nv_mov_b32 v2, %d\nv_cndmask_b32 v1, v1, v2, vcc\nv_and_b32 v2, 48, v0\nv_add_u32 %s, v1, v2" % (XR, ON, vr(VXB)))
        p("v_lshrrev_b32 v1, 4, v0\ns_lshl_b32 s47, s%d, 3\nv_lshl_add_u32 %s, v1, 1, s47" % (S_CQ, vr(VQ)))
        self.srd(60, S_WG, 512 * 2752)
        self.srd(64, S_WU, 512 * 2752)
        p("s_movk_i32 s58, 0x1000\ns_movk_i32 s59, 0x2000\ns_movk_i32 s46, 0x3000\ns_mov_b32 s57, %d" % POLL_MAX)
        p("ds_write_b32 v77, v83 offset:28\ns_waitcnt vmcnt(0) lgkmcnt(0)")
        self.stamp(11)
        p("s_barrier")
        self.stamp(3)
        p.label("F_kpoll")
        for i, so in enumerate(("0", "s58", "s59", "s46")):
            p("buffer_load_dwordx2 %s, %s, s[68:71], %s offen sc1" % (vr(4 + 2 * i, 2), vr(VKEY), so))
        p("s_waitcnt vmcnt(0)")
        p("v_xor_b32 v5, v83, v5\nv_xor_b32 v7, v83, v7\nv_xor_b32 v9, v83, v9\nv_xor_b32 v11, v83, v11\nv_or3_b32 v5, v5, v7, v9\nv_or_b32 v5, v5, v11\nv_cmp_ne_u32 vcc, 0, v5")
        p("v_max3_u32 v4, v4, v6, v8\nv_max_u32 v4, v4, v10")
        p("s_cmp_eq_u64 vcc, 0\ns_cbranch_scc1 F_kgot\ns_sub_u32 s57, s57, 1\ns_cmp_lg_u32 s57, 0\ns_cbranch_scc1 F_kpoll")
        p.label("F_kgot")
        for n in (8, 4, 2, 1):
            p("v_max_u32_dpp v4, v4, v4 row_ror:%d %s" % (n, DPPF))
        p("v_readlane_b32 s47, v4, 0\nv_readlane_b32 s48, v4, 16\nv_readlane_b32 s49, v4, 32\nv_readlane_b32 s54, v4, 48")
        p("s_max_u32 s47, s47, s48\ns_max_u32 s49, s49, s54\ns_max_u32 s55, s47, s49")
        p("s_and_b32 s47, s55, 0xffff\ns_sub_u32 s54, 0xffff, s47\ns_and_b32 s54, s54, 2047")
        p("s_lshl_b32 s47, s54, 10\nv_lshl_add_u32 v1, v0, 4, s47\ns_mov_b32 m0, %d\nv_add_u32 %s, s47, %s\nglobal_load_lds_dwordx4 v1, %s" % (XR, vr(VQ), vr(VQ), sr(S_X, 2)))
        p("s_lshr_b32 s48, s54, 1\ns_lshl_b32 s48, s48, 4\ns_add_u32 s48, s48, %d\nv_mov_b32 v2, s48\nbuffer_load_dwordx2 %s, v2, s[68:71], 0 offen sc1" % (WS_ST, vr(SG, 2)))
        p("global_load_ushort %s, %s, %s" % (vr(XQ), vr(VQ), sr(S_X, 2)))
        p("s_add_u32 s47, s54, 1\nv_mov_b32 v2, s47\nds_write_b32 v77, v2 offset:16")
        self.stamp(4)
        p("s_barrier\ns_setprio %d" % self.opt.get("fprio", 3))
        p("s_cmp_lg_u32 s2, 0\ns_cbranch_scc1 F_noep\nv_mov_b32 v1, 0\nglobal_store_dword v1, v83, %s" % sr(S_WS, 2))
        p.label("F_noep")
        p("s_cmp_ge_u32 s52, s51\ns_cbranch_scc1 F_nounit")
        p("s_mov_b32 s47, 0")
        for i in range(8):
            for srd, base in ((60, WGL), (64, WUL)):
                p("s_mov_b32 m0, %d\ns_nop 0\nbuffer_load_dwordx4 %s, %s, s47 offen lds" % (base + 1024 * i, vr(VW), sr(srd, 4)))
            if i < 7:
                p("s_add_u32 s47, s47, %d" % (64 * 2752))
        for m in range(8):
            p("global_load_dwordx4 %s, %s, %s offset:%d" % (vr(WD_ + 4 * m, 4), vr(VWD + (m >> 2)), sr(S_WD, 2), 1024 * (m & 3)))
        self.stamp(10)
        p("s_waitcnt vmcnt(24)")
        self.sel_stats(SG)
        TA, TB = 40, 104
        for i in range(8):
            p("s_waitcnt vmcnt(%d)" % (22 - 2 * i))
            for s in (2 * i, 2 * i + 1):
                a, b = TA + 4 * (s & 3), TB + 4 * (s & 3)
                o = 1024 * (s >> 1) + 512 * (s & 1)
                p("ds_read_b64_tr_b16 %s, %s offset:%d\nds_read_b64_tr_b16 %s, %s offset:%d\nds_read_b128 %s, %s offset:%d"
                  % (vr(a, 2), vr(VTR), o, vr(a + 2, 2), vr(VTR), o + 256, vr(b, 4), vr(VXB), 64 * s))
            if i > 0:
                p("s_waitcnt lgkmcnt(6)")
                for s in (2 * i - 2, 2 * i - 1):
                    p("v_mfma_f32_16x16x32_bf16 %s, %s, %s, %s" % (vr(D, 4), vr(TA + 4 * (s & 3), 4), vr(TB + 4 * (s & 3), 4), "0" if s == 0 else vr(D, 4)))
        p("s_waitcnt lgkmcnt(0)")
        for s in (14, 15):
            p("v_mfma_f32_16x16x32_bf16 %s, %s, %s, %s" % (vr(D, 4), vr(TA + 4 * (s & 3), 4), vr(TB + 4 * (s & 3), 4), vr(D, 4)))
        p("s_mov_b32 s58, 0x05040100\ns_mov_b32 s59, 0x07060302\ns_waitcnt vmcnt(0)")
        self.stamp(5)
        PW = 104
        Lp = []
        for pr in range(4):
            for qd in range(4):
                a, b = WD_ + 8 * pr + qd, WD_ + 8 * pr + 4 + qd
                for hf in range(2):
                    Lp.append("v_perm_b32 %s, %s, %s, s%d" % (vr(PW + 8 * pr + 2 * qd + hf), vr(b), vr(a), 58 + hf))
        L = []
        for r in range(4):
            L += ["v_fmac_f32_dpp %s, %s, v94 row_shl:1 %s" % (vr(D + r), vr(D + r), DPPF), "v_mul_f32 %s, %s, v95" % (vr(D + r), vr(D + r))]
        L += ["v_cvt_pk_bf16_f32 v40, %s, %s" % (vr(D), vr(D + 1)), "v_cvt_pk_bf16_f32 v41, %s, %s" % (vr(D + 2), vr(D + 3)),
              "v_permlane32_swap_b32 v40, v42", "v_permlane32_swap_b32 v41, v43"]
        g, u, t = 44, 48, 52
        for q2 in range(2):
            L += ["v_lshlrev_b32 %s, 16, %s" % (vr(g + 2 * q2), vr(40 + q2)), "v_and_b32 %s, s%d, %s" % (vr(g + 2 * q2 + 1), S_HI, vr(40 + q2)),
                  "v_lshlrev_b32 %s, 16, %s" % (vr(u + 2 * q2), vr(42 + q2)), "v_and_b32 %s, s%d, %s" % (vr(u + 2 * q2 + 1), S_HI, vr(42 + q2))]
        for r in range(4):
            L += ["v_mul_f32 %s, %s, %s" % (vr(t + r), hx(f2u(-LOG2E)), vr(g + r)), "v_exp_f32 %s, %s" % (vr(t + r), vr(t + r)), "v_add_f32 %s, 1.0, %s" % (vr(t + r), vr(t + r)),
                  "v_rcp_f32 %s, %s" % (vr(t + r), vr(t + r)), "v_mul_f32 %s, %s, %s" % (vr(g + r), vr(g + r), vr(t + r))]
        for q2 in range(2):
            L += ["v_cvt_pk_bf16_f32 %s, %s, %s" % (vr(40 + q2), vr(g + 2 * q2), vr(g + 2 * q2 + 1)),
                  "v_lshlrev_b32 %s, 16, %s" % (vr(g + 2 * q2), vr(40 + q2)), "v_and_b32 %s, s%d, %s" % (vr(g + 2 * q2 + 1), S_HI, vr(40 + q2)),
                  "v_pk_mul_f32 %s, %s, %s" % (vr(g + 2 * q2, 2), vr(g + 2 * q2, 2), vr(u + 2 * q2, 2)),
                  "v_cvt_pk_bf16_f32 %s, %s, %s" % (vr(40 + q2), vr(g + 2 * q2), vr(g + 2 * q2 + 1))]
        L += ["v_readlane_b32 s%d, %s, %d" % (60 + pr, vr(40 + (pr & 1)), 16 * (pr >> 1)) for pr in range(4)]
        for pr in range(4):
            for e in range(8):
                L.append("v_dot2_f32_bf16 %s, %s, s%d, %s" % (vr(AC + e), vr(PW + 8 * pr + e), 60 + pr, "0" if pr == 0 else vr(AC + e)))
        for i in range(4):
            L.append("s_mov_b32 s%d, 0x%08x" % (64 + i, 0x07060500 + i))
        for e in range(8):
            L.append("v_perm_b32 %s, %s, v83, s%d" % (vr(AC + e), vr(AC + e), 64 + (e & 3)))
        L += ["s_lshl_b32 s47, s52, 11", "s_add_u32 s47, s47, %d" % WS_FP, "v_lshl_add_u32 v1, v0, 4, s47"]
        p("\n".join(schedule(Lp + L)))
        p("buffer_store_dwordx4 %s, v1, s[68:71], 0 offen sc1\nbuffer_store_dwordx4 %s, v1, s[68:71], 0 offen offset:1024 sc1" % (vr(AC, 4), vr(AC + 4, 4)))
        p("s_branch F_row")
        p.label("F_nounit")
        p("s_waitcnt vmcnt(0)")
        self.sel_stats(SG)
        p.label("F_row")
        self.stamp(6)
        p("s_and_b32 s47, s54, 1\ns_cmp_lg_u32 s47, s%d\ns_cbranch_scc1 F_done" % S_RHO)
        rbs = lambda r: "v_cvt_pk_bf16_f32 %s, %s, %s\nv_and_b32 %s, s%d, %s" % (r, r, r, r, S_HI, r)
        p("v_lshlrev_b32 %s, 16, %s" % (vr(XQ), vr(XQ)))
        p("v_add_f32 v4, %s, v94\n%s\nv_mul_f32 v4, v4, v95\n%s" % (vr(XQ), rbs("v4"), rbs("v4")))
        p("s_ashr_i32 s47, s55, 31\ns_not_b32 s47, s47\ns_or_b32 s47, s47, 0x80000000\ns_xor_b32 s47, s47, s55\ns_and_b32 s47, s47, 0xffff0000")
        p("v_mov_b32 v5, s47\nv_mul_f32 v5, %s, v5\nv_exp_f32 v5, v5\nv_add_f32 v5, 1.0, v5\nv_rcp_f32 v5, v5\n%s" % (hx(f2u(-LOG2E)), rbs("v5")))
        p("s_lshr_b32 s47, s54, 9\ns_mul_i32 s47, s47, %d\ns_bfe_u32 s48, s54, 0x20003\ns_mul_i32 s48, s48, 288\ns_add_u32 s47, s47, s48" % YT)
        p("s_bfe_u32 s48, s54, 0x40005\ns_lshl_b32 s48, s48, 4\ns_add_u32 s47, s47, s48\ns_bfe_u32 s48, s54, 0x20001\ns_lshl_b32 s48, s48, 2\ns_add_u32 s47, s47, s48\ns_add_u32 s47, s47, %d" % YOFF)
        p("v_lshrrev_b32 v6, 4, v0\nv_lshl_add_u32 v6, v6, 14, s47")
        p("s_and_b32 s47, s%d, 1\ns_lshl_b32 s47, s47, 10\ns_lshr_b32 s48, s%d, 1\ns_lshl_b32 s48, s48, 4\ns_add_u32 s47, s47, s48\ns_add_u32 s47, s47, %d" % (S_CQ, S_CQ, WS_FP))
        p("v_lshl_add_u32 v7, v0, 11, s47\nv_add_u32 v8, 0x20000, v7\nv_min_u32 v9, 43, v0\nv_lshl_add_u32 v9, v9, 11, s47\nv_add_u32 v9, 0x40000, v9")
        p("s_mov_b32 s57, %d\ns_mov_b32 s58, 0x0c0c0400\ns_mov_b32 s59, 0x04000c0c" % POLL_MAX)
        p("s_waitcnt vmcnt(0)")
        p.label("F_poll")
        for i in range(3):
            p("buffer_load_dwordx4 %s, %s, s[68:71], 0 offen sc1" % (vr(12 + 4 * i, 4), vr(7 + i)))
        p("s_mov_b64 s[60:61], 0\ns_waitcnt vmcnt(0)")
        for i in range(3):
            b = 12 + 4 * i
            p("v_perm_b32 v24, %s, %s, s58\nv_perm_b32 v25, %s, %s, s59\nv_or_b32 v24, v24, v25\nv_cmp_ne_u32 vcc, s%d, v24\ns_or_b64 s[60:61], s[60:61], vcc"
              % (vr(b + 1), vr(b), vr(b + 3), vr(b + 2), S_NONCE))
        p("s_cmp_eq_u64 s[60:61], 0\ns_cbranch_scc1 F_got\ns_sub_u32 s57, s57, 1\ns_cmp_lg_u32 s57, 0\ns_cbranch_scc1 F_poll")
        p.label("F_got")
        self.stamp(7)
        p("v_pk_add_f32 v[12:13], v[12:13], v[16:17]\nv_pk_add_f32 v[14:15], v[14:15], v[18:19]")
        p("s_mov_b32 exec_lo, -1\ns_mov_b32 exec_hi, 0xfff")
        p("v_pk_add_f32 v[12:13], v[12:13], v[20:21]\nv_pk_add_f32 v[14:15], v[14:15], v[22:23]")
        p("s_mov_b64 exec, -1\ns_nop 1")
        p("v_permlane32_swap_b32 v12, v14\nv_permlane32_swap_b32 v13, v15\nv_add_f32 v12, v12, v14\nv_add_f32 v13, v13, v15\nv_permlane16_swap_b32 v12, v13\nv_add_f32 v12, v12, v13")
        for n in (8, 4, 2, 1):
            p("v_add_f32_dpp v12, v12, v12 row_ror:%d %s" % (n, DPPF))
        p(rbs("v12") + "\nv_mul_f32 v12, v12, v5\n" + rbs("v12") + "\nv_add_f32 v12, v12, v4\n" + rbs("v12"))
        p("v_mul_f32 v13, %s, v12\nv_exp_f32 v13, v13\nv_add_f32 v13, 1.0, v13\nv_rcp_f32 v13, v13\nv_mul_f32 v12, v12, v13\n%s" % (hx(f2u(-LOG2E)), rbs("v12")))
        self.spin("F_y", "ds_read_b128 v[16:19], v77\ns_waitcnt lgkmcnt(0)\nv_min3_u32 v16, v16, v17, v18\nv_min_u32 v16, v16, v19\nv_readfirstlane_b32 s47, v16\ns_lshr_b32 s47, s47, 1", "s47")
        p("ds_read_b32 v13, v6\ns_waitcnt lgkmcnt(0)")
        p(rbs("v13") + "\nv_mul_f32 v13, v13, v12\n" + rbs("v13") + "\nv_add_f32 v13, v13, %s\nv_cvt_pk_bf16_f32 v13, v13, v13" % vr(XQ))
        p("s_mov_b32 exec_lo, 0x00010001\ns_mov_b32 exec_hi, 0x00010001")
        p("global_store_short %s, v13, %s" % (vr(VQ), sr(S_OUT, 2)))
        p.label("F_done")
        if self.padto:
            p.label("F_pad")
            p("s_memrealtime s[98:99]\ns_waitcnt lgkmcnt(0)\ns_sub_u32 s98, s98, s100\ns_cmp_lt_u32 s98, %d\ns_cbranch_scc1 F_pad" % self.padto)
        self.stamp(8)
        self.stamp_flush()
        p.label("L_end")
        p("s_endpgm")

    def sel_stats(self, SG):
        p = self.p
        p("s_and_b32 s47, s54, 1\ns_cmp_eq_u32 s47, 1\ns_cselect_b64 vcc, -1, 0\nv_cndmask_b32 v95, %s, %s, vcc" % (vr(SG), vr(SG + 1)))
        p("v_lshlrev_b32 v94, 16, v95\nv_and_b32 v95, s%d, v95\nv_rcp_f32 v95, v95\nv_xor_b32 v94, 0x80000000, v94" % S_HI)

    def build(self, header):
        self.entry()
        self.role_F()
        self.role_C()
        self.role_A()
        body = self.p.emit()
        s = header
        s += "; @launch grid=(256,1,1) block=(576,1,1) lds=%d\n" % LDS_BYTES
        s += '.amdgcn_target "amdgcn-amd-amdhsa--gfx950"\n.text\n.globl %s\n.p2align 8\n.type %s,@function\n%s:\n' % (NAME, NAME, NAME)
        s += body
        s += "L_code_end:\n"
        s += """.section .rodata,"a"
.p2align 6
.amdhsa_kernel %s
  .amdhsa_next_free_vgpr 168
  .amdhsa_next_free_sgpr 102
  .amdhsa_accum_offset 168
  .amdhsa_group_segment_fixed_size 0
  .amdhsa_kernarg_size 136
  .amdhsa_user_sgpr_count 2
  .amdhsa_user_sgpr_kernarg_segment_ptr 1
  .amdhsa_system_sgpr_workgroup_id_x 1
.end_amdhsa_kernel
""" % NAME
        return s


if __name__ == "__main__":
    ap = argparse.ArgumentParser()
    ap.add_argument("out")
    ap.add_argument("--stamps", action="store_true")
    ap.add_argument("--dump", default="")
    ap.add_argument("--padto", type=int, default=0)
    ap.add_argument("--opt", default="")
    a = ap.parse_args()
    ref = open("recurrent_scan__ssm_conv_s4__moe_arch_mod__prompt.s.ref").read().split("\n")
    header = "\n".join(l for l in ref if l.startswith(";") and "@launch" not in l and not l.startswith("; Override") and not l.startswith("; grid=")) + "\n"
    opt = dict((kv.split("=")[0], int(kv.split("=")[1])) for kv in a.opt.split(",") if kv)
    g = Gen(stamps=a.stamps, dump=set(a.dump.split(",")) if a.dump else None, padto=a.padto, opt=opt)
    open(a.out, "w").write(g.build(header))
    print("wrote", a.out, "pads", g.p.npad)
```

```python
import re

TRANS = ("v_exp_f32", "v_log_f32", "v_rcp_f32", "v_rsq_f32", "v_sqrt_f32", "v_sin_f32", "v_cos_f32")


def regs_of(tok):
    tok = tok.strip()
    tok = tok.replace("abs(", "").replace(")", "").lstrip("-").replace("|", "")
    m = re.fullmatch(r"([vsa])(\d+)", tok)
    if m:
        return {(m.group(1), int(m.group(2)))}
    m = re.fullmatch(r"([vsa])\[(\d+):(\d+)\]", tok)
    if m:
        return {(m.group(1), i) for i in range(int(m.group(2)), int(m.group(3)) + 1)}
    if tok == "vcc":
        return {("s", "vcc")}
    if tok in ("vcc_lo", "vcc_hi"):
        return {("s", "vcc")}
    if tok in ("exec", "exec_lo", "exec_hi"):
        return {("s", "exec")}
    if tok == "m0":
        return {("s", "m0")}
    return set()


class Ins:
    def __init__(self, text):
        self.text = text
        t = text.split(";")[0].strip()
        self.is_label = t.endswith(":")
        self.is_dir = t.startswith(".")
        self.w = set()
        self.r = set()
        self.dppsrc = set()
        self.srcc = set()
        self.mn = ""
        self.states = 0
        if self.is_label or self.is_dir or not t:
            return
        parts = t.split(None, 1)
        self.mn = mn = parts[0]
        rest = parts[1] if len(parts) > 1 else ""
        ops = []
        depth = 0
        cur = ""
        for ch in rest:
            if ch == "[":
                depth += 1
            if ch == "]":
                depth -= 1
            if ch == "," and depth == 0:
                ops.append(cur.strip())
                cur = ""
            else:
                cur += ch
        if cur.strip():
            ops.append(cur.strip())
        if ops:
            last = ops[-1].split()
            ops[-1] = last[0]
            self.mods = " ".join(last[1:])
        else:
            self.mods = ""
        self.ops = ops
        self.states = 1
        if mn == "s_nop":
            self.states = int(ops[0]) + 1
        self.valu = mn.startswith("v_") and not mn.startswith("v_mfma")
        self.mfma = mn.startswith("v_mfma")
        self.trans = any(mn.startswith(x) for x in TRANS)
        self.dot = mn.startswith("v_dot")
        self.dpp = "_dpp" in mn
        self.perml = mn.startswith("v_permlane")
        self.vmem = mn.startswith(("global_", "buffer_"))
        self.ds = mn.startswith("ds_")
        self.salu = mn.startswith("s_")
        R = [regs_of(o) for o in ops]
        U = lambda l: set().union(*l) if l else set()
        if self.mfma:
            self.w = R[0]
            self.r = U(R[1:])
            self.srcc = R[3]
            self.srcab = R[1] | R[2]
        elif self.valu:
            if mn.startswith("v_cmpx"):
                self.w = R[0] | {("s", "exec")}
                self.r = U(R[1:])
            elif self.perml:
                self.w = R[0] | R[1]
                self.r = R[0] | R[1]
            elif mn.startswith(("v_add_co", "v_sub_co", "v_addc_co")):
                self.w = R[0] | R[1]
                self.r = U(R[2:])
            else:
                self.w = R[0]
                self.r = U(R[1:])
                if mn.startswith(("v_fmac", "v_dot2c", "v_writelane")) or self.dpp:
                    self.r |= R[0]
                if self.dpp:
                    self.dppsrc = R[1]
        elif self.ds:
            if mn.startswith(("ds_read", "ds_bpermute", "ds_permute", "ds_swizzle")) or "_rtn" in mn:
                self.w = R[0]
                self.r = U(R[1:])
            else:
                self.r = U(R)
            if "addtid" in mn:
                self.r |= {("s", "m0")}
        elif self.vmem:
            if "_lds_" in mn or " lds" in (" " + self.mods):
                self.r = U(R) | {("s", "m0")}
            elif "load" in mn:
                self.w = R[0]
                self.r = U(R[1:])
            else:
                self.r = U(R)
                self.wide = mn.endswith(("x3", "x4"))
                self.sdata = R[1] if mn.startswith("global_") else R[0]
        elif self.salu:
            if mn.startswith(("s_cmp", "s_cbranch", "s_branch", "s_waitcnt", "s_barrier", "s_nop", "s_sleep", "s_setprio", "s_endpgm")):
                self.r = U(R)
            else:
                self.w = R[0] if R else set()
                self.r = U(R[1:])
                if "saveexec" in mn:
                    self.w |= {("s", "exec")}

    def real(self):
        return self.states > 0


def need(prev, cur):
    n = 0
    vw = {x for x in prev.w if x[0] in "va"}
    sw = {x for x in prev.w if x[0] == "s"}
    if prev.valu:
        if cur.valu:
            if cur.dpp and (vw & cur.dppsrc):
                n = max(n, 2)
            if cur.dpp and ("s", "exec") in sw:
                n = max(n, 5)
            if cur.perml and (vw & cur.r):
                n = max(n, 2)
            if cur.mn.startswith(("v_readlane", "v_readfirstlane")) and (vw & cur.r):
                n = max(n, 1)
            if cur.mn.startswith(("v_readlane", "v_writelane")) and (sw & cur.r):
                n = max(n, 4)
            if sw & cur.r:
                n = max(n, 2)
            if cur.mn.startswith("v_cndmask") and ("s", "vcc") in sw:
                n = max(n, 2)
            if prev.trans and not cur.trans and (vw & cur.r):
                n = max(n, 1)
            if prev.dot and (vw & (cur.r | cur.w)):
                same_c = cur.mn == prev.mn and len(cur.ops) >= 4 and (vw & regs_of(cur.ops[3])) and not (vw & (regs_of(cur.ops[1]) | regs_of(cur.ops[2])))
                if not same_c:
                    n = max(n, 3)
            if "op_sel" in prev.mods and not prev.mn.startswith("v_pk") and (vw & cur.r):
                n = max(n, 1)
        if cur.mfma:
            if vw & cur.r:
                n = max(n, 2)
            if ("s", "exec") in sw:
                n = max(n, 4)
        if cur.vmem and (sw & cur.r):
            n = max(n, 5)
        if (cur.vmem or cur.ds) and (prev.trans or prev.dot) and (vw & cur.r):
            n = max(n, 3 if prev.dot else 1)
        if cur.salu and (sw & cur.r):
            n = max(n, 1)
    if prev.mfma:
        p4 = "16x16" in prev.mn
        if cur.mfma:
            if prev.w & cur.srcab:
                n = max(n, 8 if p4 else 12)
            if (prev.w & cur.srcc) and prev.w != cur.srcc:
                n = max(n, 6 if p4 else 10)
        else:
            if prev.w & (cur.r | cur.w):
                n = max(n, 8 if p4 else 12)
            if cur.valu and (prev.srcc & cur.w):
                n = max(n, 3 if p4 else 7)
    if prev.vmem and getattr(prev, "wide", False) and (prev.sdata & cur.w):
        n = max(n, 2)
    if prev.salu and ("s", "m0") in prev.w and ("s", "m0") in cur.r and not cur.salu:
        n = max(n, 1)
    return n


class Prog:
    def __init__(self):
        self.lines = []

    def __call__(self, text):
        for l in text.strip("\n").split("\n"):
            l = l.strip()
            if l:
                self.lines.append(l)

    def label(self, name):
        self.lines.append(name + ":")

    def emit(self, pad=True):
        out = []
        hist = []
        npad = 0
        for l in self.lines:
            ins = Ins(l)
            if not ins.real():
                out.append(l if ins.is_label or ins.is_dir else "    " + l)
                continue
            if pad:
                dist = 0
                req = 0
                for p in reversed(hist):
                    k = need(p, ins) - dist
                    req = max(req, k)
                    dist += p.states
                    if dist > 20:
                        break
                if req > 0:
                    nop = Ins("s_nop %d" % (req - 1))
                    out.append("    s_nop %d" % (req - 1))
                    hist.append(nop)
                    npad += 1
            out.append("    " + l)
            hist.append(ins)
            if ins.mn in ("s_branch", "s_endpgm"):
                hist = []
            hist = hist[-24:]
        self.npad = npad
        return "\n".join(out) + "\n"


def vr(a, n=1):
    return "v%d" % a if n == 1 else "v[%d:%d]" % (a, a + n - 1)


def sr(a, n=1):
    return "s%d" % a if n == 1 else "s[%d:%d]" % (a, a + n - 1)


def interleave(*chains):
    out = []
    chains = [list(c) for c in chains]
    while any(chains):
        for c in chains:
            if c:
                out.append(c.pop(0))
    return out


def schedule(lines, lat_pk=2, lat_valu=1, lat_trans=3, lat_ds=16, keep_ds_order=True):
    ins = [Ins(l) for l in lines]
    n = len(ins)
    succ = [[] for _ in range(n)]
    npred = [0] * n
    lastw = {}
    readers = {}
    lastmem = None

    def lat(p, c):
        k = need(p, c) + 1
        if p.mfma:
            return max(k, 4)
        if p.trans:
            return max(k, lat_trans)
        if p.mn.startswith("v_pk") or p.dot:
            return max(k, lat_pk)
        if p.ds:
            return max(k, lat_ds)
        return max(k, lat_valu)

    def edge(a, b, l):
        succ[a].append((b, l))
        npred[b] += 1

    for i, x in enumerate(ins):
        rs = set(x.r)
        ws = set(x.w)
        if x.salu and not x.mn.startswith("s_mov"):
            ws.add(("s", "scc"))
        for r in rs:
            if r in lastw:
                edge(lastw[r], i, lat(ins[lastw[r]], x))
        for w in ws:
            if w in lastw:
                edge(lastw[w], i, max(1, need(ins[lastw[w]], x) + 1))
            for q in readers.get(w, []):
                if q != i:
                    edge(q, i, max(1, need(ins[q], x) + 1))
        if (x.ds or x.vmem) and keep_ds_order:
            if lastmem is not None:
                edge(lastmem, i, 1)
            lastmem = i
        for r in rs:
            readers.setdefault(r, []).append(i)
        for w in ws:
            lastw[w] = i
            readers[w] = []
    prio = [0] * n
    for i in range(n - 1, -1, -1):
        prio[i] = max([l + prio[b] for b, l in succ[i]] + [1])
    ready_at = [0] * n
    avail = [i for i in range(n) if npred[i] == 0]
    out = []
    t = 0
    while avail:
        ok = [i for i in avail if ready_at[i] <= t]
        if ok:
            i = max(ok, key=lambda q: (prio[q], -q))
        else:
            i = min(avail, key=lambda q: (ready_at[q], -prio[q]))
            t = ready_at[i]
        avail.remove(i)
        out.append(lines[i])
        cost = 2 if ins[i].trans or ins[i].mfma else 1
        for b, l in succ[i]:
            ready_at[b] = max(ready_at[b], t + l)
            npred[b] -= 1
            if npred[b] == 0:
                avail.append(b)
        t += cost
    assert len(out) == n
    return out
```

```python
import sys, math, struct, argparse
from asmlib import Prog, vr, sr, schedule

NAME = "recurrent_scan__ssm_conv_s4__moe_arch_mod__prompt_kernel"

WS_ST = 0x1000
WS_KEY = 0x8000
KSH = 5
WS_CHK = 0x10000
WS_FP = 0x30000
WS_DBG = 0x90000
WS_XD = 0x100000
WS_DUMP = 0x400000
WS_SPAN = 0x300000

REG = 16384
TROW = 272
LO0 = 21
KC1 = 4480
FOFF = 8960
YOFF = 8960
YT = 1280
U0 = 65536
USTR = 5120
FLG = U0 + 4 * USTR
F_Y, F_SEL, F_NON, F_C, F_U = 0, 16, 28, 32, 48
XR = FLG + 256
ON = XR + 1024
WGL = ON + 1024
WUL = WGL + 8192 + 128
SX = WGL
SXR = 1056
TA0 = WUL + 8192
TASTR = 53 * TROW
WDL = TA0
WDR = 1088
LDS_BYTES = TA0 + 4 * TASTR

LOG2E = 1.4426950408889634
INV2PI = 0.15915494309189535
HK = [0x9E37F1B5, 0x7B45C2D3, 0x5A8D3EE9, 0xC3A5B671]
POLL_MAX = 4000
SPIN_MAX = 200000

S_X, S_ARE, S_AIM, S_BRE, S_BIM, S_CRE, S_CIM, S_LDT = 4, 6, 8, 10, 12, 14, 16, 18
S_DSK, S_WR, S_WG, S_WU, S_WD, S_OUT, S_WS = 20, 24, 26, 28, 30, 32, 36
S_EP, S_NONCE, S_WAVE, S_XCD, S_J, S_CQ, S_RHO = 38, 39, 40, 41, 42, 43, 44
S_HI = 56
S_HK = 72
S_STAMP = 76
DPPF = "row_mask:0xf bank_mask:0xf"
PARAMS = (S_ARE, S_AIM, S_BRE, S_BIM, S_CRE, S_CIM)


def f2u(x):
    return struct.unpack("<I", struct.pack("<f", x))[0]


def hx(x):
    return "0x%08x" % (x & 0xFFFFFFFF)


def lanemask(f):
    return sum(1 << l for l in range(64) if f(l))


def setmask(reg, m):
    if reg in ("exec", "vcc"):
        return "s_mov_b32 %s_lo, %s\ns_mov_b32 %s_hi, %s" % (reg, hx(m), reg, hx(m >> 32))
    return "s_mov_b32 s%d, %s\ns_mov_b32 s%d, %s" % (reg, hx(m), reg + 1, hx(m >> 32))


def merge_prop(a, b):
    out = []
    i = j = 0
    while i < len(a) or j < len(b):
        if j >= len(b) or (i < len(a) and i * len(b) <= j * len(a)):
            out.append(a[i]); i += 1
        else:
            out.append(b[j]); j += 1
    return out


class Gen:
    def __init__(self, stamps=False, dump=None, opt=None):
        self.p = Prog()
        self.stamps = stamps
        self.dump = dump or set()
        self.opt = opt or {}
        self.role = 0

    def stamp(self, i):
        if self.opt.get("ev") == self.role * 100 + i:
            self.p("s_memrealtime s[100:101]\ns_waitcnt lgkmcnt(0)")
        if self.stamps:
            self.p("%s %s\ns_waitcnt lgkmcnt(0)" % ("s_memtime" if self.opt.get("cyc") else "s_memrealtime", sr(S_STAMP + 2 * i, 2)))

    def stamp_flush(self):
        p = self.p
        if self.opt.get("ev", -1) // 100 == self.role:
            p.label("EV_pad")
            p("s_memrealtime s[98:99]\ns_waitcnt lgkmcnt(0)\ns_sub_u32 s98, s98, s100\ns_cmp_lt_u32 s98, 2000\ns_cbranch_scc1 EV_pad")
        if not self.stamps:
            return
        p("s_mov_b64 exec, -1")
        p("s_mul_i32 s47, s2, 9\ns_add_u32 s47, s47, s%d\ns_lshl_b32 s47, s47, 6\ns_add_u32 s47, s47, %d" % (S_WAVE, WS_DBG))
        p("v_mov_b32 v2, 0")
        for i in range(13):
            p("v_writelane_b32 v2, s%d, %d" % (S_STAMP + 2 * i, i))
        p("v_mbcnt_lo_u32_b32 v1, -1, 0\nv_mbcnt_hi_u32_b32 v1, -1, v1\nv_lshl_add_u32 v1, v1, 2, s47")
        p("s_mov_b64 exec, 0xffff")
        p("global_store_dword v1, v2, %s" % sr(S_WS, 2))
        p("s_mov_b64 exec, -1")

    def dump_lds(self, tag, lds_sgpr, nbytes, slot):
        if tag not in self.dump:
            return
        p = self.p
        p("s_waitcnt lgkmcnt(0)")
        p("s_lshl_b32 s49, s2, 3\ns_add_u32 s49, s49, %s\ns_lshl_b32 s49, s49, 14\ns_add_u32 s49, s49, %d" % (slot, WS_DUMP))
        p("v_lshl_add_u32 v164, v0, 4, %s" % lds_sgpr)
        p("v_lshl_add_u32 v165, v0, 4, s49")
        for o in range(0, nbytes, 1024):
            p("ds_read_b128 v[160:163], v164 offset:%d\ns_waitcnt lgkmcnt(0)" % o)
            p("global_store_dwordx4 v165, v[160:163], %s\nv_add_u32 v165, 1024, v165\ns_nop 1" % sr(S_WS, 2))
        p("s_waitcnt vmcnt(0)")

    def nonce(self):
        self.p("s_mul_i32 s%d, s%d, 0x9E3779B1\ns_add_u32 s%d, s%d, 1" % (S_NONCE, S_EP, S_NONCE, S_NONCE))

    def hk(self):
        for k in range(4):
            self.p("s_mov_b32 s%d, %s" % (S_HK + k, hx(HK[k])))

    def hash_ops(self, G, H, HI, ROT):
        L = ["v_dot2_u32_u16 %s, %s, s%d, %s" % (vr(H), vr(G + q), S_HK + q, vr(HI if q == 0 else H)) for q in range(4)]
        L.append("v_alignbit_b32 %s, %s, %s, %s" % (vr(H), vr(H), vr(H), vr(ROT)))
        for qp in ("[1,0,3,2]", "[2,3,0,1]"):
            L.append("v_add_u32_dpp %s, %s, %s quad_perm:%s %s" % (vr(H), vr(H), vr(H), qp, DPPF))
        return L

    def srd(self, d, ptr, size):
        self.p("s_mov_b64 %s, %s\ns_mov_b32 s%d, %d\ns_mov_b32 s%d, 0x00020000" % (sr(d, 2), sr(ptr, 2), d + 2, size, d + 3))

    def spin(self, name, body, sres, sleep=1):
        p = self.p
        p("s_mov_b32 s57, %d" % SPIN_MAX)
        p.label(name + "_w")
        p(body)
        p("s_cmp_lg_u32 %s, 0\ns_cbranch_scc1 %s_g" % (sres, name))
        p("s_sleep %s\ns_sub_u32 s57, s57, 1\ns_cmp_lg_u32 s57, 0\ns_cbranch_scc1 %s_w" % (sleep, name))
        p.label(name + "_g")

    def spin4(self, name, addr, off, t, shift=0, sleep=1):
        body = "ds_read_b128 %s, %s offset:%d\ns_waitcnt lgkmcnt(0)\nv_min3_u32 %s, %s, %s, %s\nv_min_u32 %s, %s, %s\nv_readfirstlane_b32 s47, %s" % (
            vr(t, 4), addr, off, vr(t), vr(t), vr(t + 1), vr(t + 2), vr(t), vr(t), vr(t + 3), vr(t))
        if shift:
            body += "\ns_lshr_b32 s47, s47, %d" % shift
        self.spin(name, body, "s47", sleep)

    def kg_consts(self):
        self.p("s_mov_b32 s64, %s\ns_mov_b32 s65, %s\ns_mov_b32 s66, %s\ns_mov_b32 s67, %s\nv_mov_b32 v35, 0x3f80"
               % (hx(f2u(LOG2E)), hx(f2u(INV2PI)), hx(f2u(256 * LOG2E)), hx(f2u(256 * INV2PI))))

    def touch_addr(self, V):
        p = self.p
        p("s_mul_i32 s52, s%d, 43\ns_add_u32 s53, s52, 43\ns_lshr_b32 s52, s52, 1\ns_lshr_b32 s53, s53, 1" % S_XCD)
        p("s_cmp_ge_u32 s46, 2\ns_cbranch_scc1 T%d_1" % self.role)
        p("s_lshl_b32 s47, s%d, 4\nv_lshrrev_b32 v1, 2, v0\nv_add_u32 v1, s47, v1\nv_mul_u32_u24 v1, 2752, v1" % S_J)
        p("s_lshl_b32 s47, s52, 4\ns_lshl_b32 s48, s53, 4\nv_add_u32 v2, s47, v1\nv_and_b32 v2, 0xffffff80, v2\nv_add_u32 v1, s48, v1")
        p("v_and_b32 v3, 3, v0\nv_lshl_add_u32 v3, v3, 7, v2\nv_cmp_lt_u32 vcc, v3, v1\nv_cndmask_b32 %s, v2, v3, vcc" % vr(V))
        p("s_cmp_eq_u32 s46, 0\ns_cselect_b32 s60, s%d, s%d\ns_cselect_b32 s61, s%d, s%d\ns_branch T%d_3" % (S_WG, S_WU, S_WG + 1, S_WU + 1, self.role))
        p.label("T%d_1" % self.role)
        p("s_cmp_eq_u32 s46, 2\ns_cbranch_scc1 T%d_2" % self.role)
        p("s_lshl_b32 s47, s%d, 16\ns_lshl_b32 s48, s%d, 7\ns_add_u32 s47, s47, s48\nv_lshl_add_u32 %s, v0, 10, s47\ns_mov_b64 s[60:61], %s\ns_branch T%d_3" % (S_J, S_XCD, vr(V), sr(S_OUT, 2), self.role))
        p.label("T%d_2" % self.role)
        p("s_mul_i32 s47, s%d, 43\nv_min_u32 v1, 42, v0\nv_add_u32 v1, s47, v1\ns_lshl_b32 s47, s52, 13\nv_lshl_add_u32 v1, v1, 7, s47\nv_min_u32 %s, %d, v1\ns_mov_b64 s[60:61], %s"
          % (S_J, vr(V), 1376 * 1024 - 128, sr(S_WD, 2)))
        p.label("T%d_3" % self.role)

    def touch(self, where, V):
        m = self.opt.get(where, {"pf0": 3, "pf1": 4, "pf2": 0, "pf3": 0}[where])
        if m:
            self.p("s_lshr_b32 s47, %d, s46\ns_bitcmp0_b32 s47, 0\ns_cbranch_scc1 T_s%s\nglobal_load_dword v167, %s, s[60:61]" % (m, where, vr(V)))
            self.p.label("T_s%s" % where)

    def param_addr(self):
        self.p("s_lshl_b32 s48, s%d, 2\ns_add_u32 s48, s48, s46\ns_lshl_b32 s48, s48, 8\nv_lshl_add_u32 v3, v0, 1, s48\ns_lshr_b32 s49, s48, 7\nv_mov_b32 v5, s49\ns_and_b32 s49, s49, -4" % S_CQ)
        self.p("v_mov_b64 v[52:53], 0\nv_mov_b64 v[72:73], 0\nv_mov_b64 v[94:95], 0\nv_mov_b32 v4, 0")

    def param_loads(self, h):
        for r, s in zip((52, 53, 72, 73, 94, 95), PARAMS):
            self.p("global_load_short_d16_hi %s, v3, %s offset:%d" % (vr(r), sr(s, 2), 128 * h))
        self.p("global_load_short_d16_hi v4, v5, %s" % sr(S_LDT, 2))

    def cmul(self, d, x, y):
        return ["v_pk_mul_f32 %s, %s, %s op_sel:[0,0] op_sel_hi:[1,0]" % (vr(d, 2), vr(x, 2), vr(y, 2)),
                "v_pk_fma_f32 %s, %s, %s, %s op_sel:[1,1,0] op_sel_hi:[0,1,1] neg_lo:[1,0,0]" % (vr(d, 2), vr(x, 2), vr(y, 2), vr(d, 2))]

    def kgen_pass(self, h):
        PRM = 4
        Z1, Z8, ZW, ZR = 52, 54, 56, 58
        LR, WR_, PR, CR, T = 70, 74, 80, 84, 92
        bc = "op_sel:[0,0] op_sel_hi:[1,0]"
        L = ["v_mul_f32 v4, s64, v4", "v_exp_f32 v4, v4", "v_cvt_pk_bf16_f32 v4, v4, v4", "v_and_b32 v4, s%d, v4" % S_HI,
             "v_pk_mul_f32 %s, %s, v[4:5] %s" % (vr(T, 2), vr(Z1, 2), bc)]
        for z, sp, t in ((Z1, 64, PR), (ZW, 66, PR + 2)):
            L += ["v_pk_mul_f32 %s, %s, %s" % (vr(t, 2), vr(T, 2), sr(sp, 2)),
                  "v_exp_f32 %s, %s" % (vr(t), vr(t)),
                  "v_fract_f32 %s, %s" % (vr(t + 1), vr(t + 1)),
                  "v_cos_f32 %s, %s" % (vr(z), vr(t + 1)),
                  "v_sin_f32 %s, %s" % (vr(z + 1), vr(t + 1)),
                  "v_pk_mul_f32 %s, %s, %s %s" % (vr(z, 2), vr(z, 2), vr(t, 2), bc)]
        L += ["v_pk_mul_f32 %s, %s, v[4:5] %s" % (vr(LR + 2, 2), vr(LR + 2, 2), bc)]
        L += self.cmul(LR, LR + 2, T + 2)
        cnt = [0, 0]

        def put(row, z, conj=False):
            c = CR + 4 * int(conj) + cnt[int(conj)] % 4
            cnt[int(conj)] += 1
            return ["v_cvt_pk_bf16_f32 %s, %s, %s%s" % (vr(c), vr(z), "-" if conj else "", vr(z + 1)),
                    "ds_write_addtid_b32 %s offset:%d" % (vr(c), row * TROW)]
        zr = {1: Z1}
        for r in range(2, 8):
            zr[r] = ZR + 2 * (r - 2)
        L += self.cmul(zr[2], Z1, Z1) + self.cmul(zr[4], zr[2], zr[2]) + self.cmul(Z8, zr[4], zr[4])
        sL, sH = [], []
        for j in range(32):
            cur, nxt = LR + 2 * (j & 1), LR + 2 * ((j + 1) & 1)
            if j < 31:
                sL += self.cmul(nxt, cur, Z8)
            sL += put(LO0 + j, cur, True)
        sH += put(1, Z1) + put(2, zr[2]) + put(4, zr[4])
        for r, (a, b) in ((3, (2, 1)), (5, (4, 1)), (6, (4, 2)), (7, (4, 3))):
            sH += self.cmul(zr[r], zr[a], zr[b]) + put(r, zr[r])
        rows_for = {1: [(8, 0), (9, 2), (10, 4), (11, 6)], 2: [(12, 0), (13, 4)], 3: [(14, 0), (15, 4)]}
        for m in range(4, 9):
            rows_for[m] = [(12 + m, 0)]
        wreg = {1: ZW}
        pc = 0
        for m in range(1, 9):
            if m > 1:
                wreg[m] = WR_ + 2 * (m % 3)
                sH += self.cmul(wreg[m], wreg[m - 1], ZW)
            for row, r in rows_for[m]:
                if r == 0:
                    sH += put(row, wreg[m])
                else:
                    t = PR + 2 * (pc & 1)
                    pc += 1
                    sH += self.cmul(t, wreg[m], zr[r]) + put(row, t)
        return schedule(L + merge_prop(sH, sL), keep_ds_order=False)

    def entry(self):
        p = self.p
        p("s_cmp_ge_u32 s2, 256\ns_cbranch_scc1 L_end")
        p("s_load_dwordx16 s[4:19], s[0:1], 0\ns_load_dwordx16 s[20:35], s[0:1], 64\ns_load_dwordx2 s[36:37], s[0:1], 128")
        if self.stamps:
            for i in range(13):
                p("s_mov_b32 s%d, 0" % (S_STAMP + 2 * i))
            p("%s %s" % ("s_memtime" if self.opt.get("cyc") else "s_memrealtime", sr(S_STAMP, 2)))
        p("v_lshrrev_b32 v1, 6, v0\nv_and_b32 v0, 63, v0\ns_and_b32 s%d, s2, 7\nv_readfirstlane_b32 s%d, v1" % (S_XCD, S_WAVE))
        p("s_lshr_b32 s%d, s2, 3\ns_lshr_b32 s%d, s2, 4\ns_lshl_b32 s45, s%d, 4\ns_add_u32 s%d, s%d, s45\ns_and_b32 s%d, s%d, 1\ns_mov_b32 s%d, 0xffff0000"
          % (S_J, S_CQ, S_XCD, S_CQ, S_CQ, S_RHO, S_J, S_HI))
        p("s_add_u32 s46, s%d, 3\ns_and_b32 s46, s46, 3\ns_lshl_b32 s47, s2, 13" % S_WAVE)
        p("s_cmp_gt_u32 s%d, 4\ns_cbranch_scc1 A_init\ns_cmp_lg_u32 s%d, 0\ns_cbranch_scc1 C_init" % (S_WAVE, S_WAVE))
        self.init_F()
        self.init_C()
        self.init_A()

    def init_F(self):
        p = self.p
        self.role = 3
        p("v_lshlrev_b32 v2, 4, v0\nv_mov_b32 v4, 0x3f803f80\nv_mov_b32 v5, v4\nv_mov_b32 v6, v4\nv_mov_b32 v7, v4\nv_add_u32 v3, %d, v2\nds_write_b128 v3, v[4:7]" % ON)
        D, IDX, VSTA, VKEY, VSX, NON, FL = 72, 70, 71, 76, 68, 83, 77
        p("v_bfe_u32 v1, v0, 2, 2\nv_and_b32 v2, 1, v0\nv_lshl_add_u32 v1, v1, 1, v2\ns_lshl_b32 s47, s2, 3\ns_sub_u32 s47, 0xffff, s47\nv_sub_u32 %s, s47, v1" % vr(IDX))
        p("v_mul_u32_u24 v1, %d, v1\nv_add_u32 %s, %d, v1\ns_mov_b32 exec_lo, 0x44444444\ns_mov_b32 exec_hi, exec_lo\nv_mov_b32 %s, %d" % (SXR, vr(VSX), SX, vr(VSX), ON))
        p("s_mov_b32 exec_lo, 0x88888888\ns_mov_b32 exec_hi, exec_lo\nv_mov_b32 %s, %d\ns_mov_b64 exec, -1" % (vr(VSX), SX + 8 * SXR))
        p("v_and_b32 v1, 48, v0\nv_add_u32 %s, v1, %s" % (vr(VSX), vr(VSX)))
        p("s_lshl_b32 s47, s2, 6\ns_add_u32 s47, s47, %d\nv_add_u32 %s, s47, v1\ns_lshl_b32 s45, s2, %d\ns_add_u32 s45, s45, %d" % (WS_ST, vr(VSTA), KSH, WS_KEY))
        p("v_lshlrev_b32 v2, 4, v0\nv_mov_b32 v3, 0\ns_mov_b32 m0, %d\ns_waitcnt lgkmcnt(0)" % (SX + 8 * SXR))
        for _ in range(self.opt.get("fdel", 0)):
            p("s_nop 15")
        p("global_load_lds_dwordx4 v2, %s\nglobal_load_dword %s, v3, %s\ns_branch F_main" % (sr(S_WR, 2), vr(NON), sr(S_WS, 2)))

    def init_C(self):
        p = self.p
        self.role = 1
        ROT, VDA, VCA, VA, VB, VYW = 107, 108, 109, 20, 21, 34
        p.label("C_init")
        p("s_setprio 2\ns_lshl_b32 s48, s46, 8\ns_add_u32 s48, s47, s48")
        p("v_and_b32 v10, 60, v0\nv_lshl_add_u32 v11, v10, 1, s48\nv_and_b32 v2, 3, v0\nv_lshl_add_u32 v11, v2, 11, v11")
        self.param_addr()
        p("s_lshl_b32 s45, s46, 14\ns_mov_b32 m0, s45")
        self.hk()
        p("v_mul_u32_u24 %s, 7, v2" % vr(ROT))
        p("s_lshl_b32 s48, s46, 11\ns_add_u32 s47, s47, s48\ns_add_u32 s47, s47, %d\nv_lshl_add_u32 %s, v0, 4, s47" % (WS_XD, vr(VDA)))
        if self.opt.get("ckl", 1):
            p("s_lshl_b32 s47, s2, 6\ns_lshl_b32 s48, s46, 15\ns_add_u32 s47, s47, s48\ns_add_u32 s47, s47, %d" % WS_CHK)
            p("v_lshl_add_u32 %s, v2, 14, s47\nv_add_u32 %s, v10, %s" % (vr(VCA), vr(VCA), vr(VCA)))
        else:
            p("s_lshl_b32 s47, s2, 2\ns_add_u32 s47, s47, s46\ns_lshl_b32 s47, s47, 7\ns_add_u32 s47, s47, %d" % WS_CHK)
            p("v_lshl_add_u32 %s, v2, 6, s47\nv_add_u32 %s, v10, %s" % (vr(VCA), vr(VCA), vr(VCA)))
        p("s_lshl_b32 s47, s46, 8\ns_add_u32 s47, s47, %d\nv_mul_u32_u24 v110, %d, v2\nv_lshl_add_u32 v110, v10, 1, v110\nv_add_u32 v110, s47, v110" % (SX, 2 * SXR))
        self.kg_consts()
        p("ds_write_addtid_b32 v35 offset:0\nv_mov_b32 v6, 0")
        p("s_waitcnt lgkmcnt(0)")
        self.stamp(9)
        for S in range(2):
            for r in range(2):
                p("global_load_dwordx2 %s, v11, %s offset:%d" % (vr(96 + 4 * S + 2 * r, 2), sr(S_X, 2), 1024 * r + 128 * S))
        self.param_loads(0)
        p("global_load_dword v106, v6, %s" % sr(S_WS, 2))
        p("s_branch C_main")

    def init_A(self):
        p = self.p
        self.role = 2
        p.label("A_init")
        if self.opt.get("code"):
            p("s_getpc_b64 s[52:53]")
            p.label("A_pc")
            p("s_lshl_b32 s47, s46, 13\nv_lshl_add_u32 v1, v0, 7, s47\nv_min_u32 v1, L_code_end-A_pc-4, v1\nglobal_load_dword v10, v1, s[52:53]")
        self.param_addr()
        p("s_mul_i32 s47, s46, %d\ns_add_u32 s47, s47, %d\ns_mov_b32 m0, s47" % (TASTR, TA0))
        self.kg_consts()
        p("ds_write_addtid_b32 v35 offset:0")
        p("v_mov_b32 v12, 0\nv_mov_b32 v13, 0\nv_mov_b32 v14, 0\nv_mov_b32 v15, 0")
        p("s_mul_i32 s48, s46, %d\ns_add_u32 s48, s48, %d\nv_lshl_add_u32 v2, v0, 4, s48\nds_write_b128 v2, v[12:15]" % (USTR, U0))
        p("s_waitcnt lgkmcnt(0)")
        self.param_loads(1)
        p("s_branch A_main")

    def role_C(self):
        self.role = 1
        p = self.p
        G0, G1, H0, H1, HI, ROT, VDA, VCA = 96, 100, 104, 105, 106, 107, 108, 109
        E, VA, VB, VTAB, VF, VYW, D = 10, 20, 21, 29, 30, 34, 36
        p.label("C_main")
        self.touch_addr(19)
        p("v_and_b32 v1, 15, v0\nv_lshrrev_b32 v2, 4, v0")
        p("s_add_u32 s47, s45, 64\ns_movk_i32 s52, %d\nv_and_b32 v3, 1, v0\nv_lshl_add_u32 %s, v2, 4, s47\nv_mad_u32_u24 %s, v3, s52, %s\nv_lshlrev_b32 v3, 2, v1\nv_sub_u32 %s, %s, v3"
          % (KC1 + 4, vr(VA), vr(VA), vr(VA), vr(VA), vr(VA)))
        p("s_add_u32 s47, s45, %d\ns_movk_i32 s52, 288\nv_lshl_add_u32 %s, v1, 4, s47\nv_mad_u32_u24 %s, v2, s52, %s" % (YOFF, vr(VYW), vr(VYW), vr(VYW)))
        p("s_mul_i32 s47, s46, %d\ns_add_u32 s47, s47, %d\nv_lshl_add_u32 v1, v1, 6, s47\nv_lshl_add_u32 v1, v2, 4, v1\nv_xor_b32 v2, 32, v1" % (USTR, U0 + 64))
        for kk in range(4):
            m = lanemask(lambda l: ((8 - kk + (l & 15)) >> 2) & 1)
            p("s_mov_b32 vcc_lo, %s\ns_mov_b32 vcc_hi, vcc_lo" % hx(m))
            p("v_cndmask_b32 %s, v1, v2, vcc\nv_cndmask_b32 %s, v2, v1, vcc" % (vr(VB + kk), vr(VB + kk + 4)))
        p("v_and_b32 v1, 31, v0\nv_lshrrev_b32 v2, 5, v0")
        p("s_movk_i32 s52, %d\nv_lshl_add_u32 %s, v2, 4, s45\nv_mad_u32_u24 %s, v1, s52, %s" % (TROW, vr(VTAB), vr(VTAB), vr(VTAB)))
        p("s_mov_b32 vcc_lo, 0x22222222\ns_mov_b32 vcc_hi, vcc_lo\ns_mov_b32 s52, 0x33333333\ns_mov_b32 s53, s52")
        p("s_mov_b32 s47, %s\ns_waitcnt vmcnt(10)" % hx(2 * 0x9E3779B1))
        p("ds_write2_b64 v110, %s, %s offset0:0 offset1:%d" % (vr(G0, 2), vr(G0 + 2, 2), SXR // 8))
        p("global_store_dwordx4 %s, %s, %s sc1" % (vr(VDA), vr(G0, 4), sr(S_WS, 2)))
        p("s_waitcnt vmcnt(9)")
        p("ds_write2_b64 v110, %s, %s offset0:16 offset1:%d" % (vr(G1, 2), vr(G1 + 2, 2), SXR // 8 + 16))
        p("global_store_dwordx4 %s, %s, %s offset:1024 sc1" % (vr(VDA), vr(G1, 4), sr(S_WS, 2)))
        p("s_waitcnt lgkmcnt(0)\ns_barrier")
        self.stamp(1)
        p("s_load_dword s58, %s, s49\ns_setprio %d\ns_waitcnt vmcnt(3)" % (sr(S_DSK, 2), self.opt.get("ckprio", 0)))
        self.stamp(2)
        FR = 96
        body = self.kgen_pass(0)
        cut0 = self.opt.get("hat", 24)
        p("\n".join(body[:cut0]))
        body = body[cut0:]
        p("s_waitcnt vmcnt(2)\nv_mul_lo_u32 %s, %s, s47\nv_add_u32 %s, 2, %s" % (vr(HI), vr(HI), vr(HI), vr(HI)))
        p("\n".join(schedule(self.hash_ops(G0, H0, HI, ROT) + self.hash_ops(G1, H1, HI, ROT))))
        p("v_cndmask_b32 %s, %s, %s, vcc\ns_mov_b64 exec, s[52:53]" % (vr(H0), vr(H0), vr(H1)))
        p("global_store_dword %s, %s, %s sc1" % (vr(VCA), vr(H0), sr(S_WS, 2)))
        p("s_mov_b64 exec, -1")
        self.touch("pf0", 19)
        cut = self.opt.get("pfat", 40)
        p("\n".join(body[:cut]))
        self.touch("pf1", 19)
        p("\n".join(body[cut:]))

        def tab_reads():
            for ks in range(8):
                p("ds_read_b128 %s, %s offset:%d" % (vr(FR + 8 * ks, 4), vr(VTAB), 32 * ks))
                p("ds_read_b128 %s, %s offset:%d" % (vr(FR + 8 * ks + 4, 4), vr(VTAB), LO0 * TROW + 32 * ks))

        def mf(h, ks):
            c = "0" if (h == 0 and ks == 0) else vr(D, 16)
            return "v_mfma_f32_32x32x16_bf16 %s, %s, %s, %s" % (vr(D, 16), vr(FR + 8 * ks, 4), vr(FR + 8 * ks + 4, 4), c)
        p("s_waitcnt lgkmcnt(0)")
        tab_reads()
        q0 = Prog()
        q0("s_add_u32 s48, s45, %d\ns_add_u32 s47, s%d, 2048\ns_sub_u32 s49, s48, %d" % (FOFF, S_RHO, 4 * 0x4280 + 4))
        q0("v_lshl_add_u32 %s, v2, 4, s48\nv_lshl_add_u32 %s, v1, 5, %s" % (vr(VF), vr(VF), vr(VF)))
        q0("s_movk_i32 s52, 248\nv_sub_u32 v3, 4, v2\nv_lshlrev_b32 v3, v3, v1\nv_lshl_add_u32 v35, v2, 9, s48\nv_add_u32 %s, v3, v35\nv_mad_u32_u24 %s, v2, s52, %s\nv_lshl_add_u32 %s, v1, 2, v35"
           % (vr(VF + 1), vr(VF + 2), vr(VF + 1), vr(VF + 3)))
        q0("v_lshlrev_b32 v1, 1, v0\nv_sub_u32 v1, s47, v1\nv_cvt_f32_u32 v1, v1")
        for n, k in enumerate((7, 11, 13)):
            q0("v_add_f32 v2, %s, v1\nv_add_f32 v3, %s, v1\nv_cvt_pk_bf16_f32 v2, v2, v3" % (hx(f2u(-128.0 * k)), hx(f2u(-128.0 * k - 1))))
            q0("v_mad_u32_u16 %s, v2, 4, s49\nv_cmp_eq_u32_sdwa %s, v2, v2 src0_sel:WORD_0 src1_sel:WORD_1" % (vr(E + n), sr(66 + 2 * n, 2)))
        q0("s_lshl_b32 s47, s%d, 2\ns_add_u32 s47, s47, s48\ns_add_u32 s52, s47, 508\ns_sub_u32 s54, s48, 8\ns_mov_b32 s64, s%d\ns_mov_b32 s65, 0" % (S_RHO, S_RHO))
        q0("v_lshlrev_b32 v1, 3, v0\nv_sub_u32 %s, s52, v1\nv_add_u32 v1, -512, %s\nv_max_i32 %s, s54, v1" % (vr(E + 3), vr(E + 3), vr(E + 4)))
        q0("s_and_b32 s47, s46, 1\ns_lshl_b32 s47, s47, 4\ns_lshr_b32 s58, s58, s47\ns_lshl_b32 s58, s58, 16\nv_mov_b32 v35, 0\nv_writelane_b32 v35, s58, 0")
        q0("s_mul_i32 s47, s46, %d\ns_add_u32 s47, s47, %d\ns_sub_u32 s47, s47, s45\nv_add_u32 %s, s47, %s" % (TASTR, TA0, vr(VTAB), vr(VTAB)))
        q0("v_mov_b32 v2, 0\nv_mov_b32 v3, 0\nv_mov_b32 v1, s54\ns_lshl_b32 s47, s46, 2\ns_add_u32 s47, s47, %d\nv_mov_b32 v15, s47\nv_mov_b32 v16, 1\nv_mov_b32 v17, 2\nv_mov_b32 v18, %d" % (FLG, FLG))
        fill = q0.lines
        step = -(-len(fill) // 9)
        p("\n".join(fill[:step]))
        for ks in range(8):
            p("s_waitcnt lgkmcnt(%d)" % (14 - 2 * ks))
            p(mf(0, ks))
            p("\n".join(fill[(ks + 1) * step:(ks + 2) * step]))
        self.stamp(11)
        p("s_barrier")
        tab_reads()
        self.touch("pf2", 19)
        p("ds_write_b64 v1, v[2:3]")
        for ks in range(8):
            p("s_waitcnt lgkmcnt(%d)" % (15 - 2 * ks))
            p(mf(1, ks))
        self.stamp(3)
        p("ds_write_b32 v15, v16 offset:%d" % F_C)
        p("v_add_f32 %s, %s, v35" % (vr(D), vr(D)))
        p("ds_write_b128 %s, %s" % (vr(VF), vr(D, 4)))
        p("ds_write_b64 %s, %s offset:1024\nds_write_b64 %s, %s offset:1032" % (vr(VF + 1), vr(D + 4, 2), vr(VF + 2), vr(D + 6, 2)))
        q = []

        def issue(line, tag=None):
            p(line)
            q.append(tag)

        def wait_for(tags):
            last = max(i for i, t in enumerate(q) if t in tags)
            p("s_waitcnt lgkmcnt(%d)" % min(len(q) - 1 - last, 15))
        src = {}
        for k in range(8):
            src[k] = (E, 16 * (7 - k), 66)
        for k in range(8, 12):
            src[k] = (E + 1, 32 * (11 - k), 68)
        for k in range(12, 14):
            src[k] = (E + 2, 64 * (13 - k), 70)
        src[14] = (E + 3, 128, None)
        src[15] = (E + 3, 0, None)
        src[16] = (E + 4, 0, None)
        order = list(range(16, -1, -1))
        LA = 4

        def rd(k):
            a, o, _ = src[k]
            issue("ds_read2_b32 %s, %s offset0:%d offset1:%d" % (vr(96 + 2 * k, 2), vr(a), o, o + 1), ("e", k))
        for k in order[:LA]:
            rd(k)
        for r in range(4):
            issue("ds_write_b32 %s, %s offset:%d" % (vr(VF + 3), vr(D + 8 + r), 2048 + 128 * r))
        for i, k in enumerate(order):
            if i % 2 == 0:
                wait_for({("e", kk) for kk in order[i:i + 2]})
            a = 96 + 2 * k
            if src[k][2]:
                p("v_cndmask_b32 %s, %s, %s, %s" % (vr(a), vr(a), vr(a + 1), sr(src[k][2], 2)))
            if k == 14:
                p("v_cndmask_b32 %s, %s, %s, s[64:65]" % (vr(a + 1), vr(a + 1), vr(a)))
            p("v_cvt_pk_bf16_f32 %s, %s, %s" % (vr(132 + k), vr(a + 1), vr(a)))
            if i + LA < len(order):
                rd(order[i + LA])
            issue("ds_write_addtid_b32 %s offset:%d" % (vr(132 + k), 256 * k))
            issue("ds_write_addtid_b32 %s offset:%d" % (vr(132 + k), KC1 + 4 + 256 * k))
        self.dump_lds("K", "s45", 12288, "s46")
        ACC, BUF = 48, 64
        one = self.opt.get("onepass", 1)
        if one:
            stages = [(k0, (0, 1, 2, 3), (0, 1, 2, 3)) for k0 in range(16)]
            SZ, NA = 32, 4
        else:
            stages = [(k0, (0, 1), (0, 1, 2, 3)) for k0 in range(16)] + [(k0, (2, 3), (0, 1)) for k0 in range(16)]
            SZ, NA = 24, 2
        areg = lambda s, j: BUF + SZ * (s % 3) + 4 * (j % NA)
        breg = lambda s, x: BUF + SZ * (s % 3) + 4 * NA + 4 * x

        def rdA(s, j):
            o = 4032 - 64 * stages[s][0] - 1024 * j
            return [("ds_read_b64 %s, %s offset:%d" % (vr(areg(s, j), 2), vr(VA), o), s), ("ds_read_b64 %s, %s offset:%d" % (vr(areg(s, j) + 2, 2), vr(VA), o + 8), s)]

        def rdB(s, x):
            k0 = stages[s][0]
            return [("ds_read_b128 %s, %s offset:%d" % (vr(breg(s, x), 4), vr(VB + (k0 & 7)), 1024 * x + 512 * (1 - (k0 >> 3)) + 448 - 64 * (k0 & 7)), s)]

        def reads(s):
            _, js, qs = stages[s]
            return sum((rdA(s, j) for j in js), []) + sum((rdB(s, x) for x in qs), [])
        if one:
            p("s_waitcnt lgkmcnt(0)")
        for s in (0, 1):
            for j in stages[s][1]:
                for l, t in rdA(s, j):
                    issue(l, t)
        self.touch("pf3", 19)
        p("s_waitcnt lgkmcnt(0)")
        q.clear()
        self.stamp(4)
        self.spin4("C_u", "v18", F_U, 4, sleep=0)
        p("s_setprio %d" % self.opt.get("cprio", 2))
        self.stamp(5)
        for s in (0, 1):
            for x in range(4):
                for l, t in rdB(s, x):
                    issue(l, t)
        first = set()
        for s, (k0, js, qs) in enumerate(stages):
            nxt = reads(s + 2) if s + 2 < len(stages) else []
            wait_for({s})
            mm = [(j, x) for j in js for x in qs if j + x < 4]
            if s == 15 and not one:
                mm.sort(key=lambda a: (a[0] + a[1] > 1, a[0]))
            if s >= 16:
                mm = [(2, 1), (2, 0), (3, 0)]
            tot, done = len(nxt), 0
            for m, (j, x) in enumerate(mm):
                T = j + x
                c = vr(ACC + 4 * T, 4) if T in first else "0"
                first.add(T)
                p("v_mfma_f32_16x16x32_bf16 %s, %s, %s, %s" % (vr(ACC + 4 * T, 4), vr(areg(s, j), 4), vr(breg(s, x), 4), c))
                while done < -(-tot * (m + 1) // len(mm)):
                    issue(*nxt.pop(0))
                    done += 1
            if s == 16:
                for T in range(2):
                    issue("ds_write_b128 %s, %s offset:%d" % (vr(VYW), vr(ACC + 4 * T, 4), YT * T))
                issue("ds_write_b32 v15, v16")
        self.stamp(6)
        for T in range(0 if one else 2, 4):
            p("ds_write_b128 %s, %s offset:%d" % (vr(VYW), vr(ACC + 4 * T, 4), YT * T))
        p("ds_write_b32 v15, v17")
        p("s_or_b32 s47, s2, s46\ns_cmp_lg_u32 s47, 0\ns_cbranch_scc1 C_end")
        p("ds_read_b32 v4, v18 offset:%d\nv_mov_b32 v5, 0\ns_waitcnt lgkmcnt(0)\nglobal_store_dword v5, v4, %s" % (F_NON, sr(S_WS, 2)))
        p.label("C_end")
        self.stamp(7)
        self.stamp_flush()
        p("s_endpgm")

    def role_A(self):
        self.role = 2
        p = self.p
        ROT, VXD, VCK, VST, VU, VY, VO = 136, 137, 138, 139, 140, 141, 142
        XD, ST, CK, XF, XN, PK = 4, 20, 36, 40, 72, 104
        p.label("A_main")
        pfa = self.opt.get("pfa", 0)
        if pfa:
            self.touch_addr(11)
            p("s_lshr_b32 s47, %d, s46\ns_bitcmp1_b32 s47, 0\ns_cbranch_scc1 A_pf\nv_mov_b32 v11, 0" % pfa)
            p.label("A_pf")
            p("global_load_dword v10, v11, s[60:61]")
        p("v_and_b32 v2, 3, v0\nv_lshlrev_b32 v2, 4, v2\nv_add_u32 v2, %d, v2\nds_write_b128 v2, v[12:15]" % FLG)
        self.hk()
        self.srd(68, S_WS, WS_SPAN)
        p("v_and_b32 v1, 3, v0\nv_lshrrev_b32 v2, 2, v0\ns_lshl_b32 s47, s46, 4\nv_add_u32 v2, s47, v2\nv_mul_u32_u24 %s, 7, v1" % vr(ROT))
        p("s_lshl_b32 s47, s%d, 6\ns_add_u32 s47, s47, %d\nv_lshl_add_u32 %s, v2, 13, s47\nv_lshl_add_u32 %s, v1, 4, %s" % (S_CQ, WS_XD, vr(VXD), vr(VXD), vr(VXD)))
        if self.opt.get("ckl", 1):
            p("s_lshr_b32 s47, s%d, 4\ns_lshl_b32 s47, s47, 14\ns_and_b32 s48, s%d, 15\ns_lshl_b32 s48, s48, 2\ns_add_u32 s47, s47, s48\ns_add_u32 s47, s47, %d\nv_lshl_add_u32 %s, v2, 6, s47" % (S_CQ, S_CQ, WS_CHK, vr(VCK)))
        else:
            p("s_lshl_b32 s47, s%d, 2\ns_add_u32 s47, s47, %d\nv_lshl_add_u32 %s, v2, 9, s47" % (S_CQ, WS_CHK, vr(VCK)))
        p("s_lshl_b32 s47, s46, 10\ns_add_u32 s47, s47, %d\nv_lshl_add_u32 %s, v0, 4, s47" % (WS_ST, vr(VST)))
        for k in range(1, 4):
            p("s_mov_b32 s%d, %d\ns_mov_b32 s%d, %d\ns_mov_b32 s%d, %d" % (8 + k, k << 19, 4 + k, k << 12, 12 + k, k << 15))
        so = lambda b, k: "0" if k == 0 else "s%d" % (b + k)
        p("s_setprio %d" % self.opt.get("akprio", 0))
        self.stamp(1)
        p("s_lshl_b32 s47, s46, 2\ns_add_u32 s47, s47, %d\nv_mov_b32 v146, s47\nv_mov_b32 v147, 1" % FLG)
        p("s_waitcnt lgkmcnt(0)\ns_barrier\ns_waitcnt vmcnt(%d)" % (1 if pfa else 0))
        p("\n".join(self.kgen_pass(1)))
        self.stamp(12)
        p("v_mov_b32 v104, %d\ns_mov_b32 s57, %d\ns_waitcnt lgkmcnt(0)\ns_barrier\ns_setprio 2" % (FLG, POLL_MAX))
        self.stamp(3)

        def poll_loads():
            for k in range(4):
                p("buffer_load_dwordx4 %s, %s, s[68:71], %s offen sc1" % (vr(XD + 4 * k, 4), vr(VXD), so(8, k)))
                p("buffer_load_dwordx4 %s, %s, s[68:71], %s offen sc1" % (vr(ST + 4 * k, 4), vr(VST), so(4, k)))
                p("buffer_load_dword %s, %s, s[68:71], %s offen sc1" % (vr(CK + k), vr(VCK), so(4 if self.opt.get("ckl", 1) else 12, k)))
        poll_loads()
        p("ds_read_b32 v3, v104 offset:28")
        self.srd(64, S_OUT, 2097152)
        p("s_lshl_b32 s47, s%d, 3\ns_lshl_b32 s48, s%d, 10\ns_add_u32 s47, s47, s48\nv_lshl_add_u32 %s, v2, 13, s47\nv_lshl_add_u32 %s, v1, 11, %s" % (S_CQ, S_RHO, vr(VO), vr(VO), vr(VO)))
        p("s_and_b32 s47, s46, 1\ns_lshl_b32 s47, s47, 5\ns_lshl_b32 s48, s46, 8\ns_add_u32 s48, s48, %d\nv_lshlrev_b32 v2, 2, v0\nv_xor_b32 v2, s47, v2\nv_add_u32 %s, s48, v2" % (U0 + 1024, vr(VU)))
        p("s_lshl_b32 s47, s46, 6\ns_add_u32 s47, s47, %d\ns_movk_i32 s48, 288\nv_lshl_add_u32 v2, v1, 2, s47\nv_and_b32 v1, 48, v0\nv_add_u32 v2, v1, v2\nv_bfe_u32 v1, v0, 2, 2\nv_mad_u32_u24 %s, v1, s48, v2" % (YOFF, vr(VY)))
        p("v_mov_b32 v1, %d\ns_waitcnt lgkmcnt(0)\nv_readfirstlane_b32 s%d, v3\ns_branch A_chk" % (FLG, S_NONCE))
        p.label("A_poll")
        poll_loads()
        p.label("A_chk")
        p("s_mov_b64 s[58:59], 0")
        for k in range(4):
            p("s_waitcnt vmcnt(%d)" % (9 - 3 * k))
            if k in (0, 3):
                self.stamp(10 if k == 0 else 11)
            x, st, xf, xn, H, t = XD + 4 * k, ST + 4 * k, XF + 8 * k, XN + 8 * k, 112, 113
            NB = 114
            L = ["v_lshlrev_b32 %s, 16, %s" % (vr(NB), vr(st + 2)), "v_and_b32 %s, s%d, %s" % (vr(NB + 1), S_HI, vr(st + 2)),
                 "v_pk_mul_f32 %s, %s, %s neg_lo:[1,0] neg_hi:[1,0]" % (vr(NB, 2), vr(NB, 2), vr(st, 2))]
            for r in range(2):
                for hf in range(2):
                    a = xf + 4 * r + 2 * hf
                    L += ["v_lshlrev_b32 %s, 16, %s" % (vr(a), vr(x + 2 * r + hf)), "v_and_b32 %s, s%d, %s" % (vr(a + 1), S_HI, vr(x + 2 * r + hf)),
                          "v_pk_fma_f32 %s, %s, %s, %s op_sel:[0,%d,%d] op_sel_hi:[1,%d,%d]" % (vr(xn + 4 * r + 2 * hf, 2), vr(a, 2), vr(st, 2), vr(NB, 2), r, r, r, r)]
            for c in range(4):
                L.append("v_cvt_pk_bf16_f32 %s, %s, %s" % (vr(PK + c), vr(xn + c), vr(xn + 4 + c)))
            for c in (0, 2):
                L.append("ds_write2st64_b32 %s, %s, %s offset0:%d offset1:%d" % (vr(VU), vr(PK + c), vr(PK + c + 1), 4 * k + 20 * c, 4 * k + 20 * (c + 1)))
            L += ["v_add_u32 %s, s%d, %s" % (vr(t), S_NONCE, vr(st + 3))]
            L += self.hash_ops(x, H, t, ROT)
            L += ["v_cmp_ne_u32 vcc, %s, %s" % (vr(H), vr(CK + k)), "s_or_b64 s[58:59], s[58:59], vcc"]
            p("\n".join(schedule(L)))
        p("s_cmp_eq_u64 s[58:59], 0\ns_cbranch_scc1 A_ready\ns_sub_u32 s57, s57, 1\ns_cmp_lg_u32 s57, 0\ns_cbranch_scc1 A_poll")
        p.label("A_ready")
        if self.stamps:
            p("s_sub_u32 s%d, %d, s57" % (S_STAMP + 18, POLL_MAX + 1))
        p("ds_write_b32 v146, v147 offset:%d\ns_setprio 0" % F_U)
        self.stamp(4)
        if "U" in self.dump:
            p("s_mul_i32 s48, s46, %d\ns_add_u32 s48, s48, %d\ns_add_u32 s47, s46, 4" % (USTR, U0))
            self.dump_lds("U", "s48", 5120, "s47")
        GG, YY = 4, 116
        p("s_cmp_eq_u32 s%d, 1\ns_cbranch_scc1 A_pre1" % S_RHO)
        for rho in range(2):
            if rho:
                p.label("A_pre1")
            L = []
            for i in range(16):
                k, c = i >> 2, i & 3
                x, xn, g, t = XF + 8 * k + 4 * rho + c, XN + 8 * k + 4 * rho + c, GG + i, 104 + (i % 8)
                L += ["v_mul_f32 %s, %s, %s" % (vr(t), hx(f2u(-LOG2E)), vr(xn)), "v_exp_f32 %s, %s" % (vr(t), vr(t)),
                      "v_add_f32 %s, 1.0, %s" % (vr(t), vr(t)), "v_rcp_f32 %s, %s" % (vr(t), vr(t)),
                      "v_mul_f32 %s, %s, %s" % (vr(g), vr(xn), vr(t))]
                if rho:
                    L.append("v_mov_b32 %s, %s" % (vr(x - 4), vr(x)))
            p("\n".join(schedule(L)))
            if rho == 0:
                p("s_branch A_pre2")
        p.label("A_pre2")
        self.stamp(5)
        p("s_setprio 3")
        self.spin("A_sel", "ds_read_b32 v2, v1 offset:16\ns_waitcnt lgkmcnt(0)\nv_readfirstlane_b32 s47, v2", "s47")
        p("s_sub_u32 s47, s47, 1\ns_lshl_b32 s47, s47, 10\ns_lshl_b32 s48, s%d, 3\ns_add_u32 s47, s47, s48\nv_mov_b32 v3, 0x7ffffff0" % S_CQ)
        for k in (3, 2, 1, 0):
            p("s_sub_u32 s48, s47, %d\nv_cmp_ne_u32 vcc, s48, %s\nv_cndmask_b32 %s, v3, %s, vcc" % (k << 19, vr(VO), vr(VO + k), vr(VO)))
        halves = [(1, (0, 1, 2, 3))] if self.opt.get("onepass", 1) else [(0, (0, 1)), (1, (2, 3))]
        for half, ks in halves:
            body = "ds_read_b128 v[104:107], v1\ns_waitcnt lgkmcnt(0)\nv_min3_u32 v104, v104, v105, v106\nv_min_u32 v104, v104, v107\nv_readfirstlane_b32 s47, v104"
            if half:
                body += "\ns_lshr_b32 s47, s47, 1"
            self.spin("A_y%d" % half, body, "s47")
            self.stamp(6 if half else 2)
            for k in ks:
                for c in (0, 2):
                    p("ds_read2st64_b32 %s, %s offset0:%d offset1:%d" % (vr(YY + 4 * k + c, 2), vr(VY), 5 * k + 64 * c, 5 * k + 64 * (c + 1)))
            for n, k in enumerate(ks):
                p("s_waitcnt lgkmcnt(%d)" % (2 * (len(ks) - 1 - n)))
                y = YY + 4 * k
                for c in range(4):
                    p("v_fma_f32 %s, %s, %s, %s" % (vr(y + c), vr(y + c), vr(GG + 4 * k + c), vr(XF + 8 * k + c)))
                p("v_cvt_pk_bf16_f32 %s, %s, %s\nv_cvt_pk_bf16_f32 %s, %s, %s" % (vr(y), vr(y), vr(y + 1), vr(y + 1), vr(y + 2), vr(y + 3)))
                p("buffer_store_dwordx2 %s, %s, s[64:67], %s offen" % (vr(y, 2), vr(VO + k), so(8, k)))
        self.stamp(7)
        if self.stamps or self.opt.get("ev"):
            p("s_waitcnt vmcnt(0)")
        self.stamp(8)
        self.stamp_flush()
        p("s_endpgm")

    def role_F(self):
        self.role = 3
        p = self.p
        D, IDX, VSTA, VKEY, VSX, NON, FL = 72, 70, 71, 76, 68, 83, 77
        p.label("F_main")
        self.srd(68, S_WS, WS_SPAN)
        p("s_mov_b32 s52, 0xaaaaaaaa\ns_mov_b32 s53, s52\ns_mov_b32 s48, 0x07060302")
        p(setmask(54, lanemask(lambda l: l in (0, 20, 40, 60))))
        p("v_mov_b32 %s, %d\nv_mov_b32 v3, s45\ns_mov_b32 s47, 0x9E3779B1\ns_setprio 3" % (vr(FL), FLG))
        p("s_barrier\ns_waitcnt vmcnt(1)")
        self.stamp(1)
        for ks in range(4):
            p("ds_read_b128 %s, %s offset:%d" % (vr(4 + 4 * ks, 4), vr(VSX), 64 * ks))
        for ks in range(16):
            if ks + 4 < 16:
                p("ds_read_b128 %s, %s offset:%d" % (vr(4 + 4 * (ks + 4), 4), vr(VSX), 64 * (ks + 4)))
            p("s_waitcnt lgkmcnt(%d)" % min(4, 15 - ks))
            p("v_mfma_f32_16x16x32_bf16 %s, %s, %s, %s" % (vr(D, 4), vr(4 + 4 * ks, 4), vr(4 + 4 * ks, 4), "0" if ks == 0 else vr(D, 4)))
        self.stamp(9)
        p("s_waitcnt vmcnt(0)\nv_mul_lo_u32 %s, %s, s47\nv_add_u32 %s, 1, %s" % (vr(NON), vr(NON), vr(NON), vr(NON)))
        MEAN, VAR, TW, t, u, NB, GR = 4, 5, 6, 7, 8, 10, 80
        RS = GR
        rb = lambda r: ["v_cvt_pk_bf16_f32 %s, %s, %s" % (vr(r), vr(r), vr(r)), "v_and_b32 %s, s%d, %s" % (vr(r), S_HI, vr(r))]
        L = ["v_cndmask_b32 %s, %s, %s, s[52:53]" % (vr(VAR), vr(D), vr(D + 1)),
             "v_mul_f32 %s, %s, %s" % (vr(MEAN), hx(f2u(1 / 512)), vr(D + 2)),
             "v_mul_f32 %s, %s, %s" % (vr(VAR), hx(f2u(1 / 512)), vr(VAR)),
             "v_fma_f32 %s, -%s, %s, %s" % (vr(VAR), vr(MEAN), vr(MEAN), vr(VAR)),
             "v_max_f32 %s, 0, %s" % (vr(VAR), vr(VAR))]
        L += rb(VAR) + ["v_add_f32 %s, %s, %s" % (vr(VAR), hx(f2u(1e-5)), vr(VAR))] + rb(VAR) + rb(MEAN)
        L += ["v_sqrt_f32 %s, %s" % (vr(VAR), vr(VAR))] + rb(VAR)
        L += ["v_rcp_f32 %s, %s" % (vr(RS), vr(VAR)),
              "v_mov_b32_dpp %s, %s quad_perm:[1,1,1,1] %s" % (vr(GR + 1), vr(RS), DPPF),
              "v_mov_b32_dpp %s, %s quad_perm:[1,1,1,1] %s" % (vr(t), vr(MEAN), DPPF),
              "v_perm_b32 %s, %s, %s, s48" % (vr(GR + 2), vr(t), vr(MEAN)),
              "v_mov_b32_dpp %s, %s quad_perm:[3,3,3,3] %s" % (vr(TW), vr(D + 2), DPPF)]
        p("\n".join(schedule(L)))
        p("s_mov_b64 exec, s[54:55]\nbuffer_store_dwordx4 %s, %s, s[68:71], 0 offen sc1\ns_mov_b64 exec, -1" % (vr(GR, 4), vr(VSTA)))
        self.stamp(2)
        L = ["v_fma_f32 %s, -%s, %s, %s" % (vr(t), vr(MEAN), vr(TW), vr(D + 3)),
             "v_mul_f32 %s, %s, %s" % (vr(t), vr(t), vr(RS)),
             "v_cvt_pk_bf16_f32 %s, %s, %s" % (vr(t), vr(t), vr(t)),
             "v_ashrrev_i32 %s, 31, %s" % (vr(u), vr(t)),
             "v_or_b32 %s, 0x80000000, %s" % (vr(u), vr(u)),
             "v_xor_b32 %s, %s, %s" % (vr(t), vr(t), vr(u)),
             "v_and_or_b32 %s, %s, s%d, %s" % (vr(t), vr(t), S_HI, vr(IDX)),
             "v_max_u32_dpp %s, %s, %s quad_perm:[1,0,3,2] %s" % (vr(t), vr(t), vr(t), DPPF)]
        L += ["v_readlane_b32 s%d, %s, %d" % (47 + G, vr(t), 20 * G) for G in range(4)]
        L += ["s_max_u32 s47, s47, s48", "s_max_u32 s49, s49, s50", "s_max_u32 s47, s47, s49", "v_mov_b32 v12, s47", "v_mov_b32 v13, %s" % vr(NON),
              "v_readfirstlane_b32 s%d, %s" % (S_NONCE, vr(NON)), "ds_write_b32 %s, %s offset:28" % (vr(FL), vr(NON))]
        p("\n".join(schedule(L)))
        p("s_mov_b64 exec, 1\nbuffer_store_dwordx2 v[12:13], v3, s[68:71], 0 offen sc1\ns_mov_b64 exec, -1")
        p("v_lshlrev_b32 %s, %d, v0\nv_add_u32 %s, %d, %s" % (vr(VKEY), KSH, vr(VKEY), WS_KEY, vr(VKEY)))
        p("s_movk_i32 s58, %d\ns_movk_i32 s59, %d\ns_movk_i32 s46, %d\ns_mov_b32 s57, %d" % (64 << KSH, 128 << KSH, 192 << KSH, POLL_MAX))
        ne = self.opt.get("ne", 0)

        def key_loads():
            for i, so in enumerate(("0", "s58", "s59", "s46")):
                p("buffer_load_dwordx2 %s, %s, s[68:71], %s offen sc1" % (vr(4 + 2 * i, 2), vr(VKEY), so))

        def ffn_setup():
            VW, VWD, VTR, VTD, VXB, VQ, SG, XQ, BV = 85, 86, 87, 88, 89, 90, 92, 91, 96
            p("s_mul_i32 s50, s%d, 43\ns_add_u32 s51, s50, 43\ns_lshr_b32 s50, s50, 1\ns_lshr_b32 s51, s51, 1\ns_add_u32 s52, s50, s%d\ns_min_u32 s53, s52, 171" % (S_XCD, S_J))
            p("v_and_b32 v1, 35, v0\nv_bfe_u32 v2, v0, 2, 2\nv_lshl_add_u32 v1, v2, 3, v1\nv_bfe_u32 v14, v0, 4, 1\nv_lshl_add_u32 v1, v14, 2, v1\nv_mul_u32_u24 v1, 2752, v1\ns_lshl_b32 s47, s53, 4\nv_add_u32 %s, s47, v1" % vr(VW))
            p("s_lshl_b32 s47, s53, 13\nv_lshl_add_u32 %s, v0, 4, s47" % vr(VWD))
            p("v_mul_u32_u24 v2, %d, v2\nv_and_b32 v1, 48, v0\nv_lshl_add_u32 v2, v1, 1, v2\nv_and_b32 v14, 3, v0\nv_lshl_add_u32 v2, v14, 3, v2\nv_add_u32 %s, %d, v2" % (WDR, vr(VTD), WDL))
            p("v_and_b32 v14, 15, v0\nv_cmp_eq_u32 vcc, 1, v14\nv_mov_b32 v14, %d\nv_mov_b32 v2, %d\nv_cndmask_b32 v14, v14, v2, vcc\nv_add_u32 %s, v14, v1" % (XR, ON, vr(VXB)))
            p("v_and_b32 v1, 60, v0\nv_lshlrev_b32 v1, 2, v1\nv_and_b32 v2, 1, v0\nv_lshl_add_u32 v1, v2, 3, v1\nv_bfe_u32 v2, v0, 1, 1\ns_movk_i32 s47, %d\nv_mad_u32_u24 v1, v2, s47, v1\nv_add_u32 %s, %d, v1" % (WUL - WGL, vr(VTR), WGL))
            p("v_lshrrev_b32 v1, 4, v0\ns_lshl_b32 s47, s%d, 3\nv_lshl_add_u32 %s, v1, 1, s47" % (S_CQ, vr(VQ)))
            for i in range(8):
                p("v_mov_b64 %s, 0" % vr(BV + 2 * i, 2))
            self.srd(60, S_WG, 512 * 2752)
            self.srd(64, S_WU, 512 * 2752)
            for v in range(4):
                p(setmask(8 + 2 * v, lanemask(lambda l: (l & 15) == 4 * v + (l >> 4))))
        VW, VWD, VTR, VTD, VXB, VQ, SG, XQ, BV = 85, 86, 87, 88, 89, 90, 92, 91, 96

        def dma(i):
            for srd, base in ((60, WGL), (64, WUL)):
                p("s_mov_b32 m0, %d\ns_mov_b32 s47, %d\nbuffer_load_dwordx4 %s, %s, s47 offen lds" % (base + 1024 * i, 64 * 2752 * i, vr(VW), sr(srd, 4)))
        if ne:
            p("s_setprio 0")
            ffn_setup()
            p("s_cmp_ge_u32 s52, s51\ns_cbranch_scc1 F_b0")
            for i in range(ne):
                dma(i)
            p.label("F_b0")
        p("s_waitcnt lgkmcnt(0)")
        self.stamp(11)
        p("s_barrier")
        self.stamp(3)
        key_loads()
        if not ne:
            p("s_setprio 0")
            ffn_setup()
        n0 = max(ne, self.opt.get("n0", 8))
        p("s_setprio %d\ns_cmp_ge_u32 s52, s51\ns_cbranch_scc1 F_kwait" % self.opt.get("dprio", 0))
        for i in range(ne, n0):
            dma(i)
        p("s_setprio 3\ns_waitcnt vmcnt(%d)\ns_branch F_kchk" % (2 * (n0 - ne)))
        p.label("F_kpoll")
        key_loads()
        p.label("F_kwait")
        p("s_setprio 3\ns_waitcnt vmcnt(0)")
        p.label("F_kchk")
        p("v_xor_b32 v5, %s, v5\nv_xor_b32 v7, %s, v7\nv_xor_b32 v9, %s, v9\nv_xor_b32 v11, %s, v11\nv_or3_b32 v5, v5, v7, v9\nv_or_b32 v5, v5, v11\nv_cmp_ne_u32 vcc, 0, v5" % ((vr(NON),) * 4))
        p("v_max3_u32 v4, v4, v6, v8\nv_max_u32 v4, v4, v10")
        p("s_cmp_eq_u64 vcc, 0\ns_cbranch_scc1 F_kgot\ns_sub_u32 s57, s57, 1\ns_cmp_lg_u32 s57, 0\ns_cbranch_scc1 F_kpoll")
        p.label("F_kgot")
        for n in (8, 4, 2, 1):
            p("v_max_u32_dpp v4, v4, v4 row_ror:%d %s" % (n, DPPF))
        p("v_readlane_b32 s47, v4, 0\nv_readlane_b32 s48, v4, 16\nv_readlane_b32 s49, v4, 32\nv_readlane_b32 s54, v4, 48")
        p("s_max_u32 s47, s47, s48\ns_max_u32 s49, s49, s54\ns_max_u32 s55, s47, s49")
        p("s_and_b32 s47, s55, 0xffff\ns_sub_u32 s54, 0xffff, s47\ns_and_b32 s54, s54, 2047")
        p("s_lshl_b32 s47, s54, 10\nv_lshl_add_u32 v1, v0, 4, s47\ns_mov_b32 m0, %d\nv_add_u32 %s, s47, %s\nglobal_load_lds_dwordx4 v1, %s" % (XR, vr(VQ), vr(VQ), sr(S_X, 2)))
        p("s_lshr_b32 s48, s54, 1\ns_lshl_b32 s48, s48, 4\ns_add_u32 s48, s48, %d\nv_mov_b32 v2, s48\nbuffer_load_dwordx4 %s, v2, s[68:71], 0 offen sc1" % (WS_ST, vr(SG, 4)))
        p("global_load_ushort %s, %s, %s" % (vr(XQ), vr(VQ), sr(S_X, 2)))
        p("s_add_u32 s47, s54, 1\nv_mov_b32 v2, s47\nds_write_b32 %s, v2 offset:16" % vr(FL))
        self.stamp(4)
        p("s_cmp_ge_u32 s52, s51\ns_cbranch_scc1 F_nounit")
        if n0 < 8:
            p("s_setprio %d" % self.opt.get("dprio", 0))
            for i in range(n0, 8):
                dma(i)
        self.spin4("F_c", vr(FL), F_C, 16)
        p("s_setprio %d" % self.opt.get("fprio", 3))
        p("v_add_u32 v1, 4096, %s" % vr(VWD))
        for m in range(8):
            p("s_mov_b32 m0, %d\ns_nop 0\nglobal_load_lds_dwordx4 %s, %s offset:%d" % (WDL + WDR * m - 1024 * (m & 3), vr(VWD) if m < 4 else "v1", sr(S_WD, 2), 1024 * (m & 3)))
        self.stamp(10)
        TA, AD = 40, 112
        TBs = [4 + 4 * s if s < 4 else 20 + 4 * (s - 4) if s < 9 else 56 + 4 * (s - 9) if s < 12 else 144 + 4 * (s - 12) for s in range(16)]

        def sel_stats():
            p("s_and_b32 s47, s54, 1\ns_cmp_eq_u32 s47, 1\ns_cselect_b64 vcc, -1, 0\ns_cselect_b32 s47, 0, 16")
            p("v_cndmask_b32 %s, %s, %s, vcc\nv_lshlrev_b32 %s, s47, %s\nv_and_b32 %s, s%d, %s\nv_mul_f32 %s, -%s, %s"
              % (vr(SG), vr(SG), vr(SG + 1), vr(SG + 1), vr(SG + 2), vr(SG + 1), S_HI, vr(SG + 1), vr(SG + 1), vr(SG + 1), vr(SG)))
        p("s_waitcnt vmcnt(8)")
        self.stamp(12)
        WF = [112 + 4 * (s % 8) for s in range(16)]

        def rdW(s):
            o = 1024 * (s >> 1) + 512 * (s & 1)
            p("ds_read_b64_tr_b16 %s, %s offset:%d\nds_read_b64_tr_b16 %s, %s offset:%d\nds_read_b128 %s, %s offset:%d"
              % (vr(WF[s], 2), vr(VTR), o, vr(WF[s] + 2, 2), vr(VTR), o + 256, vr(TBs[s], 4), vr(VXB), 64 * s))
        for s in range(4):
            rdW(s)
        sel_stats()
        for s in range(16):
            if s + 4 < 16:
                rdW(s + 4)
            p("s_waitcnt lgkmcnt(%d)" % (3 * min(4, 15 - s)))
            p("v_mfma_f32_16x16x32_bf16 %s, %s, %s, %s" % (vr(D, 4), vr(WF[s], 4), vr(TBs[s], 4), "0" if s == 0 else vr(D, 4)))
        p("s_waitcnt vmcnt(0)")
        self.stamp(5)
        rdD = []
        for s in range(8):
            for hf in range(2):
                rdD.append("ds_read_b64_tr_b16 %s, %s offset:%d" % (vr(AD + 4 * s + 2 * hf, 2), vr(VTD), 128 * s + 4 * WDR * hf))
        g, u, t = 44, 48, 52
        L = []
        for r in range(4):
            L += ["v_mul_f32 %s, %s, %s" % (vr(g + r), vr(D + r), vr(SG)), "v_fmac_f32_dpp %s, %s, %s row_shl:1 %s" % (vr(g + r), vr(D + r), vr(SG + 1), DPPF)]
        L += ["v_cvt_pk_bf16_f32 v40, %s, %s" % (vr(g), vr(g + 1)), "v_cvt_pk_bf16_f32 v41, %s, %s" % (vr(g + 2), vr(g + 3)),
              "v_permlane32_swap_b32 v40, v42", "v_permlane32_swap_b32 v41, v43"]
        for q2 in range(2):
            L += ["v_lshlrev_b32 %s, 16, %s" % (vr(g + 2 * q2), vr(40 + q2)), "v_and_b32 %s, s%d, %s" % (vr(g + 2 * q2 + 1), S_HI, vr(40 + q2)),
                  "v_lshlrev_b32 %s, 16, %s" % (vr(u + 2 * q2), vr(42 + q2)), "v_and_b32 %s, s%d, %s" % (vr(u + 2 * q2 + 1), S_HI, vr(42 + q2))]
        for r in range(4):
            L += ["v_mul_f32 %s, %s, %s" % (vr(t + r), hx(f2u(-LOG2E)), vr(g + r)), "v_exp_f32 %s, %s" % (vr(t + r), vr(t + r)), "v_add_f32 %s, 1.0, %s" % (vr(t + r), vr(t + r)),
                  "v_rcp_f32 %s, %s" % (vr(t + r), vr(t + r)), "v_mul_f32 %s, %s, %s" % (vr(g + r), vr(g + r), vr(t + r))]
        for q2 in range(2):
            L += ["v_cvt_pk_bf16_f32 %s, %s, %s" % (vr(40 + q2), vr(g + 2 * q2), vr(g + 2 * q2 + 1)),
                  "v_lshlrev_b32 %s, 16, %s" % (vr(g + 2 * q2), vr(40 + q2)), "v_and_b32 %s, s%d, %s" % (vr(g + 2 * q2 + 1), S_HI, vr(40 + q2)),
                  "v_mul_f32 %s, %s, %s" % (vr(g + 2 * q2), vr(g + 2 * q2), vr(u + 2 * q2)),
                  "v_mul_f32 %s, %s, %s" % (vr(g + 2 * q2 + 1), vr(g + 2 * q2 + 1), vr(u + 2 * q2 + 1)),
                  "v_cvt_pk_bf16_f32 %s, %s, %s" % (vr(40 + q2), vr(g + 2 * q2), vr(g + 2 * q2 + 1))]
        L += ["v_readlane_b32 s%d, %s, %d" % (60 + pr, vr(40 + (pr & 1)), 16 * (pr >> 1)) for pr in range(4)]
        for i in range(4):
            L.append("s_mov_b32 s%d, 0x%08x" % (64 + i, 0x07060500 + i))
        L += ["s_lshl_b32 s47, s52, 11", "s_add_u32 s47, s47, %d" % WS_FP, "v_lshl_add_u32 v1, v0, 4, s47"]
        p("\n".join(rdD[:4] + merge_prop(schedule(L), rdD[4:])))
        for v in range(4):
            p("s_mov_b64 exec, %s\nv_mov_b64 %s, s[60:61]\nv_mov_b64 %s, s[62:63]" % (sr(8 + 2 * v, 2), vr(BV + 4 * v, 2), vr(BV + 4 * v + 2, 2)))
        p("s_mov_b64 exec, -1\ns_waitcnt lgkmcnt(0)")
        AC = 4
        for s in (0, 4, 1, 5, 2, 6, 3, 7):
            d = AC + 4 * (s >> 2)
            p("v_mfma_f32_16x16x32_bf16 %s, %s, %s, %s" % (vr(d, 4), vr(AD + 4 * s, 4), vr(BV + 4 * (s & 3), 4), "0" if (s & 3) == 0 else vr(d, 4)))
        for hh in range(2):
            for e in range(4):
                p("v_perm_b32 %s, %s, %s, s%d" % (vr(AC + 4 * hh + e), vr(AC + 4 * hh + e), vr(NON), 64 + e))
            p("buffer_store_dwordx4 %s, v1, s[68:71], 0 offen offset:%d sc1" % (vr(AC + 4 * hh, 4), 1024 * hh))
        p("s_branch F_row")
        p.label("F_nounit")
        p("s_waitcnt vmcnt(0)")
        sel_stats()
        p.label("F_row")
        self.stamp(6)
        p("s_and_b32 s47, s54, 1\ns_cmp_lg_u32 s47, s%d\ns_cbranch_scc1 F_done" % S_RHO)
        rbs = lambda r: "v_cvt_pk_bf16_f32 %s, %s, %s\nv_and_b32 %s, s%d, %s" % (r, r, r, r, S_HI, r)
        p("s_ashr_i32 s47, s55, 31\ns_not_b32 s47, s47\ns_or_b32 s47, s47, 0x80000000\ns_xor_b32 s47, s47, s55\ns_and_b32 s47, s47, 0xffff0000")
        p("v_mov_b32 v25, s47\nv_mul_f32 v25, %s, v25\nv_exp_f32 v25, v25\nv_add_f32 v25, 1.0, v25\nv_rcp_f32 v25, v25\n%s" % (hx(f2u(-LOG2E)), rbs("v25")))
        p("s_lshr_b32 s47, s54, 9\ns_mul_i32 s47, s47, %d\ns_bfe_u32 s48, s54, 0x20003\ns_mul_i32 s48, s48, 288\ns_add_u32 s47, s47, s48" % YT)
        p("s_bfe_u32 s48, s54, 0x40005\ns_lshl_b32 s48, s48, 4\ns_add_u32 s47, s47, s48\ns_bfe_u32 s48, s54, 0x20001\ns_lshl_b32 s48, s48, 2\ns_add_u32 s47, s47, s48\ns_add_u32 s47, s47, %d" % YOFF)
        p("v_lshrrev_b32 v26, 4, v0\nv_lshl_add_u32 v26, v26, 14, s47")
        p("s_lshr_b32 s47, s%d, 6\ns_lshl_b32 s47, s47, 10\ns_bfe_u32 s48, s%d, 0x40002\ns_lshl_b32 s48, s48, 4\ns_add_u32 s47, s47, s48\ns_and_b32 s48, s%d, 3\ns_lshl_b32 s48, s48, 8\ns_add_u32 s47, s47, s48\ns_add_u32 s47, s47, %d" % (S_CQ, S_CQ, S_CQ, WS_FP))
        p("v_lshl_add_u32 v27, v0, 11, s47\nv_add_u32 v28, 0x20000, v27\nv_min_u32 v29, 43, v0\nv_lshl_add_u32 v29, v29, 11, s47\nv_add_u32 v29, 0x40000, v29")
        p("s_mov_b32 s58, 0x0c0c0400\ns_mov_b32 s59, 0x04000c0c")
        if self.opt.get("pace", 0):
            self.spin("F_p", "ds_read_b32 v16, %s\ns_waitcnt lgkmcnt(0)\nv_readfirstlane_b32 s47, v16" % vr(FL), "s47")
        p("s_mov_b32 s57, %d\ns_waitcnt vmcnt(0)" % POLL_MAX)
        p("v_lshlrev_b32 %s, 16, %s\nv_fma_f32 v24, %s, %s, %s\n%s" % (vr(XQ), vr(XQ), vr(XQ), vr(SG), vr(SG + 1), rbs("v24")))
        p.label("F_poll")
        for i in range(3):
            p("buffer_load_dwordx4 %s, %s, s[68:71], 0 offen sc1" % (vr(12 + 4 * i, 4), vr(27 + i)))
        p("s_mov_b64 s[60:61], 0\ns_waitcnt vmcnt(0)")
        for i in range(3):
            b = 12 + 4 * i
            p("v_perm_b32 v30, %s, %s, s58\nv_perm_b32 v31, %s, %s, s59\nv_or_b32 v30, v30, v31\nv_cmp_ne_u32 vcc, s%d, v30\ns_or_b64 s[60:61], s[60:61], vcc"
              % (vr(b + 1), vr(b), vr(b + 3), vr(b + 2), S_NONCE))
        p("s_cmp_eq_u64 s[60:61], 0\ns_cbranch_scc1 F_got\ns_sub_u32 s57, s57, 1\ns_cmp_lg_u32 s57, 0\ns_cbranch_scc1 F_poll")
        p.label("F_got")
        self.stamp(7)
        for c in range(12):
            p("v_and_b32 %s, 0xffffff00, %s" % (vr(12 + c), vr(12 + c)))
        for c in range(4):
            p("v_add_f32 %s, %s, %s" % (vr(12 + c), vr(12 + c), vr(16 + c)))
        p("s_mov_b32 exec_hi, 0xfff")
        for c in range(4):
            p("v_add_f32 %s, %s, %s" % (vr(12 + c), vr(12 + c), vr(20 + c)))
        p("s_mov_b64 exec, -1")
        p("v_permlane32_swap_b32 v12, v14\nv_permlane32_swap_b32 v13, v15\nv_add_f32 v12, v12, v14\nv_add_f32 v13, v13, v15\nv_permlane16_swap_b32 v12, v13\nv_add_f32 v12, v12, v13")
        for n in (8, 4, 2, 1):
            p("v_add_f32_dpp v12, v12, v12 row_ror:%d %s" % (n, DPPF))
        p(rbs("v12") + "\nv_mul_f32 v12, v12, v25\n" + rbs("v12") + "\nv_add_f32 v12, v12, v24\n" + rbs("v12"))
        p("v_mul_f32 v13, %s, v12\nv_exp_f32 v13, v13\nv_add_f32 v13, 1.0, v13\nv_rcp_f32 v13, v13\nv_mul_f32 v12, v12, v13\n%s" % (hx(f2u(-LOG2E)), rbs("v12")))
        self.spin("F_y", "ds_read_b128 v[16:19], %s\ns_waitcnt lgkmcnt(0)\nv_min3_u32 v16, v16, v17, v18\nv_min_u32 v16, v16, v19\nv_readfirstlane_b32 s47, v16\ns_lshr_b32 s47, s47, 1" % vr(FL), "s47")
        p("ds_read_b32 v13, v26\ns_waitcnt lgkmcnt(0)")
        p(rbs("v13") + "\nv_mul_f32 v13, v13, v12\n" + rbs("v13") + "\nv_add_f32 v13, v13, %s\nv_cvt_pk_bf16_f32 v13, v13, v13" % vr(XQ))
        p("s_mov_b32 exec_lo, 0x00010001\ns_mov_b32 exec_hi, 0x00010001")
        p("global_store_short %s, v13, %s" % (vr(VQ), sr(S_OUT, 2)))
        p.label("F_done")
        self.stamp(8)
        self.stamp_flush()
        p.label("L_end")
        p("s_endpgm")

    def build(self, header):
        self.entry()
        self.role_F()
        self.role_C()
        self.role_A()
        body = self.p.emit()
        s = header
        s += "; @launch grid=(256,1,1) block=(576,1,1) lds=%d\n" % LDS_BYTES
        s += '.amdgcn_target "amdgcn-amd-amdhsa--gfx950"\n.text\n.globl %s\n.p2align 8\n.type %s,@function\n%s:\n' % (NAME, NAME, NAME)
        s += body
        s += "L_code_end:\n"
        s += """.section .rodata,"a"
.p2align 6
.amdhsa_kernel %s
  .amdhsa_next_free_vgpr 168
  .amdhsa_next_free_sgpr 102
  .amdhsa_accum_offset 168
  .amdhsa_group_segment_fixed_size 0
  .amdhsa_kernarg_size 136
  .amdhsa_user_sgpr_count 2
  .amdhsa_user_sgpr_kernarg_segment_ptr 1
  .amdhsa_system_sgpr_workgroup_id_x 1
.end_amdhsa_kernel
""" % NAME
        return s


if __name__ == "__main__":
    ap = argparse.ArgumentParser()
    ap.add_argument("out")
    ap.add_argument("--stamps", action="store_true")
    ap.add_argument("--dump", default="")
    ap.add_argument("--opt", default="")
    a = ap.parse_args()
    ref = open("recurrent_scan__ssm_conv_s4__moe_arch_mod__prompt.s.ref").read().split("\n")
    header = "\n".join(l for l in ref if l.startswith(";") and "@launch" not in l and not l.startswith("; Override") and not l.startswith("; grid=")) + "\n"
    opt = dict((kv.split("=")[0], int(kv.split("=")[1])) for kv in a.opt.split(",") if kv)
    g = Gen(stamps=a.stamps, dump=set(a.dump.split(",")) if a.dump else None, opt=opt)
    open(a.out, "w").write(g.build(header))
    print("wrote", a.out, "pads", g.p.npad)
```

```python
import sys, math, struct, argparse
from asmlib import Prog, vr, sr, schedule

NAME = "recurrent_scan__ssm_conv_s4__moe_arch_mod__prompt_kernel"

WS_ST = 0x1000
WS_KEY = 0x8000
KSH = 5
WS_CHK = 0x10000
WS_FP = 0x30000
WS_DBG = 0x90000
WS_XD = 0x100000
WS_DUMP = 0x400000
WS_SPAN = 0x300000

REG = 16384
TROW = 272
LO0 = 21
KC1 = 4480
FOFF = 8960
YOFF = 8960
YT = 1280
U0 = 65536
USTR = 5120
FLG = U0 + 4 * USTR
F_Y, F_SEL, F_NON, F_C, F_U, F_K = 0, 16, 28, 32, 48, 64
XR = FLG + 256
ON = XR + 1024
WGL = ON + 1024
WUL = WGL + 8192 + 128
SX = WGL
SXR = 1056
TA0 = WUL + 8192
TASTR = 53 * TROW
WDL = TA0
WDR = 1088
LDS_BYTES = TA0 + 4 * TASTR

LOG2E = 1.4426950408889634
INV2PI = 0.15915494309189535
HK = [0x9E37F1B5, 0x7B45C2D3, 0x5A8D3EE9, 0xC3A5B671]
POLL_MAX = 4000
SPIN_MAX = 200000

S_X, S_ARE, S_AIM, S_BRE, S_BIM, S_CRE, S_CIM, S_LDT = 4, 6, 8, 10, 12, 14, 16, 18
S_DSK, S_WR, S_WG, S_WU, S_WD, S_OUT, S_WS = 20, 24, 26, 28, 30, 32, 36
S_EP, S_NONCE, S_WAVE, S_XCD, S_J, S_CQ, S_RHO = 38, 39, 40, 41, 42, 43, 44
S_HI = 56
S_HK = 72
S_STAMP = 76
DPPF = "row_mask:0xf bank_mask:0xf"
PARAMS = (S_ARE, S_AIM, S_BRE, S_BIM, S_CRE, S_CIM)


def f2u(x):
    return struct.unpack("<I", struct.pack("<f", x))[0]


def hx(x):
    return "0x%08x" % (x & 0xFFFFFFFF)


def lanemask(f):
    return sum(1 << l for l in range(64) if f(l))


def setmask(reg, m):
    if reg in ("exec", "vcc"):
        return "s_mov_b32 %s_lo, %s\ns_mov_b32 %s_hi, %s" % (reg, hx(m), reg, hx(m >> 32))
    return "s_mov_b32 s%d, %s\ns_mov_b32 s%d, %s" % (reg, hx(m), reg + 1, hx(m >> 32))


def merge_prop(a, b):
    out = []
    i = j = 0
    while i < len(a) or j < len(b):
        if j >= len(b) or (i < len(a) and i * len(b) <= j * len(a)):
            out.append(a[i]); i += 1
        else:
            out.append(b[j]); j += 1
    return out


class Gen:
    def __init__(self, stamps=False, dump=None, opt=None):
        self.p = Prog()
        self.stamps = stamps
        self.dump = dump or set()
        self.opt = opt or {}
        self.role = 0

    def stamp(self, i):
        if self.opt.get("ev") == self.role * 100 + i:
            self.p("s_memrealtime s[100:101]\ns_waitcnt lgkmcnt(0)")
        if self.stamps:
            self.p("%s %s\ns_waitcnt lgkmcnt(0)" % ("s_memtime" if self.opt.get("cyc") else "s_memrealtime", sr(S_STAMP + 2 * i, 2)))

    def stamp_flush(self):
        p = self.p
        if self.opt.get("ev", -1) // 100 == self.role:
            p.label("EV_pad")
            p("s_memrealtime s[98:99]\ns_waitcnt lgkmcnt(0)\ns_sub_u32 s98, s98, s100\ns_cmp_lt_u32 s98, 2000\ns_cbranch_scc1 EV_pad")
        if not self.stamps:
            return
        p("s_mov_b64 exec, -1")
        p("s_mul_i32 s47, s2, 9\ns_add_u32 s47, s47, s%d\ns_lshl_b32 s47, s47, 6\ns_add_u32 s47, s47, %d" % (S_WAVE, WS_DBG))
        p("v_mov_b32 v2, 0")
        for i in range(13):
            p("v_writelane_b32 v2, s%d, %d" % (S_STAMP + 2 * i, i))
        p("v_mbcnt_lo_u32_b32 v1, -1, 0\nv_mbcnt_hi_u32_b32 v1, -1, v1\nv_lshl_add_u32 v1, v1, 2, s47")
        p("s_mov_b64 exec, 0xffff")
        p("global_store_dword v1, v2, %s" % sr(S_WS, 2))
        p("s_mov_b64 exec, -1")

    def dump_lds(self, tag, lds_sgpr, nbytes, slot):
        if tag not in self.dump:
            return
        p = self.p
        p("s_waitcnt lgkmcnt(0)")
        p("s_lshl_b32 s49, s2, 3\ns_add_u32 s49, s49, %s\ns_lshl_b32 s49, s49, 14\ns_add_u32 s49, s49, %d" % (slot, WS_DUMP))
        p("v_lshl_add_u32 v164, v0, 4, %s" % lds_sgpr)
        p("v_lshl_add_u32 v165, v0, 4, s49")
        for o in range(0, nbytes, 1024):
            p("ds_read_b128 v[160:163], v164 offset:%d\ns_waitcnt lgkmcnt(0)" % o)
            p("global_store_dwordx4 v165, v[160:163], %s\nv_add_u32 v165, 1024, v165\ns_nop 1" % sr(S_WS, 2))
        p("s_waitcnt vmcnt(0)")

    def nonce(self):
        self.p("s_mul_i32 s%d, s%d, 0x9E3779B1\ns_add_u32 s%d, s%d, 1" % (S_NONCE, S_EP, S_NONCE, S_NONCE))

    def hk(self):
        for k in range(4):
            self.p("s_mov_b32 s%d, %s" % (S_HK + k, hx(HK[k])))

    def hash_ops(self, G, H, HI, ROT):
        L = ["v_dot2_u32_u16 %s, %s, s%d, %s" % (vr(H), vr(G + q), S_HK + q, vr(HI if q == 0 else H)) for q in range(4)]
        L.append("v_alignbit_b32 %s, %s, %s, %s" % (vr(H), vr(H), vr(H), vr(ROT)))
        for qp in ("[1,0,3,2]", "[2,3,0,1]"):
            L.append("v_add_u32_dpp %s, %s, %s quad_perm:%s %s" % (vr(H), vr(H), vr(H), qp, DPPF))
        return L

    def srd(self, d, ptr, size):
        self.p("s_mov_b64 %s, %s\ns_mov_b32 s%d, %d\ns_mov_b32 s%d, 0x00020000" % (sr(d, 2), sr(ptr, 2), d + 2, size, d + 3))

    def spin(self, name, body, sres, sleep=1):
        p = self.p
        p("s_mov_b32 s57, %d" % SPIN_MAX)
        p.label(name + "_w")
        p(body)
        p("s_cmp_lg_u32 %s, 0\ns_cbranch_scc1 %s_g" % (sres, name))
        p("s_sleep %s\ns_sub_u32 s57, s57, 1\ns_cmp_lg_u32 s57, 0\ns_cbranch_scc1 %s_w" % (sleep, name))
        p.label(name + "_g")

    def spin4(self, name, addr, off, t, shift=0, sleep=1):
        body = "ds_read_b128 %s, %s offset:%d\ns_waitcnt lgkmcnt(0)\nv_min3_u32 %s, %s, %s, %s\nv_min_u32 %s, %s, %s\nv_readfirstlane_b32 s47, %s" % (
            vr(t, 4), addr, off, vr(t), vr(t), vr(t + 1), vr(t + 2), vr(t), vr(t), vr(t + 3), vr(t))
        if shift:
            body += "\ns_lshr_b32 s47, s47, %d" % shift
        self.spin(name, body, "s47", sleep)

    def kg_consts(self):
        self.p("s_mov_b32 s64, %s\ns_mov_b32 s65, %s\ns_mov_b32 s66, %s\ns_mov_b32 s67, %s\nv_mov_b32 v35, 0x3f80"
               % (hx(f2u(LOG2E)), hx(f2u(INV2PI)), hx(f2u(256 * LOG2E)), hx(f2u(256 * INV2PI))))

    def touch_addr(self, V):
        p = self.p
        p("s_mul_i32 s52, s%d, 43\ns_add_u32 s53, s52, 43\ns_lshr_b32 s52, s52, 1\ns_lshr_b32 s53, s53, 1" % S_XCD)
        p("s_cmp_ge_u32 s46, 2\ns_cbranch_scc1 T%d_1" % self.role)
        p("s_lshl_b32 s47, s%d, 4\nv_lshrrev_b32 v1, 2, v0\nv_add_u32 v1, s47, v1\nv_mul_u32_u24 v1, 2752, v1" % S_J)
        p("s_lshl_b32 s47, s52, 4\ns_lshl_b32 s48, s53, 4\nv_add_u32 v2, s47, v1\nv_and_b32 v2, 0xffffff80, v2\nv_add_u32 v1, s48, v1")
        p("v_and_b32 v3, 3, v0\nv_lshl_add_u32 v3, v3, 7, v2\nv_cmp_lt_u32 vcc, v3, v1\nv_cndmask_b32 %s, v2, v3, vcc" % vr(V))
        p("s_cmp_eq_u32 s46, 0\ns_cselect_b32 s60, s%d, s%d\ns_cselect_b32 s61, s%d, s%d\ns_branch T%d_3" % (S_WG, S_WU, S_WG + 1, S_WU + 1, self.role))
        p.label("T%d_1" % self.role)
        p("s_cmp_eq_u32 s46, 2\ns_cbranch_scc1 T%d_2" % self.role)
        p("s_lshl_b32 s47, s%d, 16\ns_lshl_b32 s48, s%d, 7\ns_add_u32 s47, s47, s48\nv_lshl_add_u32 %s, v0, 10, s47\ns_mov_b64 s[60:61], %s\ns_branch T%d_3" % (S_J, S_XCD, vr(V), sr(S_OUT, 2), self.role))
        p.label("T%d_2" % self.role)
        p("s_mul_i32 s47, s%d, 43\nv_min_u32 v1, 42, v0\nv_add_u32 v1, s47, v1\ns_lshl_b32 s47, s52, 13\nv_lshl_add_u32 v1, v1, 7, s47\nv_min_u32 %s, %d, v1\ns_mov_b64 s[60:61], %s"
          % (S_J, vr(V), 1376 * 1024 - 128, sr(S_WD, 2)))
        p.label("T%d_3" % self.role)

    def touch(self, where, V):
        m = self.opt.get(where, {"pf0": 0, "pf1": 4, "pf2": 0, "pf3": 0}[where])
        if m:
            self.p("s_lshr_b32 s47, %d, s46\ns_bitcmp0_b32 s47, 0\ns_cbranch_scc1 T_s%s\nglobal_load_dword v167, %s, s[60:61]" % (m, where, vr(V)))
            self.p.label("T_s%s" % where)

    def param_addr(self):
        self.p("s_lshl_b32 s48, s%d, 2\ns_add_u32 s48, s48, s46\ns_lshl_b32 s48, s48, 8\nv_lshl_add_u32 v3, v0, 1, s48\ns_lshr_b32 s49, s48, 7\nv_mov_b32 v5, s49" % S_CQ)
        self.p("v_mov_b64 v[52:53], 0\nv_mov_b64 v[72:73], 0\nv_mov_b64 v[94:95], 0\nv_mov_b32 v4, 0")

    def param_loads(self, h):
        for r, s in zip((52, 53, 72, 73, 94, 95), PARAMS):
            self.p("global_load_short_d16_hi %s, v3, %s offset:%d" % (vr(r), sr(s, 2), 128 * h))
        self.p("global_load_short_d16_hi v4, v5, %s" % sr(S_LDT, 2))

    def cmul(self, d, x, y):
        return ["v_pk_mul_f32 %s, %s, %s op_sel:[0,0] op_sel_hi:[1,0]" % (vr(d, 2), vr(x, 2), vr(y, 2)),
                "v_pk_fma_f32 %s, %s, %s, %s op_sel:[1,1,0] op_sel_hi:[0,1,1] neg_lo:[1,0,0]" % (vr(d, 2), vr(x, 2), vr(y, 2), vr(d, 2))]

    def kgen_pass(self, h):
        PRM = 4
        Z1, Z8, ZW, ZR = 52, 54, 56, 58
        LR, WR_, PR, CR, T = 70, 74, 80, 84, 92
        bc = "op_sel:[0,0] op_sel_hi:[1,0]"
        L = ["v_mul_f32 v4, s64, v4", "v_exp_f32 v4, v4", "v_cvt_pk_bf16_f32 v4, v4, v4", "v_and_b32 v4, s%d, v4" % S_HI,
             "v_pk_mul_f32 %s, %s, v[4:5] %s" % (vr(T, 2), vr(Z1, 2), bc)]
        for z, sp, t in ((Z1, 64, PR), (ZW, 66, PR + 2)):
            L += ["v_pk_mul_f32 %s, %s, %s" % (vr(t, 2), vr(T, 2), sr(sp, 2)),
                  "v_exp_f32 %s, %s" % (vr(t), vr(t)),
                  "v_fract_f32 %s, %s" % (vr(t + 1), vr(t + 1)),
                  "v_cos_f32 %s, %s" % (vr(z), vr(t + 1)),
                  "v_sin_f32 %s, %s" % (vr(z + 1), vr(t + 1)),
                  "v_pk_mul_f32 %s, %s, %s %s" % (vr(z, 2), vr(z, 2), vr(t, 2), bc)]
        L += ["v_pk_mul_f32 %s, %s, v[4:5] %s" % (vr(LR + 2, 2), vr(LR + 2, 2), bc)]
        L += self.cmul(LR, LR + 2, T + 2)
        cnt = [0, 0]

        def put(row, z, conj=False):
            c = CR + 4 * int(conj) + cnt[int(conj)] % 4
            cnt[int(conj)] += 1
            return ["v_cvt_pk_bf16_f32 %s, %s, %s%s" % (vr(c), vr(z), "-" if conj else "", vr(z + 1)),
                    "ds_write_addtid_b32 %s offset:%d" % (vr(c), row * TROW)]
        zr = {1: Z1}
        for r in range(2, 8):
            zr[r] = ZR + 2 * (r - 2)
        L += self.cmul(zr[2], Z1, Z1) + self.cmul(zr[4], zr[2], zr[2]) + self.cmul(Z8, zr[4], zr[4])
        sL, sH = [], []
        for j in range(32):
            cur, nxt = LR + 2 * (j & 1), LR + 2 * ((j + 1) & 1)
            if j < 31:
                sL += self.cmul(nxt, cur, Z8)
            sL += put(LO0 + j, cur, True)
        sH += put(1, Z1) + put(2, zr[2]) + put(4, zr[4])
        for r, (a, b) in ((3, (2, 1)), (5, (4, 1)), (6, (4, 2)), (7, (4, 3))):
            sH += self.cmul(zr[r], zr[a], zr[b]) + put(r, zr[r])
        rows_for = {1: [(8, 0), (9, 2), (10, 4), (11, 6)], 2: [(12, 0), (13, 4)], 3: [(14, 0), (15, 4)]}
        for m in range(4, 9):
            rows_for[m] = [(12 + m, 0)]
        wreg = {1: ZW}
        pc = 0
        for m in range(1, 9):
            if m > 1:
                wreg[m] = WR_ + 2 * (m % 3)
                sH += self.cmul(wreg[m], wreg[m - 1], ZW)
            for row, r in rows_for[m]:
                if r == 0:
                    sH += put(row, wreg[m])
                else:
                    t = PR + 2 * (pc & 1)
                    pc += 1
                    sH += self.cmul(t, wreg[m], zr[r]) + put(row, t)
        return schedule(L + merge_prop(sH, sL), keep_ds_order=False)

    def entry(self):
        p = self.p
        p("s_cmp_ge_u32 s2, 256\ns_cbranch_scc1 L_end")
        p("s_load_dwordx16 s[4:19], s[0:1], 0\ns_load_dwordx16 s[20:35], s[0:1], 64\ns_load_dwordx2 s[36:37], s[0:1], 128")
        if self.stamps:
            for i in range(13):
                p("s_mov_b32 s%d, 0" % (S_STAMP + 2 * i))
            p("%s %s" % ("s_memtime" if self.opt.get("cyc") else "s_memrealtime", sr(S_STAMP, 2)))
        p("v_lshrrev_b32 v1, 6, v0\nv_and_b32 v0, 63, v0\ns_and_b32 s%d, s2, 7\nv_readfirstlane_b32 s%d, v1" % (S_XCD, S_WAVE))
        p("s_lshr_b32 s%d, s2, 3\ns_lshr_b32 s%d, s2, 4\ns_lshl_b32 s45, s%d, 4\ns_add_u32 s%d, s%d, s45\ns_and_b32 s%d, s%d, 1\ns_mov_b32 s%d, 0xffff0000"
          % (S_J, S_CQ, S_XCD, S_CQ, S_CQ, S_RHO, S_J, S_HI))
        p("s_add_u32 s46, s%d, 3\ns_and_b32 s46, s46, 3\ns_lshl_b32 s47, s2, 13" % S_WAVE)
        p("s_cmp_gt_u32 s%d, 4\ns_cbranch_scc1 A_init\ns_cmp_lg_u32 s%d, 0\ns_cbranch_scc1 C_init" % (S_WAVE, S_WAVE))
        self.init_F()
        self.init_C()
        self.init_A()

    def init_F(self):
        p = self.p
        self.role = 3
        p("v_lshlrev_b32 v2, 4, v0\nv_mov_b32 v4, 0x3f803f80\nv_mov_b32 v5, v4\nv_mov_b32 v6, v4\nv_mov_b32 v7, v4\nv_add_u32 v3, %d, v2\nds_write_b128 v3, v[4:7]" % ON)
        D, IDX, VSTA, VKEY, VSX, NON, FL = 72, 70, 71, 76, 68, 83, 77
        p("v_bfe_u32 v1, v0, 2, 2\nv_and_b32 v2, 1, v0\nv_lshl_add_u32 v1, v1, 1, v2\ns_lshl_b32 s47, s2, 3\ns_sub_u32 s47, 0xffff, s47\nv_sub_u32 %s, s47, v1" % vr(IDX))
        p("v_mul_u32_u24 v1, %d, v1\nv_add_u32 %s, %d, v1\ns_mov_b32 exec_lo, 0x44444444\ns_mov_b32 exec_hi, exec_lo\nv_mov_b32 %s, %d" % (SXR, vr(VSX), SX, vr(VSX), ON))
        p("s_mov_b32 exec_lo, 0x88888888\ns_mov_b32 exec_hi, exec_lo\nv_mov_b32 %s, %d\ns_mov_b64 exec, -1" % (vr(VSX), SX + 8 * SXR))
        p("v_and_b32 v1, 48, v0\nv_add_u32 %s, v1, %s" % (vr(VSX), vr(VSX)))
        p("s_lshl_b32 s47, s2, 6\ns_add_u32 s47, s47, %d\nv_add_u32 %s, s47, v1\ns_lshl_b32 s45, s2, %d\ns_add_u32 s45, s45, %d" % (WS_ST, vr(VSTA), KSH, WS_KEY))
        p("v_lshlrev_b32 v2, 4, v0\nv_mov_b32 v3, 0\ns_mov_b32 m0, %d\ns_waitcnt lgkmcnt(0)" % (SX + 8 * SXR))
        for _ in range(self.opt.get("fdel", 0)):
            p("s_nop 15")
        p("global_load_lds_dwordx4 v2, %s\nglobal_load_dword %s, v3, %s\ns_branch F_main" % (sr(S_WR, 2), vr(NON), sr(S_WS, 2)))

    def init_C(self):
        p = self.p
        self.role = 1
        ROT, VDA, VCA, VA, VB, VYW = 107, 108, 109, 20, 21, 34
        p.label("C_init")
        p("s_setprio 2\ns_lshl_b32 s48, s46, 8\ns_add_u32 s48, s47, s48")
        p("v_and_b32 v10, 60, v0\nv_lshl_add_u32 v11, v10, 1, s48\nv_and_b32 v2, 3, v0\nv_lshl_add_u32 v11, v2, 11, v11")
        self.param_addr()
        p("s_lshl_b32 s45, s46, 14\ns_mov_b32 m0, s45")
        self.hk()
        p("v_mul_u32_u24 %s, 7, v2" % vr(ROT))
        p("s_lshl_b32 s48, s46, 11\ns_add_u32 s47, s47, s48\ns_add_u32 s47, s47, %d\nv_lshl_add_u32 %s, v0, 4, s47" % (WS_XD, vr(VDA)))
        p("s_and_b32 s47, s2, 63\ns_lshl_b32 s47, s47, 2\ns_lshr_b32 s48, s2, 6\ns_add_u32 s47, s47, s48\ns_lshl_b32 s47, s47, 6")
        p("s_lshl_b32 s48, s46, 15\ns_add_u32 s47, s47, s48\ns_add_u32 s47, s47, %d" % WS_CHK)
        p("v_lshl_add_u32 %s, v2, 14, s47\nv_add_u32 %s, v10, %s" % (vr(VCA), vr(VCA), vr(VCA)))
        p("s_lshl_b32 s47, s46, 8\ns_add_u32 s47, s47, %d\nv_mul_u32_u24 v110, %d, v2\nv_lshl_add_u32 v110, v10, 1, v110\nv_add_u32 v110, s47, v110" % (SX, 2 * SXR))
        self.kg_consts()
        p("ds_write_addtid_b32 v35 offset:0\nv_mov_b64 v[6:7], 0")
        p("s_waitcnt lgkmcnt(0)")
        self.stamp(9)
        for S in range(2):
            for r in range(2):
                p("global_load_dwordx2 %s, v11, %s offset:%d" % (vr(96 + 4 * S + 2 * r, 2), sr(S_X, 2), 1024 * r + 128 * S))
        self.param_loads(0)
        p("global_load_dword v106, v6, %s" % sr(S_WS, 2))
        p("s_mov_b64 exec, 1\nglobal_load_short_d16_hi v7, v5, %s\ns_mov_b64 exec, -1" % sr(S_DSK, 2))
        p("s_branch C_main")

    def init_A(self):
        p = self.p
        self.role = 2
        p.label("A_init")
        if self.opt.get("code"):
            p("s_getpc_b64 s[52:53]")
            p.label("A_pc")
            p("s_lshl_b32 s47, s46, 13\nv_lshl_add_u32 v1, v0, 7, s47\nv_min_u32 v1, L_code_end-A_pc-4, v1\nglobal_load_dword v10, v1, s[52:53]")
        self.param_addr()
        p("s_mul_i32 s47, s46, %d\ns_add_u32 s47, s47, %d\ns_mov_b32 m0, s47" % (TASTR, TA0))
        self.kg_consts()
        p("ds_write_addtid_b32 v35 offset:0")
        p("v_mov_b32 v12, 0\nv_mov_b32 v13, 0\nv_mov_b32 v14, 0\nv_mov_b32 v15, 0")
        p("s_mul_i32 s48, s46, %d\ns_add_u32 s48, s48, %d\nv_lshl_add_u32 v2, v0, 4, s48\nds_write_b128 v2, v[12:15]" % (USTR, U0))
        p("s_waitcnt lgkmcnt(0)")
        self.param_loads(1)
        p("s_branch A_main")

    def role_C(self):
        self.role = 1
        p = self.p
        G0, G1, H0, H1, HI, ROT, VDA, VCA = 96, 100, 104, 105, 106, 107, 108, 109
        E, VA, VB, VTAB, VF, VYW, D = 10, 20, 21, 29, 30, 34, 36
        p.label("C_main")
        self.touch_addr(19)
        p("v_and_b32 v1, 15, v0\nv_lshrrev_b32 v2, 4, v0")
        p("s_add_u32 s47, s45, 64\ns_movk_i32 s52, %d\nv_and_b32 v3, 1, v0\nv_lshl_add_u32 %s, v2, 4, s47\nv_mad_u32_u24 %s, v3, s52, %s\nv_lshlrev_b32 v3, 2, v1\nv_sub_u32 %s, %s, v3"
          % (KC1 + 4, vr(VA), vr(VA), vr(VA), vr(VA), vr(VA)))
        p("s_add_u32 s47, s45, %d\ns_movk_i32 s52, 288\nv_lshl_add_u32 %s, v1, 4, s47\nv_mad_u32_u24 %s, v2, s52, %s" % (YOFF, vr(VYW), vr(VYW), vr(VYW)))
        p("s_mul_i32 s47, s46, %d\ns_add_u32 s47, s47, %d\nv_lshl_add_u32 v1, v1, 6, s47\nv_lshl_add_u32 v1, v2, 4, v1\nv_xor_b32 v2, 32, v1" % (USTR, U0 + 64))
        for kk in range(4):
            m = lanemask(lambda l: ((8 - kk + (l & 15)) >> 2) & 1)
            p("s_mov_b32 vcc_lo, %s\ns_mov_b32 vcc_hi, vcc_lo" % hx(m))
            p("v_cndmask_b32 %s, v1, v2, vcc\nv_cndmask_b32 %s, v2, v1, vcc" % (vr(VB + kk), vr(VB + kk + 4)))
        p("v_and_b32 v1, 31, v0\nv_lshrrev_b32 v2, 5, v0")
        p("s_movk_i32 s52, %d\nv_lshl_add_u32 %s, v2, 4, s45\nv_mad_u32_u24 %s, v1, s52, %s" % (TROW, vr(VTAB), vr(VTAB), vr(VTAB)))
        p("s_add_u32 s48, s45, %d\ns_add_u32 s47, s%d, 2048\ns_sub_u32 s59, s48, %d" % (FOFF, S_RHO, 4 * 0x4280 + 4))
        p("v_lshl_add_u32 %s, v2, 4, s48\nv_lshl_add_u32 %s, v1, 5, %s" % (vr(VF), vr(VF), vr(VF)))
        p("s_movk_i32 s52, 248\nv_sub_u32 v3, 4, v2\nv_lshlrev_b32 v3, v3, v1\nv_lshl_add_u32 v9, v2, 9, s48\nv_add_u32 %s, v3, v9\nv_mad_u32_u24 %s, v2, s52, %s\nv_lshl_add_u32 %s, v1, 2, v9"
           % (vr(VF + 1), vr(VF + 2), vr(VF + 1), vr(VF + 3)))
        p("v_lshlrev_b32 v1, 1, v0\nv_sub_u32 v1, s47, v1\nv_cvt_f32_u32 v1, v1")
        for n, k in enumerate((7, 11, 13)):
            p("v_add_f32 v2, %s, v1\nv_add_f32 v3, %s, v1\nv_cvt_pk_bf16_f32 v2, v2, v3" % (hx(f2u(-128.0 * k)), hx(f2u(-128.0 * k - 1))))
            p("v_mad_u32_u16 %s, v2, 4, s59\nv_cmp_eq_u32_sdwa %s, v2, v2 src0_sel:WORD_0 src1_sel:WORD_1" % (vr(E + n), sr(4 + 2 * n, 2)))
        p("s_lshl_b32 s47, s%d, 2\ns_add_u32 s47, s47, s48\ns_add_u32 s52, s47, 508\ns_sub_u32 s54, s48, 8\ns_mov_b32 s10, s%d\ns_mov_b32 s11, 0" % (S_RHO, S_RHO))
        p("v_lshlrev_b32 v1, 3, v0\nv_sub_u32 %s, s52, v1\nv_add_u32 v1, -512, %s\nv_max_i32 %s, s54, v1" % (vr(E + 3), vr(E + 3), vr(E + 4)))
        p("s_lshl_b32 s47, s46, 2\ns_add_u32 s47, s47, %d\nv_mov_b32 v15, s47\nv_mov_b32 v16, 1\nv_mov_b32 v17, 2\nv_mov_b32 v18, %d" % (FLG, FLG))
        p("s_mul_i32 s47, s46, %d\ns_add_u32 s47, s47, %d\ns_sub_u32 s47, s47, s45\nv_add_u32 v8, s47, %s" % (TASTR, TA0, vr(VTAB)))
        p("s_mov_b32 vcc_lo, 0x22222222\ns_mov_b32 vcc_hi, vcc_lo\ns_mov_b32 s52, 0x33333333\ns_mov_b32 s53, s52")
        p("s_mov_b32 s47, %s\ns_waitcnt vmcnt(11)" % hx(2 * 0x9E3779B1))
        p("ds_write2_b64 v110, %s, %s offset0:0 offset1:%d" % (vr(G0, 2), vr(G0 + 2, 2), SXR // 8))
        p("global_store_dwordx4 %s, %s, %s sc1" % (vr(VDA), vr(G0, 4), sr(S_WS, 2)))
        p("s_waitcnt vmcnt(10)")
        p("ds_write2_b64 v110, %s, %s offset0:16 offset1:%d" % (vr(G1, 2), vr(G1 + 2, 2), SXR // 8 + 16))
        p("global_store_dwordx4 %s, %s, %s offset:1024 sc1" % (vr(VDA), vr(G1, 4), sr(S_WS, 2)))
        p("s_waitcnt lgkmcnt(0)\ns_barrier")
        self.stamp(1)
        p("s_setprio %d\ns_waitcnt vmcnt(4)" % self.opt.get("ckprio", 1))
        self.stamp(2)
        FR = 96
        body = self.kgen_pass(0)
        cut0 = self.opt.get("hat", 30)
        p("\n".join(body[:cut0]))
        body = body[cut0:]
        p("s_waitcnt vmcnt(3)\nv_mul_lo_u32 %s, %s, s47\nv_add_u32 %s, 2, %s" % (vr(HI), vr(HI), vr(HI), vr(HI)))
        p("\n".join(schedule(self.hash_ops(G0, H0, HI, ROT) + self.hash_ops(G1, H1, HI, ROT))))
        p("v_cndmask_b32 %s, %s, %s, vcc\ns_mov_b64 exec, s[52:53]" % (vr(H0), vr(H0), vr(H1)))
        p("global_store_dword %s, %s, %s sc1" % (vr(VCA), vr(H0), sr(S_WS, 2)))
        p("s_mov_b64 exec, -1")
        self.touch("pf0", 19)
        cut = self.opt.get("pfat", 10)
        p("\n".join(body[:cut]))
        self.touch("pf1", 19)
        sw = self.opt.get("psw", 0)
        if sw:
            p("\n".join(body[cut:sw]))
            p("s_setprio %d" % self.opt.get("ckprio2", 0))
            cut = sw
        p("\n".join(body[cut:]))

        def tab_read(h, ks):
            a = vr(8 if h else VTAB)
            p("ds_read_b128 %s, %s offset:%d" % (vr(FR + 8 * ks, 4), a, 32 * ks))
            p("ds_read_b128 %s, %s offset:%d" % (vr(FR + 8 * ks + 4, 4), a, LO0 * TROW + 32 * ks))

        def mf(h, ks):
            c = "0" if (h == 0 and ks == 0) else vr(D, 16)
            return "v_mfma_f32_32x32x16_bf16 %s, %s, %s, %s" % (vr(D, 16), vr(FR + 8 * ks, 4), vr(FR + 8 * ks + 4, 4), c)
        late = self.opt.get("late", 1)
        tail = "v_mov_b64 v[2:3], 0\nv_mov_b32 v1, s54"
        if late:
            seq = [(0, ks) for ks in range(8)] + [(1, ks) for ks in range(8)]
            for n in range(6):
                tab_read(*seq[n])
            p(tail)
            self.stamp(11)
            p("s_barrier")
            for n in range(16):
                if n + 6 < 16:
                    tab_read(*seq[n + 6])
                p("s_waitcnt lgkmcnt(%d)" % (2 * min(6, 15 - n)))
                p(mf(*seq[n]))
            p("ds_write_b64 v1, v[2:3]")
        else:
            for ks in range(8):
                tab_read(0, ks)
            p(tail)
            for ks in range(8):
                p("s_waitcnt lgkmcnt(%d)" % (14 - 2 * ks))
                p(mf(0, ks))
            self.stamp(11)
            p("s_barrier")
            for ks in range(8):
                tab_read(1, ks)
            p("ds_write_b64 v1, v[2:3]")
            for ks in range(8):
                p("s_waitcnt lgkmcnt(%d)" % (15 - 2 * ks))
                p(mf(1, ks))
        self.stamp(3)
        p("s_waitcnt vmcnt(%d)\nv_add_f32 %s, %s, v7" % (3, vr(D), vr(D)))
        p("ds_write_b128 %s, %s" % (vr(VF), vr(D, 4)))
        p("ds_write_b64 %s, %s offset:1024\nds_write_b64 %s, %s offset:1032" % (vr(VF + 1), vr(D + 4, 2), vr(VF + 2), vr(D + 6, 2)))
        q = []

        def issue(line, tag=None):
            p(line)
            q.append(tag)

        def wait_for(tags):
            last = max(i for i, t in enumerate(q) if t in tags)
            p("s_waitcnt lgkmcnt(%d)" % min(len(q) - 1 - last, 15))
        src = {}
        for k in range(8):
            src[k] = (E, 16 * (7 - k), 4)
        for k in range(8, 12):
            src[k] = (E + 1, 32 * (11 - k), 6)
        for k in range(12, 14):
            src[k] = (E + 2, 64 * (13 - k), 8)
        src[14] = (E + 3, 128, None)
        src[15] = (E + 3, 0, None)
        src[16] = (E + 4, 0, None)
        npass = self.opt.get("npass", 2)
        deleg = self.opt.get("deleg", 0) and npass > 1
        order = list(range(16, 7 if deleg else -1, -1))
        LA = 4

        def rd(k):
            a, o, _ = src[k]
            issue("ds_read2_b32 %s, %s offset0:%d offset1:%d" % (vr(96 + 2 * k, 2), vr(a), o, o + 1), ("e", k))
        for k in order[:LA]:
            rd(k)
        for r in range(4):
            issue("ds_write_b32 %s, %s offset:%d" % (vr(VF + 3), vr(D + 8 + r), 2048 + 128 * r))
        issue("ds_write_b32 v15, v16 offset:%d" % F_C)
        for i, k in enumerate(order):
            if i % 2 == 0:
                wait_for({("e", kk) for kk in order[i:i + 2]})
            a = 96 + 2 * k
            if src[k][2]:
                p("v_cndmask_b32 %s, %s, %s, %s" % (vr(a), vr(a), vr(a + 1), sr(src[k][2], 2)))
            if k == 14:
                p("v_cndmask_b32 %s, %s, %s, s[10:11]" % (vr(a + 1), vr(a + 1), vr(a)))
            p("v_cvt_pk_bf16_f32 %s, %s, %s" % (vr(132 + k), vr(a + 1), vr(a)))
            if i + LA < len(order):
                rd(order[i + LA])
            issue("ds_write_addtid_b32 %s offset:%d" % (vr(132 + k), 256 * k))
            issue("ds_write_addtid_b32 %s offset:%d" % (vr(132 + k), KC1 + 4 + 256 * k))
        self.dump_lds("K", "s45", 12288, "s46")
        ACC, BUF = 48, 64
        one = npass == 1
        passes = {1: [(0, 1, 2, 3)], 2: [(0, 1), (2, 3)], 3: [(0, 1), (2,), (3,)]}[npass]
        stages = [(k0, js, tuple(range(4 - js[0]))) for js in passes for k0 in range(16)]
        SZ, NA = (32, 4) if one else (24, 2)
        areg = lambda s, j: BUF + SZ * (s % 3) + 4 * (j % NA)
        breg = lambda s, x: BUF + SZ * (s % 3) + 4 * NA + 4 * x

        def rdA(s, j):
            o = 4032 - 64 * stages[s][0] - 1024 * j
            return [("ds_read_b64 %s, %s offset:%d" % (vr(areg(s, j), 2), vr(VA), o), s), ("ds_read_b64 %s, %s offset:%d" % (vr(areg(s, j) + 2, 2), vr(VA), o + 8), s)]

        def rdB(s, x):
            k0 = stages[s][0]
            return [("ds_read_b128 %s, %s offset:%d" % (vr(breg(s, x), 4), vr(VB + (k0 & 7)), 1024 * x + 512 * (1 - (k0 >> 3)) + 448 - 64 * (k0 & 7)), s)]

        def reads(s):
            _, js, qs = stages[s]
            return sum((rdA(s, j) for j in js), []) + sum((rdB(s, x) for x in qs), [])
        if one:
            p("s_waitcnt lgkmcnt(0)")
        for s in (0, 1):
            for j in stages[s][1]:
                for l, t in rdA(s, j):
                    issue(l, t)
        self.touch("pf3", 19)
        p("s_waitcnt lgkmcnt(0)")
        q.clear()
        self.stamp(4)
        self.spin4("C_u", "v18", F_U, 4, sleep=0)
        p("s_setprio %d" % self.opt.get("cprio", 2))
        self.stamp(5)
        for s in (0, 1):
            for x in range(4):
                for l, t in rdB(s, x):
                    issue(l, t)
        first = set()
        pending = []

        def ywrite(tiles, val):
            for T in tiles:
                issue("ds_write_b128 %s, %s offset:%d" % (vr(VYW), vr(ACC + 4 * T, 4), YT * T))
            issue("ds_write_b32 v15, %s" % vr(val))
        for s, (k0, js, qs) in enumerate(stages):
            if deleg and s == 12:
                issue("ds_read_b32 v4, v15 offset:%d" % F_K, 14)
            nxt = reads(s + 2) if s + 2 < len(stages) else []
            wait_for({s})
            if deleg and s == 14:
                p("v_readfirstlane_b32 s47, v4\ns_cmp_lg_u32 s47, 0\ns_cbranch_scc1 C_k_g")
                self.spin("C_k", "ds_read_b32 v4, v15 offset:%d\ns_waitcnt lgkmcnt(0)\nv_readfirstlane_b32 s47, v4" % F_K, "s47", 0)
            mm = [(j, x) for j in js for x in qs if j + x < 4]
            if k0 == 15:
                mm.sort(key=lambda a: (a[0] + a[1] > js[-1], a[0] + a[1]))
            elif len(mm) == 3:
                mm = [(2, 1), (2, 0), (3, 0)]
            tot, done = len(nxt), 0
            for m, (j, x) in enumerate(mm):
                T = j + x
                c = vr(ACC + 4 * T, 4) if T in first else "0"
                first.add(T)
                p("v_mfma_f32_16x16x32_bf16 %s, %s, %s, %s" % (vr(ACC + 4 * T, 4), vr(areg(s, j), 4), vr(breg(s, x), 4), c))
                while done < -(-tot * (m + 1) // len(mm)):
                    issue(*nxt.pop(0))
                    done += 1
            if pending and (k0 == 1 or len(mm) > 2):
                ywrite(*pending.pop())
            if k0 == 15 and s + 1 < len(stages):
                pending.append((js, 16 if js[0] == 0 else 17))
        self.stamp(6)
        p("v_mov_b32 v17, 4")
        ywrite(passes[-1], 17)
        p("s_or_b32 s47, s2, s46\ns_cmp_lg_u32 s47, 0\ns_cbranch_scc1 C_end")
        p("ds_read_b32 v4, v18 offset:%d\nv_mov_b32 v5, 0\ns_waitcnt lgkmcnt(0)\nglobal_store_dword v5, v4, %s" % (F_NON, sr(S_WS, 2)))
        p.label("C_end")
        self.stamp(7)
        self.stamp_flush()
        p("s_endpgm")

    def role_A(self):
        self.role = 2
        p = self.p
        ROT, VXD, VCK, VST, VU, VY, VO = 136, 137, 138, 139, 140, 141, 142
        XD, ST, CK, XF, XN, PK = 4, 20, 36, 40, 72, 104
        p.label("A_main")
        pfa = self.opt.get("pfa", 3)
        if pfa:
            self.touch_addr(11)
            p("s_lshr_b32 s47, %d, s46\ns_bitcmp1_b32 s47, 0\ns_cbranch_scc1 A_pf\nv_mov_b32 v11, 0" % pfa)
            p.label("A_pf")
            p("global_load_dword v10, v11, s[60:61]")
        p("v_and_b32 v2, 7, v0\nv_lshlrev_b32 v2, 4, v2\nv_add_u32 v2, %d, v2\nds_write_b128 v2, v[12:15]" % FLG)
        self.hk()
        self.srd(68, S_WS, WS_SPAN)
        p("v_and_b32 v1, 3, v0\nv_lshrrev_b32 v2, 2, v0\ns_lshl_b32 s47, s46, 4\nv_add_u32 v2, s47, v2\nv_mul_u32_u24 %s, 7, v1" % vr(ROT))
        p("s_lshl_b32 s47, s%d, 6\ns_add_u32 s47, s47, %d\nv_lshl_add_u32 %s, v2, 13, s47\nv_lshl_add_u32 %s, v1, 4, %s" % (S_CQ, WS_XD, vr(VXD), vr(VXD), vr(VXD)))
        p("s_lshr_b32 s47, s%d, 4\ns_lshl_b32 s47, s47, 2\ns_add_u32 s47, s47, s46\ns_lshl_b32 s47, s47, 12\ns_and_b32 s48, s%d, 15\ns_lshl_b32 s48, s48, 2\ns_add_u32 s47, s47, s48\ns_add_u32 s47, s47, %d\nv_lshl_add_u32 %s, v0, 6, s47" % (S_CQ, S_CQ, WS_CHK, vr(VCK)))
        p("s_lshl_b32 s47, s46, 10\ns_add_u32 s47, s47, %d\nv_lshl_add_u32 %s, v0, 4, s47" % (WS_ST, vr(VST)))
        p("s_mov_b32 s12, 0x11111111\ns_mov_b32 s13, s12")
        for k in range(1, 4):
            p("s_mov_b32 s%d, %d\ns_mov_b32 s%d, %d\ns_mov_b32 s%d, 0x%08x\ns_mov_b32 s%d, s%d" % (8 + k, k << 19, 4 + k, k << 12, 12 + 2 * k, 0x11111111 << k, 13 + 2 * k, 12 + 2 * k))
        so = lambda b, k: "0" if k == 0 else "s%d" % (b + k)
        p("s_setprio %d" % self.opt.get("akprio", 0))
        self.stamp(1)
        p("s_lshl_b32 s47, s46, 2\ns_add_u32 s47, s47, %d\nv_mov_b32 v146, s47\nv_mov_b32 v147, 1" % FLG)
        p("s_waitcnt lgkmcnt(0)\ns_barrier\ns_waitcnt vmcnt(%d)" % (1 if pfa else 0))
        p("\n".join(self.kgen_pass(1)))
        self.stamp(12)
        p("v_mov_b32 v104, %d\ns_mov_b32 s57, %d\ns_waitcnt lgkmcnt(0)\ns_barrier\ns_setprio 2" % (FLG, POLL_MAX))
        self.stamp(3)

        def poll_loads(fill=None):
            for k in range(4):
                p("buffer_load_dwordx4 %s, %s, s[68:71], %s offen sc1" % (vr(XD + 4 * k, 4), vr(VXD), so(8, k)))
                p("buffer_load_dwordx4 %s, %s, s[68:71], %s offen sc1" % (vr(ST + 4 * k, 4), vr(VST), so(4, k)))
                if fill:
                    p("\n".join(fill[k]))
            p("buffer_load_dword %s, %s, s[68:71], 0 offen sc1" % (vr(CK), vr(VCK)))
        q0 = Prog()
        q0("ds_read_b32 v3, v104 offset:28")
        q0("s_mov_b64 s[64:65], %s\ns_mov_b32 s66, 2097152\ns_mov_b32 s67, 0x00020000" % sr(S_OUT, 2))
        q0("s_lshl_b32 s47, s%d, 3\ns_lshl_b32 s48, s%d, 10\ns_add_u32 s47, s47, s48\nv_lshl_add_u32 %s, v2, 13, s47\nv_lshl_add_u32 %s, v1, 11, %s" % (S_CQ, S_RHO, vr(VO), vr(VO), vr(VO)))
        q0("s_and_b32 s47, s46, 1\ns_lshl_b32 s47, s47, 5\ns_lshl_b32 s48, s46, 8\ns_add_u32 s48, s48, %d\nv_lshlrev_b32 v2, 2, v0\nv_xor_b32 v2, s47, v2\nv_add_u32 %s, s48, v2" % (U0 + 1024, vr(VU)))
        q0("s_lshl_b32 s47, s46, 6\ns_add_u32 s47, s47, %d\ns_movk_i32 s48, 288\nv_lshl_add_u32 v2, v1, 2, s47\nv_and_b32 v1, 48, v0\nv_add_u32 v2, v1, v2\nv_bfe_u32 v1, v0, 2, 2\nv_mad_u32_u24 %s, v1, s48, v2" % (YOFF, vr(VY)))
        n = len(q0.lines)
        if self.opt.get("ilv", 1):
            poll_loads([q0.lines[n * k // 3:n * (k + 1) // 3] for k in range(3)] + [["s_nop 0"]])
        else:
            poll_loads()
            p("\n".join(q0.lines))
        p("v_mov_b32 v1, %d\ns_waitcnt lgkmcnt(0)\nv_readfirstlane_b32 s%d, v3" % (FLG, S_NONCE))

        def norm_ops(k):
            x, st, xf, xn, NB = XD + 4 * k, ST + 4 * k, XF + 8 * k, XN + 8 * k, 114
            L = ["v_lshlrev_b32 %s, 16, %s" % (vr(NB), vr(st + 2)), "v_and_b32 %s, s%d, %s" % (vr(NB + 1), S_HI, vr(st + 2)),
                 "v_pk_mul_f32 %s, %s, %s neg_lo:[1,0] neg_hi:[1,0]" % (vr(NB, 2), vr(NB, 2), vr(st, 2))]
            for r in range(2):
                for hf in range(2):
                    a = xf + 4 * r + 2 * hf
                    L += ["v_lshlrev_b32 %s, 16, %s" % (vr(a), vr(x + 2 * r + hf)), "v_and_b32 %s, s%d, %s" % (vr(a + 1), S_HI, vr(x + 2 * r + hf)),
                          "v_pk_fma_f32 %s, %s, %s, %s op_sel:[0,%d,%d] op_sel_hi:[1,%d,%d]" % (vr(xn + 4 * r + 2 * hf, 2), vr(a, 2), vr(st, 2), vr(NB, 2), r, r, r, r)]
            for c in range(4):
                L.append("v_cvt_pk_bf16_f32 %s, %s, %s" % (vr(PK + c), vr(xn + c), vr(xn + 4 + c)))
            for c in (0, 2):
                L.append("ds_write2st64_b32 %s, %s, %s offset0:%d offset1:%d" % (vr(VU), vr(PK + c), vr(PK + c + 1), 4 * k + 20 * c, 4 * k + 20 * (c + 1)))
            return L

        def chk_ops(k, H):
            return ["v_add_u32 v113, s%d, %s" % (S_NONCE, vr(ST + 4 * k + 3))] + self.hash_ops(XD + 4 * k, H, 113, ROT)
        for k in range(4):
            p("s_waitcnt vmcnt(%d)" % (7 - 2 * k))
            if k in (0, 3):
                self.stamp(10 if k == 0 else 11)
            L = norm_ops(k) + chk_ops(k, 112 if k else 37)
            if k:
                L += ["v_cndmask_b32 v37, v37, v112, %s" % sr(12 + 2 * k, 2)]
            p("\n".join(schedule(L)))
        p("s_waitcnt vmcnt(0)\nv_cmp_ne_u32 s[58:59], v37, %s" % vr(CK))
        p("s_cmp_eq_u64 s[58:59], 0\ns_cbranch_scc1 A_ready")
        for k in range(4):
            p("s_and_b64 s[48:49], s[58:59], %s\ns_cbranch_scc0 A_r%d_ok" % (sr(12 + 2 * k, 2), k))
            p.label("A_r%d" % k)
            p("buffer_load_dwordx4 %s, %s, s[68:71], %s offen sc1" % (vr(XD + 4 * k, 4), vr(VXD), so(8, k)))
            p("buffer_load_dwordx4 %s, %s, s[68:71], %s offen sc1" % (vr(ST + 4 * k, 4), vr(VST), so(4, k)))
            p("buffer_load_dword %s, %s, s[68:71], 0 offen sc1" % (vr(CK), vr(VCK)))
            p("s_sub_u32 s57, s57, 1\ns_cmp_eq_u32 s57, 0\ns_cbranch_scc1 A_ready\ns_waitcnt vmcnt(0)")
            p("\n".join(chk_ops(k, 112)))
            p("v_cmp_ne_u32 vcc, v112, %s\ns_and_b64 s[48:49], vcc, %s\ns_cbranch_scc1 A_r%d" % (vr(CK), sr(12 + 2 * k, 2), k))
            p("\n".join(schedule(norm_ops(k))))
            p.label("A_r%d_ok" % k)
        p.label("A_ready")
        if self.stamps:
            p("s_sub_u32 s%d, %d, s57" % (S_STAMP + 18, POLL_MAX + 1))
        p("ds_write_b32 v146, v147 offset:%d\ns_setprio 0" % F_U)
        self.stamp(4)
        if "U" in self.dump:
            p("s_mul_i32 s48, s46, %d\ns_add_u32 s48, s48, %d\ns_add_u32 s47, s46, 4" % (USTR, U0))
            self.dump_lds("U", "s48", 5120, "s47")
        npass = self.opt.get("npass", 2)
        if self.opt.get("deleg", 0) and npass > 1:
            p("s_lshl_b32 s45, s46, 14\ns_mov_b32 m0, s45\ns_add_u32 s48, s45, %d\ns_add_u32 s47, s%d, %d" % (FOFF - 4 * 0x4280 - 4, S_RHO, 2048 - 896))
            p("v_lshlrev_b32 v2, 1, v0\nv_sub_u32 v2, s47, v2\nv_cvt_f32_u32 v2, v2\nv_add_f32 v3, -1.0, v2\nv_cvt_pk_bf16_f32 v2, v2, v3")
            p("v_mad_u32_u16 v3, v2, 4, s48\nv_cmp_eq_u32_sdwa s[58:59], v2, v2 src0_sel:WORD_0 src1_sel:WORD_1")
            self.spin("A_c", "ds_read_b32 v2, v146 offset:%d\ns_waitcnt lgkmcnt(0)\nv_readfirstlane_b32 s47, v2" % F_C, "s47")
            for k in range(8):
                p("ds_read2_b32 %s, v3 offset0:%d offset1:%d" % (vr(116 + 2 * k, 2), 16 * (7 - k), 16 * (7 - k) + 1))
            for k in range(8):
                a = 116 + 2 * k
                if k % 2 == 0:
                    p("s_waitcnt lgkmcnt(%d)" % (6 + k))
                p("v_cndmask_b32 %s, %s, %s, s[58:59]\nv_cvt_pk_bf16_f32 %s, %s, %s" % (vr(a), vr(a), vr(a + 1), vr(a), vr(a + 1), vr(a)))
                p("ds_write_addtid_b32 %s offset:%d\nds_write_addtid_b32 %s offset:%d" % (vr(a), 256 * k, vr(a), KC1 + 4 + 256 * k))
            p("ds_write_b32 v146, v147 offset:%d" % F_K)
        GG, YY = 4, 116
        p("s_cmp_eq_u32 s%d, 1\ns_cbranch_scc1 A_pre1" % S_RHO)
        for rho in range(2):
            if rho:
                p.label("A_pre1")
            L = []
            for i in range(16):
                k, c = i >> 2, i & 3
                x, xn, g, t = XF + 8 * k + 4 * rho + c, XN + 8 * k + 4 * rho + c, GG + i, 104 + (i % 8)
                L += ["v_mul_f32 %s, %s, %s" % (vr(t), hx(f2u(-LOG2E)), vr(xn)), "v_exp_f32 %s, %s" % (vr(t), vr(t)),
                      "v_add_f32 %s, 1.0, %s" % (vr(t), vr(t)), "v_rcp_f32 %s, %s" % (vr(t), vr(t)),
                      "v_mul_f32 %s, %s, %s" % (vr(g), vr(xn), vr(t))]
                if rho:
                    L.append("v_mov_b32 %s, %s" % (vr(x - 4), vr(x)))
            p("\n".join(schedule(L)))
            if rho == 0:
                p("s_branch A_pre2")
        p.label("A_pre2")
        self.stamp(5)
        p("s_setprio 3")
        self.spin("A_sel", "ds_read_b32 v2, v1 offset:16\ns_waitcnt lgkmcnt(0)\nv_readfirstlane_b32 s47, v2", "s47")
        p("s_sub_u32 s47, s47, 1\ns_lshl_b32 s47, s47, 10\ns_lshl_b32 s48, s%d, 3\ns_add_u32 s47, s47, s48\nv_mov_b32 v3, 0x7ffffff0" % S_CQ)
        for k in (3, 2, 1, 0):
            p("s_sub_u32 s48, s47, %d\nv_cmp_ne_u32 vcc, s48, %s\nv_cndmask_b32 %s, v3, %s, vcc" % (k << 19, vr(VO), vr(VO + k), vr(VO)))
        halves = {1: [(2, (0, 1, 2, 3))], 2: [(0, (0, 1)), (2, (2, 3))], 3: [(0, (0, 1)), (1, (2,)), (2, (3,))]}[npass]
        for half, ks in halves:
            self.spin4("A_y%d" % half, "v1", F_Y, 104, shift=half, sleep=(0 if half == 2 and npass > 1 else 1))
            if half != 1:
                self.stamp(6 if half else 2)
            for k in ks:
                for c in (0, 2):
                    p("ds_read2st64_b32 %s, %s offset0:%d offset1:%d" % (vr(YY + 4 * k + c, 2), vr(VY), 5 * k + 64 * c, 5 * k + 64 * (c + 1)))
            for n, k in enumerate(ks):
                p("s_waitcnt lgkmcnt(%d)" % (2 * (len(ks) - 1 - n)))
                y = YY + 4 * k
                for c in range(4):
                    p("v_fma_f32 %s, %s, %s, %s" % (vr(y + c), vr(y + c), vr(GG + 4 * k + c), vr(XF + 8 * k + c)))
                p("v_cvt_pk_bf16_f32 %s, %s, %s\nv_cvt_pk_bf16_f32 %s, %s, %s" % (vr(y), vr(y), vr(y + 1), vr(y + 1), vr(y + 2), vr(y + 3)))
                p("buffer_store_dwordx2 %s, %s, s[64:67], %s offen" % (vr(y, 2), vr(VO + k), so(8, k)))
        self.stamp(7)
        if self.stamps or self.opt.get("ev"):
            p("s_waitcnt vmcnt(0)")
        self.stamp(8)
        self.stamp_flush()
        p("s_endpgm")

    def role_F(self):
        self.role = 3
        p = self.p
        D, IDX, VSTA, VKEY, VSX, NON, FL = 72, 70, 71, 76, 68, 83, 77
        p.label("F_main")
        VW, VWD, VTR, VTD, VXB, VQ, SG, XQ, BV = 85, 86, 87, 88, 89, 90, 92, 91, 96
        p("s_mul_i32 s16, s%d, 43\ns_add_u32 s17, s16, 43\ns_lshr_b32 s16, s16, 1\ns_lshr_b32 s17, s17, 1\ns_add_u32 s18, s16, s%d\ns_min_u32 s19, s18, 171" % (S_XCD, S_J))
        p("v_and_b32 v1, 35, v0\nv_bfe_u32 v2, v0, 2, 2\nv_lshl_add_u32 v1, v2, 3, v1\nv_bfe_u32 v14, v0, 4, 1\nv_lshl_add_u32 v1, v14, 2, v1\nv_mul_u32_u24 v1, 2752, v1\ns_lshl_b32 s47, s19, 4\nv_add_u32 %s, s47, v1" % vr(VW))
        p("s_lshl_b32 s47, s19, 13\nv_lshl_add_u32 %s, v0, 4, s47" % vr(VWD))
        p("v_mul_u32_u24 v2, %d, v2\nv_and_b32 v1, 48, v0\nv_lshl_add_u32 v2, v1, 1, v2\nv_and_b32 v14, 3, v0\nv_lshl_add_u32 v2, v14, 3, v2\nv_add_u32 %s, %d, v2" % (WDR, vr(VTD), WDL))
        p("v_and_b32 v14, 15, v0\nv_cmp_eq_u32 vcc, 1, v14\nv_mov_b32 v14, %d\nv_mov_b32 v2, %d\nv_cndmask_b32 v14, v14, v2, vcc\nv_add_u32 %s, v14, v1" % (XR, ON, vr(VXB)))
        p("v_and_b32 v1, 60, v0\nv_lshlrev_b32 v1, 2, v1\nv_and_b32 v2, 1, v0\nv_lshl_add_u32 v1, v2, 3, v1\nv_bfe_u32 v2, v0, 1, 1\ns_movk_i32 s47, %d\nv_mad_u32_u24 v1, v2, s47, v1\nv_add_u32 %s, %d, v1" % (WUL - WGL, vr(VTR), WGL))
        p("v_lshrrev_b32 v1, 4, v0\ns_lshl_b32 s47, s%d, 3\nv_lshl_add_u32 %s, v1, 1, s47" % (S_CQ, vr(VQ)))
        for i in range(8):
            p("v_mov_b64 %s, 0" % vr(BV + 2 * i, 2))
        self.srd(60, S_WG, 512 * 2752)
        self.srd(64, S_WU, 512 * 2752)
        for v in range(4):
            p(setmask(8 + 2 * v, lanemask(lambda l: (l & 15) == 4 * v + (l >> 4))))
        self.srd(68, S_WS, WS_SPAN)
        p("s_mov_b32 s52, 0xaaaaaaaa\ns_mov_b32 s53, s52\ns_mov_b32 s48, 0x07060302")
        p(setmask(54, lanemask(lambda l: l in (0, 20, 40, 60))))
        p("v_mov_b32 %s, %d\nv_mov_b32 v3, s45\ns_mov_b32 s47, 0x9E3779B1\ns_setprio 3" % (vr(FL), FLG))
        p("s_barrier\ns_waitcnt vmcnt(1)")
        self.stamp(1)
        for ks in range(4):
            p("ds_read_b128 %s, %s offset:%d" % (vr(4 + 4 * ks, 4), vr(VSX), 64 * ks))
        for ks in range(16):
            if ks + 4 < 16:
                p("ds_read_b128 %s, %s offset:%d" % (vr(4 + 4 * (ks + 4), 4), vr(VSX), 64 * (ks + 4)))
            p("s_waitcnt lgkmcnt(%d)" % min(4, 15 - ks))
            p("v_mfma_f32_16x16x32_bf16 %s, %s, %s, %s" % (vr(D, 4), vr(4 + 4 * ks, 4), vr(4 + 4 * ks, 4), "0" if ks == 0 else vr(D, 4)))
        self.stamp(9)
        p("s_waitcnt vmcnt(0)\nv_mul_lo_u32 %s, %s, s47\nv_add_u32 %s, 1, %s" % (vr(NON), vr(NON), vr(NON), vr(NON)))
        MEAN, VAR, TW, t, u, NB, GR = 4, 5, 6, 7, 8, 10, 80
        RS = GR
        rb = lambda r: ["v_cvt_pk_bf16_f32 %s, %s, %s" % (vr(r), vr(r), vr(r)), "v_and_b32 %s, s%d, %s" % (vr(r), S_HI, vr(r))]
        L = ["v_cndmask_b32 %s, %s, %s, s[52:53]" % (vr(VAR), vr(D), vr(D + 1)),
             "v_mul_f32 %s, %s, %s" % (vr(MEAN), hx(f2u(1 / 512)), vr(D + 2)),
             "v_mul_f32 %s, %s, %s" % (vr(VAR), hx(f2u(1 / 512)), vr(VAR)),
             "v_fma_f32 %s, -%s, %s, %s" % (vr(VAR), vr(MEAN), vr(MEAN), vr(VAR)),
             "v_max_f32 %s, 0, %s" % (vr(VAR), vr(VAR))]
        L += rb(VAR) + ["v_add_f32 %s, %s, %s" % (vr(VAR), hx(f2u(1e-5)), vr(VAR))] + rb(VAR) + rb(MEAN)
        L += ["v_sqrt_f32 %s, %s" % (vr(VAR), vr(VAR))] + rb(VAR)
        L += ["v_rcp_f32 %s, %s" % (vr(RS), vr(VAR)),
              "v_mov_b32_dpp %s, %s quad_perm:[1,1,1,1] %s" % (vr(GR + 1), vr(RS), DPPF),
              "v_mov_b32_dpp %s, %s quad_perm:[1,1,1,1] %s" % (vr(t), vr(MEAN), DPPF),
              "v_perm_b32 %s, %s, %s, s48" % (vr(GR + 2), vr(t), vr(MEAN)),
              "v_mov_b32_dpp %s, %s quad_perm:[3,3,3,3] %s" % (vr(TW), vr(D + 2), DPPF)]
        p("\n".join(schedule(L)))
        p("s_mov_b64 exec, s[54:55]\nbuffer_store_dwordx4 %s, %s, s[68:71], 0 offen sc1\ns_mov_b64 exec, -1" % (vr(GR, 4), vr(VSTA)))
        self.stamp(2)
        L = ["v_fma_f32 %s, -%s, %s, %s" % (vr(t), vr(MEAN), vr(TW), vr(D + 3)),
             "v_mul_f32 %s, %s, %s" % (vr(t), vr(t), vr(RS)),
             "v_cvt_pk_bf16_f32 %s, %s, %s" % (vr(t), vr(t), vr(t)),
             "v_ashrrev_i32 %s, 31, %s" % (vr(u), vr(t)),
             "v_or_b32 %s, 0x80000000, %s" % (vr(u), vr(u)),
             "v_xor_b32 %s, %s, %s" % (vr(t), vr(t), vr(u)),
             "v_and_or_b32 %s, %s, s%d, %s" % (vr(t), vr(t), S_HI, vr(IDX)),
             "v_max_u32_dpp %s, %s, %s quad_perm:[1,0,3,2] %s" % (vr(t), vr(t), vr(t), DPPF)]
        L += ["v_readlane_b32 s%d, %s, %d" % (47 + G, vr(t), 20 * G) for G in range(4)]
        L += ["s_max_u32 s47, s47, s48", "s_max_u32 s49, s49, s50", "s_max_u32 s47, s47, s49", "v_mov_b32 v12, s47", "v_mov_b32 v13, %s" % vr(NON),
              "v_readfirstlane_b32 s%d, %s" % (S_NONCE, vr(NON)), "ds_write_b32 %s, %s offset:28" % (vr(FL), vr(NON))]
        p("\n".join(schedule(L)))
        p("s_mov_b64 exec, 1\nbuffer_store_dwordx2 v[12:13], v3, s[68:71], 0 offen sc1\ns_mov_b64 exec, -1")
        p("v_lshlrev_b32 %s, %d, v0\nv_add_u32 %s, %d, %s" % (vr(VKEY), KSH, vr(VKEY), WS_KEY, vr(VKEY)))
        p("s_movk_i32 s58, %d\ns_movk_i32 s59, %d\ns_movk_i32 s46, %d\ns_mov_b32 s57, %d" % (64 << KSH, 128 << KSH, 192 << KSH, POLL_MAX))
        ne = self.opt.get("ne", 6)

        def key_loads():
            for i, so in enumerate(("0", "s58", "s59", "s46")):
                p("buffer_load_dwordx2 %s, %s, s[68:71], %s offen sc1" % (vr(4 + 2 * i, 2), vr(VKEY), so))

        VW, VWD, VTR, VTD, VXB, VQ, SG, XQ, BV = 85, 86, 87, 88, 89, 90, 92, 91, 96

        def dma(i):
            for srd, base in ((60, WGL), (64, WUL)):
                p("s_mov_b32 m0, %d\ns_mov_b32 s47, %d\nbuffer_load_dwordx4 %s, %s, s47 offen lds" % (base + 1024 * i, 64 * 2752 * i, vr(VW), sr(srd, 4)))
        if ne:
            p("s_setprio 0")
            p("s_cmp_ge_u32 s18, s17\ns_cbranch_scc1 F_b0")
            for i in range(ne):
                dma(i)
            p.label("F_b0")
        p("s_waitcnt lgkmcnt(0)")
        self.stamp(11)
        p("s_barrier")
        self.stamp(3)
        key_loads()
        n0 = max(ne, self.opt.get("n0", 0))
        p("s_setprio %d\ns_cmp_ge_u32 s18, s17\ns_cbranch_scc1 F_kwait" % self.opt.get("dprio", 0))
        for i in range(ne, n0):
            dma(i)
        p("s_setprio 3\ns_waitcnt vmcnt(%d)\ns_branch F_kchk" % (2 * (n0 - ne)))
        p.label("F_kpoll")
        key_loads()
        p.label("F_kwait")
        p("s_setprio 3\ns_waitcnt vmcnt(0)")
        p.label("F_kchk")
        p("v_xor_b32 v5, %s, v5\nv_xor_b32 v7, %s, v7\nv_xor_b32 v9, %s, v9\nv_xor_b32 v11, %s, v11\nv_or3_b32 v5, v5, v7, v9\nv_or_b32 v5, v5, v11\nv_cmp_ne_u32 vcc, 0, v5" % ((vr(NON),) * 4))
        p("v_max3_u32 v4, v4, v6, v8\nv_max_u32 v4, v4, v10")
        p("s_cmp_eq_u64 vcc, 0\ns_cbranch_scc1 F_kgot\ns_sub_u32 s57, s57, 1\ns_cmp_lg_u32 s57, 0\ns_cbranch_scc1 F_kpoll")
        p.label("F_kgot")
        for n in (8, 4, 2, 1):
            p("v_max_u32_dpp v4, v4, v4 row_ror:%d %s" % (n, DPPF))
        p("v_readlane_b32 s47, v4, 0\nv_readlane_b32 s48, v4, 16\nv_readlane_b32 s49, v4, 32\nv_readlane_b32 s54, v4, 48")
        p("s_max_u32 s47, s47, s48\ns_max_u32 s49, s49, s54\ns_max_u32 s55, s47, s49")
        p("s_and_b32 s47, s55, 0xffff\ns_sub_u32 s54, 0xffff, s47\ns_and_b32 s54, s54, 2047")
        p("s_lshl_b32 s47, s54, 10\nv_lshl_add_u32 v1, v0, 4, s47\ns_mov_b32 m0, %d\nv_add_u32 %s, s47, %s\nglobal_load_lds_dwordx4 v1, %s" % (XR, vr(VQ), vr(VQ), sr(S_X, 2)))
        p("s_lshr_b32 s48, s54, 1\ns_lshl_b32 s48, s48, 4\ns_add_u32 s48, s48, %d\nv_mov_b32 v2, s48\nbuffer_load_dwordx4 %s, v2, s[68:71], 0 offen sc1" % (WS_ST, vr(SG, 4)))
        p("global_load_ushort %s, %s, %s" % (vr(XQ), vr(VQ), sr(S_X, 2)))
        p("s_add_u32 s47, s54, 1\nv_mov_b32 v2, s47\nds_write_b32 %s, v2 offset:16" % vr(FL))
        self.stamp(4)
        p("s_cmp_ge_u32 s18, s17\ns_cbranch_scc1 F_nounit")
        if n0 < 8:
            p("s_setprio %d" % self.opt.get("dprio", 0))
            for i in range(n0, 8):
                dma(i)
        self.spin4("F_c", vr(FL), F_C, 16)
        p("s_setprio %d" % self.opt.get("fprio", 3))
        p("v_add_u32 v1, 4096, %s" % vr(VWD))
        for m in range(8):
            p("s_mov_b32 m0, %d\ns_nop 0\nglobal_load_lds_dwordx4 %s, %s offset:%d" % (WDL + WDR * m - 1024 * (m & 3), vr(VWD) if m < 4 else "v1", sr(S_WD, 2), 1024 * (m & 3)))
        self.stamp(10)
        TA, AD = 40, 112
        TBs = [4 + 4 * s if s < 4 else 20 + 4 * (s - 4) if s < 9 else 56 + 4 * (s - 9) if s < 12 else 144 + 4 * (s - 12) for s in range(16)]

        def sel_stats():
            p("s_and_b32 s47, s54, 1\ns_cmp_eq_u32 s47, 1\ns_cselect_b64 vcc, -1, 0\ns_cselect_b32 s47, 0, 16")
            p("v_cndmask_b32 %s, %s, %s, vcc\nv_lshlrev_b32 %s, s47, %s\nv_and_b32 %s, s%d, %s\nv_mul_f32 %s, -%s, %s"
              % (vr(SG), vr(SG), vr(SG + 1), vr(SG + 1), vr(SG + 2), vr(SG + 1), S_HI, vr(SG + 1), vr(SG + 1), vr(SG + 1), vr(SG)))
        p("s_waitcnt vmcnt(8)")
        self.stamp(12)
        WF = [112 + 4 * (s % 8) for s in range(16)]

        def rdW(s):
            o = 1024 * (s >> 1) + 512 * (s & 1)
            p("ds_read_b64_tr_b16 %s, %s offset:%d\nds_read_b64_tr_b16 %s, %s offset:%d\nds_read_b128 %s, %s offset:%d"
              % (vr(WF[s], 2), vr(VTR), o, vr(WF[s] + 2, 2), vr(VTR), o + 256, vr(TBs[s], 4), vr(VXB), 64 * s))
        for s in range(4):
            rdW(s)
        sel_stats()
        for s in range(16):
            if s + 4 < 16:
                rdW(s + 4)
            p("s_waitcnt lgkmcnt(%d)" % (3 * min(4, 15 - s)))
            p("v_mfma_f32_16x16x32_bf16 %s, %s, %s, %s" % (vr(D, 4), vr(WF[s], 4), vr(TBs[s], 4), "0" if s == 0 else vr(D, 4)))
        p("s_waitcnt vmcnt(0)")
        self.stamp(5)
        rdD = []
        for s in range(8):
            for hf in range(2):
                rdD.append("ds_read_b64_tr_b16 %s, %s offset:%d" % (vr(AD + 4 * s + 2 * hf, 2), vr(VTD), 128 * s + 4 * WDR * hf))
        g, u, t = 44, 48, 52
        L = []
        for r in range(4):
            L += ["v_mul_f32 %s, %s, %s" % (vr(g + r), vr(D + r), vr(SG)), "v_fmac_f32_dpp %s, %s, %s row_shl:1 %s" % (vr(g + r), vr(D + r), vr(SG + 1), DPPF)]
        L += ["v_cvt_pk_bf16_f32 v40, %s, %s" % (vr(g), vr(g + 1)), "v_cvt_pk_bf16_f32 v41, %s, %s" % (vr(g + 2), vr(g + 3)),
              "v_permlane32_swap_b32 v40, v42", "v_permlane32_swap_b32 v41, v43"]
        for q2 in range(2):
            L += ["v_lshlrev_b32 %s, 16, %s" % (vr(g + 2 * q2), vr(40 + q2)), "v_and_b32 %s, s%d, %s" % (vr(g + 2 * q2 + 1), S_HI, vr(40 + q2)),
                  "v_lshlrev_b32 %s, 16, %s" % (vr(u + 2 * q2), vr(42 + q2)), "v_and_b32 %s, s%d, %s" % (vr(u + 2 * q2 + 1), S_HI, vr(42 + q2))]
        for r in range(4):
            L += ["v_mul_f32 %s, %s, %s" % (vr(t + r), hx(f2u(-LOG2E)), vr(g + r)), "v_exp_f32 %s, %s" % (vr(t + r), vr(t + r)), "v_add_f32 %s, 1.0, %s" % (vr(t + r), vr(t + r)),
                  "v_rcp_f32 %s, %s" % (vr(t + r), vr(t + r)), "v_mul_f32 %s, %s, %s" % (vr(g + r), vr(g + r), vr(t + r))]
        for q2 in range(2):
            L += ["v_cvt_pk_bf16_f32 %s, %s, %s" % (vr(40 + q2), vr(g + 2 * q2), vr(g + 2 * q2 + 1)),
                  "v_lshlrev_b32 %s, 16, %s" % (vr(g + 2 * q2), vr(40 + q2)), "v_and_b32 %s, s%d, %s" % (vr(g + 2 * q2 + 1), S_HI, vr(40 + q2)),
                  "v_mul_f32 %s, %s, %s" % (vr(g + 2 * q2), vr(g + 2 * q2), vr(u + 2 * q2)),
                  "v_mul_f32 %s, %s, %s" % (vr(g + 2 * q2 + 1), vr(g + 2 * q2 + 1), vr(u + 2 * q2 + 1)),
                  "v_cvt_pk_bf16_f32 %s, %s, %s" % (vr(40 + q2), vr(g + 2 * q2), vr(g + 2 * q2 + 1))]
        L += ["v_readlane_b32 s%d, %s, %d" % (60 + pr, vr(40 + (pr & 1)), 16 * (pr >> 1)) for pr in range(4)]
        for i in range(4):
            L.append("s_mov_b32 s%d, 0x%08x" % (64 + i, 0x07060500 + i))
        L += ["s_lshl_b32 s47, s18, 11", "s_add_u32 s47, s47, %d" % WS_FP, "v_lshl_add_u32 v1, v0, 4, s47"]
        p("\n".join(rdD[:4] + merge_prop(schedule(L), rdD[4:])))
        for v in range(4):
            p("s_mov_b64 exec, %s\nv_mov_b64 %s, s[60:61]\nv_mov_b64 %s, s[62:63]" % (sr(8 + 2 * v, 2), vr(BV + 4 * v, 2), vr(BV + 4 * v + 2, 2)))
        p("s_mov_b64 exec, -1\ns_waitcnt lgkmcnt(0)")
        AC = 4
        for s in (0, 4, 1, 5, 2, 6, 3, 7):
            d = AC + 4 * (s >> 2)
            p("v_mfma_f32_16x16x32_bf16 %s, %s, %s, %s" % (vr(d, 4), vr(AD + 4 * s, 4), vr(BV + 4 * (s & 3), 4), "0" if (s & 3) == 0 else vr(d, 4)))
        for hh in range(2):
            for e in range(4):
                p("v_perm_b32 %s, %s, %s, s%d" % (vr(AC + 4 * hh + e), vr(AC + 4 * hh + e), vr(NON), 64 + e))
            p("buffer_store_dwordx4 %s, v1, s[68:71], 0 offen offset:%d sc1" % (vr(AC + 4 * hh, 4), 1024 * hh))
        p("s_branch F_row")
        p.label("F_nounit")
        p("s_waitcnt vmcnt(0)")
        sel_stats()
        p.label("F_row")
        self.stamp(6)
        p("s_and_b32 s47, s54, 1\ns_cmp_lg_u32 s47, s%d\ns_cbranch_scc1 F_done" % S_RHO)
        rbs = lambda r: "v_cvt_pk_bf16_f32 %s, %s, %s\nv_and_b32 %s, s%d, %s" % (r, r, r, r, S_HI, r)
        p("s_ashr_i32 s47, s55, 31\ns_not_b32 s47, s47\ns_or_b32 s47, s47, 0x80000000\ns_xor_b32 s47, s47, s55\ns_and_b32 s47, s47, 0xffff0000")
        p("v_mov_b32 v25, s47\nv_mul_f32 v25, %s, v25\nv_exp_f32 v25, v25\nv_add_f32 v25, 1.0, v25\nv_rcp_f32 v25, v25\n%s" % (hx(f2u(-LOG2E)), rbs("v25")))
        p("s_lshr_b32 s47, s54, 9\ns_mul_i32 s47, s47, %d\ns_bfe_u32 s48, s54, 0x20003\ns_mul_i32 s48, s48, 288\ns_add_u32 s47, s47, s48" % YT)
        p("s_bfe_u32 s48, s54, 0x40005\ns_lshl_b32 s48, s48, 4\ns_add_u32 s47, s47, s48\ns_bfe_u32 s48, s54, 0x20001\ns_lshl_b32 s48, s48, 2\ns_add_u32 s47, s47, s48\ns_add_u32 s47, s47, %d" % YOFF)
        p("v_lshrrev_b32 v26, 4, v0\nv_lshl_add_u32 v26, v26, 14, s47")
        p("s_lshr_b32 s47, s%d, 6\ns_lshl_b32 s47, s47, 10\ns_bfe_u32 s48, s%d, 0x40002\ns_lshl_b32 s48, s48, 4\ns_add_u32 s47, s47, s48\ns_and_b32 s48, s%d, 3\ns_lshl_b32 s48, s48, 8\ns_add_u32 s47, s47, s48\ns_add_u32 s47, s47, %d" % (S_CQ, S_CQ, S_CQ, WS_FP))
        p("v_lshl_add_u32 v27, v0, 11, s47\nv_add_u32 v28, 0x20000, v27\nv_min_u32 v29, 43, v0\nv_lshl_add_u32 v29, v29, 11, s47\nv_add_u32 v29, 0x40000, v29")
        p("s_mov_b32 s58, 0x0c0c0400\ns_mov_b32 s59, 0x04000c0c")
        if self.opt.get("pace", 1):
            self.spin("F_p", "ds_read_b32 v16, %s\ns_waitcnt lgkmcnt(0)\nv_readfirstlane_b32 s47, v16" % vr(FL), "s47")
        p("s_mov_b32 s57, %d\ns_waitcnt vmcnt(0)" % POLL_MAX)
        p("v_lshlrev_b32 %s, 16, %s\nv_fma_f32 v24, %s, %s, %s\n%s" % (vr(XQ), vr(XQ), vr(XQ), vr(SG), vr(SG + 1), rbs("v24")))
        p.label("F_poll")
        for i in range(3):
            p("buffer_load_dwordx4 %s, %s, s[68:71], 0 offen sc1" % (vr(12 + 4 * i, 4), vr(27 + i)))
        p("s_mov_b64 s[60:61], 0\ns_waitcnt vmcnt(0)")
        for i in range(3):
            b = 12 + 4 * i
            p("v_perm_b32 v30, %s, %s, s58\nv_perm_b32 v31, %s, %s, s59\nv_or_b32 v30, v30, v31\nv_cmp_ne_u32 vcc, s%d, v30\ns_or_b64 s[60:61], s[60:61], vcc"
              % (vr(b + 1), vr(b), vr(b + 3), vr(b + 2), S_NONCE))
        p("s_cmp_eq_u64 s[60:61], 0\ns_cbranch_scc1 F_got\ns_sub_u32 s57, s57, 1\ns_cmp_lg_u32 s57, 0\ns_cbranch_scc1 F_poll")
        p.label("F_got")
        self.stamp(7)
        for c in range(12):
            p("v_and_b32 %s, 0xffffff00, %s" % (vr(12 + c), vr(12 + c)))
        for c in range(4):
            p("v_add_f32 %s, %s, %s" % (vr(12 + c), vr(12 + c), vr(16 + c)))
        p("s_mov_b32 exec_hi, 0xfff")
        for c in range(4):
            p("v_add_f32 %s, %s, %s" % (vr(12 + c), vr(12 + c), vr(20 + c)))
        p("s_mov_b64 exec, -1")
        p("v_permlane32_swap_b32 v12, v14\nv_permlane32_swap_b32 v13, v15\nv_add_f32 v12, v12, v14\nv_add_f32 v13, v13, v15\nv_permlane16_swap_b32 v12, v13\nv_add_f32 v12, v12, v13")
        for n in (8, 4, 2, 1):
            p("v_add_f32_dpp v12, v12, v12 row_ror:%d %s" % (n, DPPF))
        p(rbs("v12") + "\nv_mul_f32 v12, v12, v25\n" + rbs("v12") + "\nv_add_f32 v12, v12, v24\n" + rbs("v12"))
        p("v_mul_f32 v13, %s, v12\nv_exp_f32 v13, v13\nv_add_f32 v13, 1.0, v13\nv_rcp_f32 v13, v13\nv_mul_f32 v12, v12, v13\n%s" % (hx(f2u(-LOG2E)), rbs("v12")))
        self.spin("F_y", "ds_read_b128 v[16:19], %s\ns_waitcnt lgkmcnt(0)\nv_min3_u32 v16, v16, v17, v18\nv_min_u32 v16, v16, v19\nv_readfirstlane_b32 s47, v16\ns_lshr_b32 s47, s47, 2" % vr(FL), "s47")
        p("ds_read_b32 v13, v26\ns_waitcnt lgkmcnt(0)")
        p(rbs("v13") + "\nv_mul_f32 v13, v13, v12\n" + rbs("v13") + "\nv_add_f32 v13, v13, %s\nv_cvt_pk_bf16_f32 v13, v13, v13" % vr(XQ))
        p("s_mov_b32 exec_lo, 0x00010001\ns_mov_b32 exec_hi, 0x00010001")
        p("global_store_short %s, v13, %s" % (vr(VQ), sr(S_OUT, 2)))
        p.label("F_done")
        self.stamp(8)
        self.stamp_flush()
        p.label("L_end")
        p("s_endpgm")

    def build(self, header):
        self.entry()
        self.role_F()
        self.role_C()
        self.role_A()
        body = self.p.emit()
        s = header
        s += "; @launch grid=(256,1,1) block=(576,1,1) lds=%d\n" % LDS_BYTES
        s += '.amdgcn_target "amdgcn-amd-amdhsa--gfx950"\n.text\n.globl %s\n.p2align 8\n.type %s,@function\n%s:\n' % (NAME, NAME, NAME)
        s += body
        s += "L_code_end:\n"
        s += """.section .rodata,"a"
.p2align 6
.amdhsa_kernel %s
  .amdhsa_next_free_vgpr 168
  .amdhsa_next_free_sgpr 102
  .amdhsa_accum_offset 168
  .amdhsa_group_segment_fixed_size 0
  .amdhsa_kernarg_size 136
  .amdhsa_user_sgpr_count 2
  .amdhsa_user_sgpr_kernarg_segment_ptr 1
  .amdhsa_system_sgpr_workgroup_id_x 1
.end_amdhsa_kernel
""" % NAME
        return s


if __name__ == "__main__":
    ap = argparse.ArgumentParser()
    ap.add_argument("out")
    ap.add_argument("--stamps", action="store_true")
    ap.add_argument("--dump", default="")
    ap.add_argument("--opt", default="")
    a = ap.parse_args()
    ref = open("recurrent_scan__ssm_conv_s4__moe_arch_mod__prompt.s.ref").read().split("\n")
    header = "\n".join(l for l in ref if l.startswith(";") and "@launch" not in l and not l.startswith("; Override") and not l.startswith("; grid=")) + "\n"
    opt = dict((kv.split("=")[0], int(kv.split("=")[1])) for kv in a.opt.split(",") if kv)
    g = Gen(stamps=a.stamps, dump=set(a.dump.split(",")) if a.dump else None, opt=opt)
    open(a.out, "w").write(g.build(header))
    print("wrote", a.out, "pads", g.p.npad)
```

```python
import sys, math, struct, argparse
from asmlib import Prog, vr, sr, schedule

NAME = "recurrent_scan__ssm_conv_s4__moe_arch_mod__prompt_kernel"

WS_ST = 0x1000
WS_KEY = 0x8000
KSH = 5
WS_CHK = 0x10000
WS_FP = 0x30000
WS_DBG = 0x90000
WS_XD = 0x100000
WS_DUMP = 0x400000
WS_SPAN = 0x300000

REG = 16384
TROW = 272
LO0 = 21
KC1 = 4480
FOFF = 8960
YOFF = 8960
YT = 1280
U0 = 65536
USTR = 5120
FLG = U0 + 4 * USTR
F_Y, F_SEL, F_NON, F_C, F_U, F_K = 0, 16, 28, 32, 48, 64
XR = FLG + 256
ON = XR + 1024
WGL = ON + 1024
WUL = WGL + 8192 + 128
SX = WGL
SXR = 1056
TA0 = WUL + 8192
TASTR = 53 * TROW
WDL = TA0
WDR = 1088
LDS_BYTES = TA0 + 4 * TASTR

LOG2E = 1.4426950408889634
INV2PI = 0.15915494309189535
HK = [0x9E37F1B5, 0x7B45C2D3, 0x5A8D3EE9, 0xC3A5B671]
POLL_MAX = 4000
SPIN_MAX = 200000

S_X, S_ARE, S_AIM, S_BRE, S_BIM, S_CRE, S_CIM, S_LDT = 4, 6, 8, 10, 12, 14, 16, 18
S_DSK, S_WR, S_WG, S_WU, S_WD, S_OUT, S_WS = 20, 24, 26, 28, 30, 32, 36
S_EP, S_NONCE, S_WAVE, S_XCD, S_J, S_CQ, S_RHO = 38, 39, 40, 41, 42, 43, 44
S_HI = 56
S_HK = 72
S_STAMP = 76
DPPF = "row_mask:0xf bank_mask:0xf"
PARAMS = (S_ARE, S_AIM, S_BRE, S_BIM, S_CRE, S_CIM)


def f2u(x):
    return struct.unpack("<I", struct.pack("<f", x))[0]


def hx(x):
    return "0x%08x" % (x & 0xFFFFFFFF)


def lanemask(f):
    return sum(1 << l for l in range(64) if f(l))


def setmask(reg, m):
    if reg in ("exec", "vcc"):
        return "s_mov_b32 %s_lo, %s\ns_mov_b32 %s_hi, %s" % (reg, hx(m), reg, hx(m >> 32))
    return "s_mov_b32 s%d, %s\ns_mov_b32 s%d, %s" % (reg, hx(m), reg + 1, hx(m >> 32))


def merge_prop(a, b):
    out = []
    i = j = 0
    while i < len(a) or j < len(b):
        if j >= len(b) or (i < len(a) and i * len(b) <= j * len(a)):
            out.append(a[i]); i += 1
        else:
            out.append(b[j]); j += 1
    return out


class Gen:
    def __init__(self, stamps=False, dump=None, opt=None):
        self.p = Prog()
        self.stamps = stamps
        self.dump = dump or set()
        self.opt = opt or {}
        self.role = 0

    def stamp(self, i):
        if self.opt.get("ev") == self.role * 100 + i:
            self.p("s_memrealtime s[100:101]\ns_waitcnt lgkmcnt(0)")
        if self.stamps:
            self.p("%s %s\ns_waitcnt lgkmcnt(0)" % ("s_memtime" if self.opt.get("cyc") else "s_memrealtime", sr(S_STAMP + 2 * i, 2)))

    def stamp_flush(self):
        p = self.p
        if self.opt.get("ev", -1) // 100 == self.role:
            p.label("EV_pad")
            p("s_memrealtime s[98:99]\ns_waitcnt lgkmcnt(0)\ns_sub_u32 s98, s98, s100\ns_cmp_lt_u32 s98, 2000\ns_cbranch_scc1 EV_pad")
        if not self.stamps:
            return
        p("s_mov_b64 exec, -1")
        p("s_mul_i32 s47, s2, 9\ns_add_u32 s47, s47, s%d\ns_lshl_b32 s47, s47, 6\ns_add_u32 s47, s47, %d" % (S_WAVE, WS_DBG))
        p("v_mov_b32 v2, 0")
        for i in range(13):
            p("v_writelane_b32 v2, s%d, %d" % (S_STAMP + 2 * i, i))
        p("v_mbcnt_lo_u32_b32 v1, -1, 0\nv_mbcnt_hi_u32_b32 v1, -1, v1\nv_lshl_add_u32 v1, v1, 2, s47")
        p("s_mov_b64 exec, 0xffff")
        p("global_store_dword v1, v2, %s" % sr(S_WS, 2))
        p("s_mov_b64 exec, -1")

    def dump_lds(self, tag, lds_sgpr, nbytes, slot):
        if tag not in self.dump:
            return
        p = self.p
        p("s_waitcnt lgkmcnt(0)")
        p("s_lshl_b32 s49, s2, 3\ns_add_u32 s49, s49, %s\ns_lshl_b32 s49, s49, 14\ns_add_u32 s49, s49, %d" % (slot, WS_DUMP))
        p("v_lshl_add_u32 v164, v0, 4, %s" % lds_sgpr)
        p("v_lshl_add_u32 v165, v0, 4, s49")
        for o in range(0, nbytes, 1024):
            p("ds_read_b128 v[160:163], v164 offset:%d\ns_waitcnt lgkmcnt(0)" % o)
            p("global_store_dwordx4 v165, v[160:163], %s\nv_add_u32 v165, 1024, v165\ns_nop 1" % sr(S_WS, 2))
        p("s_waitcnt vmcnt(0)")

    def nonce(self):
        self.p("s_mul_i32 s%d, s%d, 0x9E3779B1\ns_add_u32 s%d, s%d, 1" % (S_NONCE, S_EP, S_NONCE, S_NONCE))

    def hk(self):
        for k in range(4):
            self.p("s_mov_b32 s%d, %s" % (S_HK + k, hx(HK[k])))

    def hash_ops(self, G, H, HI, ROT):
        L = ["v_dot2_u32_u16 %s, %s, s%d, %s" % (vr(H), vr(G + q), S_HK + q, vr(HI if q == 0 else H)) for q in range(4)]
        L.append("v_alignbit_b32 %s, %s, %s, %s" % (vr(H), vr(H), vr(H), vr(ROT)))
        for qp in ("[1,0,3,2]", "[2,3,0,1]"):
            L.append("v_add_u32_dpp %s, %s, %s quad_perm:%s %s" % (vr(H), vr(H), vr(H), qp, DPPF))
        return L

    def srd(self, d, ptr, size):
        self.p("s_mov_b64 %s, %s\ns_mov_b32 s%d, %d\ns_mov_b32 s%d, 0x00020000" % (sr(d, 2), sr(ptr, 2), d + 2, size, d + 3))

    def spin(self, name, body, sres, sleep=1):
        p = self.p
        p("s_mov_b32 s57, %d" % SPIN_MAX)
        p.label(name + "_w")
        p(body)
        p("s_cmp_lg_u32 %s, 0\ns_cbranch_scc1 %s_g" % (sres, name))
        p("s_sleep %s\ns_sub_u32 s57, s57, 1\ns_cmp_lg_u32 s57, 0\ns_cbranch_scc1 %s_w" % (sleep, name))
        p.label(name + "_g")

    def spin4(self, name, addr, off, t, shift=0, sleep=1):
        body = "ds_read_b128 %s, %s offset:%d\ns_waitcnt lgkmcnt(0)\nv_min3_u32 %s, %s, %s, %s\nv_min_u32 %s, %s, %s\nv_readfirstlane_b32 s47, %s" % (
            vr(t, 4), addr, off, vr(t), vr(t), vr(t + 1), vr(t + 2), vr(t), vr(t), vr(t + 3), vr(t))
        if shift:
            body += "\ns_lshr_b32 s47, s47, %d" % shift
        self.spin(name, body, "s47", sleep)

    def kg_consts(self):
        self.p("s_mov_b32 s64, %s\ns_mov_b32 s65, %s\ns_mov_b32 s66, %s\ns_mov_b32 s67, %s\nv_mov_b32 v35, 0x3f80"
               % (hx(f2u(LOG2E)), hx(f2u(INV2PI)), hx(f2u(256 * LOG2E)), hx(f2u(256 * INV2PI))))

    def touch_addr(self, V):
        p = self.p
        p("s_mul_i32 s52, s%d, 43\ns_add_u32 s53, s52, 43\ns_lshr_b32 s52, s52, 1\ns_lshr_b32 s53, s53, 1" % S_XCD)
        p("s_cmp_ge_u32 s46, 2\ns_cbranch_scc1 T%d_1" % self.role)
        p("s_lshl_b32 s47, s%d, 4\nv_lshrrev_b32 v1, 2, v0\nv_add_u32 v1, s47, v1\nv_mul_u32_u24 v1, 2752, v1" % S_J)
        p("s_lshl_b32 s47, s52, 4\ns_lshl_b32 s48, s53, 4\nv_add_u32 v2, s47, v1\nv_and_b32 v2, 0xffffff80, v2\nv_add_u32 v1, s48, v1")
        p("v_and_b32 v3, 3, v0\nv_lshl_add_u32 v3, v3, 7, v2\nv_cmp_lt_u32 vcc, v3, v1\nv_cndmask_b32 %s, v2, v3, vcc" % vr(V))
        p("s_cmp_eq_u32 s46, 0\ns_cselect_b32 s60, s%d, s%d\ns_cselect_b32 s61, s%d, s%d\ns_branch T%d_3" % (S_WG, S_WU, S_WG + 1, S_WU + 1, self.role))
        p.label("T%d_1" % self.role)
        p("s_cmp_eq_u32 s46, 2\ns_cbranch_scc1 T%d_2" % self.role)
        p("s_lshl_b32 s47, s%d, 16\ns_lshl_b32 s48, s%d, 7\ns_add_u32 s47, s47, s48\nv_lshl_add_u32 %s, v0, 10, s47\ns_mov_b64 s[60:61], %s\ns_branch T%d_3" % (S_J, S_XCD, vr(V), sr(S_OUT, 2), self.role))
        p.label("T%d_2" % self.role)
        p("s_mul_i32 s47, s%d, 43\nv_min_u32 v1, 42, v0\nv_add_u32 v1, s47, v1\ns_lshl_b32 s47, s52, 13\nv_lshl_add_u32 v1, v1, 7, s47\nv_min_u32 %s, %d, v1\ns_mov_b64 s[60:61], %s"
          % (S_J, vr(V), 1376 * 1024 - 128, sr(S_WD, 2)))
        p.label("T%d_3" % self.role)

    def touch(self, where, V):
        m = self.opt.get(where, {"pf0": 0, "pf1": 4, "pf2": 0, "pf3": 0}[where])
        if m:
            self.p("s_lshr_b32 s47, %d, s46\ns_bitcmp0_b32 s47, 0\ns_cbranch_scc1 T_s%s\nglobal_load_dword v167, %s, s[60:61]" % (m, where, vr(V)))
            self.p.label("T_s%s" % where)

    def param_addr(self):
        self.p("s_lshl_b32 s48, s%d, 2\ns_add_u32 s48, s48, s46\ns_lshl_b32 s48, s48, 8\nv_lshl_add_u32 v3, v0, 1, s48\ns_lshr_b32 s49, s48, 7\nv_mov_b32 v5, s49" % S_CQ)
        self.p("v_mov_b64 v[52:53], 0\nv_mov_b64 v[72:73], 0\nv_mov_b64 v[94:95], 0\nv_mov_b32 v4, 0")

    def param_loads(self, h):
        for r, s in zip((52, 53, 72, 73, 94, 95), PARAMS):
            self.p("global_load_short_d16_hi %s, v3, %s offset:%d" % (vr(r), sr(s, 2), 128 * h))
        self.p("global_load_short_d16_hi v4, v5, %s" % sr(S_LDT, 2))

    def cmul(self, d, x, y):
        return ["v_pk_mul_f32 %s, %s, %s op_sel:[0,0] op_sel_hi:[1,0]" % (vr(d, 2), vr(x, 2), vr(y, 2)),
                "v_pk_fma_f32 %s, %s, %s, %s op_sel:[1,1,0] op_sel_hi:[0,1,1] neg_lo:[1,0,0]" % (vr(d, 2), vr(x, 2), vr(y, 2), vr(d, 2))]

    def kgen_pass(self, h):
        PRM = 4
        Z1, Z8, ZW, ZR = 52, 54, 56, 58
        LR, WR_, PR, CR, T = 70, 74, 80, 84, 92
        bc = "op_sel:[0,0] op_sel_hi:[1,0]"
        L = ["v_mul_f32 v4, s64, v4", "v_exp_f32 v4, v4", "v_cvt_pk_bf16_f32 v4, v4, v4", "v_and_b32 v4, s%d, v4" % S_HI,
             "v_pk_mul_f32 %s, %s, v[4:5] %s" % (vr(T, 2), vr(Z1, 2), bc)]
        for z, sp, t in ((Z1, 64, PR), (ZW, 66, PR + 2)):
            L += ["v_pk_mul_f32 %s, %s, %s" % (vr(t, 2), vr(T, 2), sr(sp, 2)),
                  "v_exp_f32 %s, %s" % (vr(t), vr(t)),
                  "v_fract_f32 %s, %s" % (vr(t + 1), vr(t + 1)),
                  "v_cos_f32 %s, %s" % (vr(z), vr(t + 1)),
                  "v_sin_f32 %s, %s" % (vr(z + 1), vr(t + 1)),
                  "v_pk_mul_f32 %s, %s, %s %s" % (vr(z, 2), vr(z, 2), vr(t, 2), bc)]
        L += ["v_pk_mul_f32 %s, %s, v[4:5] %s" % (vr(LR + 2, 2), vr(LR + 2, 2), bc)]
        L += self.cmul(LR, LR + 2, T + 2)
        cnt = [0, 0]

        def put(row, z, conj=False):
            c = CR + 4 * int(conj) + cnt[int(conj)] % 4
            cnt[int(conj)] += 1
            return ["v_cvt_pk_bf16_f32 %s, %s, %s%s" % (vr(c), vr(z), "-" if conj else "", vr(z + 1)),
                    "ds_write_addtid_b32 %s offset:%d" % (vr(c), row * TROW)]
        zr = {1: Z1}
        for r in range(2, 8):
            zr[r] = ZR + 2 * (r - 2)
        L += self.cmul(zr[2], Z1, Z1) + self.cmul(zr[4], zr[2], zr[2]) + self.cmul(Z8, zr[4], zr[4])
        sL, sH = [], []
        for j in range(32):
            cur, nxt = LR + 2 * (j & 1), LR + 2 * ((j + 1) & 1)
            if j < 31:
                sL += self.cmul(nxt, cur, Z8)
            sL += put(LO0 + j, cur, True)
        sH += put(1, Z1) + put(2, zr[2]) + put(4, zr[4])
        for r, (a, b) in ((3, (2, 1)), (5, (4, 1)), (6, (4, 2)), (7, (4, 3))):
            sH += self.cmul(zr[r], zr[a], zr[b]) + put(r, zr[r])
        rows_for = {1: [(8, 0), (9, 2), (10, 4), (11, 6)], 2: [(12, 0), (13, 4)], 3: [(14, 0), (15, 4)]}
        for m in range(4, 9):
            rows_for[m] = [(12 + m, 0)]
        wreg = {1: ZW}
        pc = 0
        for m in range(1, 9):
            if m > 1:
                wreg[m] = WR_ + 2 * (m % 3)
                sH += self.cmul(wreg[m], wreg[m - 1], ZW)
            for row, r in rows_for[m]:
                if r == 0:
                    sH += put(row, wreg[m])
                else:
                    t = PR + 2 * (pc & 1)
                    pc += 1
                    sH += self.cmul(t, wreg[m], zr[r]) + put(row, t)
        return schedule(L + merge_prop(sH, sL), keep_ds_order=False)

    def entry(self):
        p = self.p
        p("s_cmp_ge_u32 s2, 256\ns_cbranch_scc1 L_end")
        p("s_load_dwordx16 s[4:19], s[0:1], 0\ns_load_dwordx16 s[20:35], s[0:1], 64\ns_load_dwordx2 s[36:37], s[0:1], 128")
        if self.stamps:
            for i in range(13):
                p("s_mov_b32 s%d, 0" % (S_STAMP + 2 * i))
            p("%s %s" % ("s_memtime" if self.opt.get("cyc") else "s_memrealtime", sr(S_STAMP, 2)))
        p("v_lshrrev_b32 v1, 6, v0\nv_and_b32 v0, 63, v0\ns_and_b32 s%d, s2, 7\nv_readfirstlane_b32 s%d, v1" % (S_XCD, S_WAVE))
        p("s_lshr_b32 s%d, s2, 3\ns_lshr_b32 s%d, s2, 4\ns_lshl_b32 s45, s%d, 4\ns_add_u32 s%d, s%d, s45\ns_and_b32 s%d, s%d, 1\ns_mov_b32 s%d, 0xffff0000"
          % (S_J, S_CQ, S_XCD, S_CQ, S_CQ, S_RHO, S_J, S_HI))
        p("s_add_u32 s46, s%d, 3\ns_and_b32 s46, s46, 3\ns_lshl_b32 s47, s2, 13" % S_WAVE)
        p("s_cmp_gt_u32 s%d, 4\ns_cbranch_scc1 A_init\ns_cmp_lg_u32 s%d, 0\ns_cbranch_scc1 C_init" % (S_WAVE, S_WAVE))
        self.init_F()
        self.init_C()
        self.init_A()

    def init_F(self):
        p = self.p
        self.role = 3
        p("v_lshlrev_b32 v2, 4, v0\nv_mov_b32 v4, 0x3f803f80\nv_mov_b32 v5, v4\nv_mov_b32 v6, v4\nv_mov_b32 v7, v4\nv_add_u32 v3, %d, v2\nds_write_b128 v3, v[4:7]" % ON)
        D, IDX, VSTA, VKEY, VSX, NON, FL = 72, 70, 71, 76, 68, 83, 77
        p("v_bfe_u32 v1, v0, 2, 2\nv_and_b32 v2, 1, v0\nv_lshl_add_u32 v1, v1, 1, v2\ns_lshl_b32 s47, s2, 3\ns_sub_u32 s47, 0xffff, s47\nv_sub_u32 %s, s47, v1" % vr(IDX))
        p("v_mul_u32_u24 v1, %d, v1\nv_add_u32 %s, %d, v1\ns_mov_b32 exec_lo, 0x44444444\ns_mov_b32 exec_hi, exec_lo\nv_mov_b32 %s, %d" % (SXR, vr(VSX), SX, vr(VSX), ON))
        p("s_mov_b32 exec_lo, 0x88888888\ns_mov_b32 exec_hi, exec_lo\nv_mov_b32 %s, %d\ns_mov_b64 exec, -1" % (vr(VSX), SX + 8 * SXR))
        p("v_and_b32 v1, 48, v0\nv_add_u32 %s, v1, %s" % (vr(VSX), vr(VSX)))
        p("s_lshl_b32 s47, s2, 6\ns_add_u32 s47, s47, %d\nv_add_u32 %s, s47, v1\ns_lshl_b32 s45, s2, %d\ns_add_u32 s45, s45, %d" % (WS_ST, vr(VSTA), KSH, WS_KEY))
        p("v_lshlrev_b32 v2, 4, v0\nv_mov_b32 v3, 0\ns_mov_b32 m0, %d\ns_waitcnt lgkmcnt(0)" % (SX + 8 * SXR))
        for _ in range(self.opt.get("fdel", 0)):
            p("s_nop 15")
        p("global_load_lds_dwordx4 v2, %s\nglobal_load_dword %s, v3, %s\ns_branch F_main" % (sr(S_WR, 2), vr(NON), sr(S_WS, 2)))

    def init_C(self):
        p = self.p
        self.role = 1
        ROT, VDA, VCA, VA, VB, VYW = 107, 108, 109, 20, 21, 34
        p.label("C_init")
        p("s_setprio 2\ns_lshl_b32 s48, s46, 8\ns_add_u32 s48, s47, s48")
        p("v_and_b32 v10, 60, v0\nv_lshl_add_u32 v11, v10, 1, s48\nv_and_b32 v2, 3, v0\nv_lshl_add_u32 v11, v2, 11, v11")
        self.param_addr()
        p("s_lshl_b32 s45, s46, 14\ns_mov_b32 m0, s45")
        self.hk()
        p("v_mul_u32_u24 %s, 7, v2" % vr(ROT))
        p("s_lshl_b32 s48, s46, 11\ns_add_u32 s47, s47, s48\ns_add_u32 s47, s47, %d\nv_lshl_add_u32 %s, v0, 4, s47" % (WS_XD, vr(VDA)))
        p("s_and_b32 s47, s2, 63\ns_lshl_b32 s47, s47, 2\ns_lshr_b32 s48, s2, 6\ns_add_u32 s47, s47, s48\ns_lshl_b32 s47, s47, 6")
        p("s_lshl_b32 s48, s46, 15\ns_add_u32 s47, s47, s48\ns_add_u32 s47, s47, %d" % WS_CHK)
        p("v_lshl_add_u32 %s, v2, 14, s47\nv_add_u32 %s, v10, %s" % (vr(VCA), vr(VCA), vr(VCA)))
        p("s_lshl_b32 s47, s46, 8\ns_add_u32 s47, s47, %d\nv_mul_u32_u24 v110, %d, v2\nv_lshl_add_u32 v110, v10, 1, v110\nv_add_u32 v110, s47, v110" % (SX, 2 * SXR))
        self.kg_consts()
        p("ds_write_addtid_b32 v35 offset:0\nv_mov_b64 v[6:7], 0")
        p("s_waitcnt lgkmcnt(0)")
        self.stamp(9)
        for S in range(2):
            for r in range(2):
                p("global_load_dwordx2 %s, v11, %s offset:%d" % (vr(96 + 4 * S + 2 * r, 2), sr(S_X, 2), 1024 * r + 128 * S))
        self.param_loads(0)
        p("global_load_dword v106, v6, %s" % sr(S_WS, 2))
        p("s_mov_b64 exec, 1\nglobal_load_short_d16_hi v7, v5, %s\ns_mov_b64 exec, -1" % sr(S_DSK, 2))
        p("s_branch C_main")

    def init_A(self):
        p = self.p
        self.role = 2
        p.label("A_init")
        if self.opt.get("code"):
            p("s_getpc_b64 s[52:53]")
            p.label("A_pc")
            p("s_lshl_b32 s47, s46, 13\nv_lshl_add_u32 v1, v0, 7, s47\nv_min_u32 v1, L_code_end-A_pc-4, v1\nglobal_load_dword v10, v1, s[52:53]")
        self.param_addr()
        p("s_mul_i32 s47, s46, %d\ns_add_u32 s47, s47, %d\ns_mov_b32 m0, s47" % (TASTR, TA0))
        self.kg_consts()
        p("ds_write_addtid_b32 v35 offset:0")
        p("v_mov_b32 v12, 0\nv_mov_b32 v13, 0\nv_mov_b32 v14, 0\nv_mov_b32 v15, 0")
        p("s_mul_i32 s48, s46, %d\ns_add_u32 s48, s48, %d\nv_lshl_add_u32 v2, v0, 4, s48\nds_write_b128 v2, v[12:15]" % (USTR, U0))
        p("s_waitcnt lgkmcnt(0)")
        self.param_loads(1)
        p("s_branch A_main")

    def role_C(self):
        self.role = 1
        p = self.p
        G0, G1, H0, H1, HI, ROT, VDA, VCA = 96, 100, 104, 105, 106, 107, 108, 109
        E, VA, VB, VTAB, VF, VYW, D = 10, 20, 21, 29, 30, 34, 36
        p.label("C_main")
        self.touch_addr(19)
        p("v_and_b32 v1, 15, v0\nv_lshrrev_b32 v2, 4, v0")
        p("s_add_u32 s47, s45, 64\ns_movk_i32 s52, %d\nv_and_b32 v3, 1, v0\nv_lshl_add_u32 %s, v2, 4, s47\nv_mad_u32_u24 %s, v3, s52, %s\nv_lshlrev_b32 v3, 2, v1\nv_sub_u32 %s, %s, v3"
          % (KC1 + 4, vr(VA), vr(VA), vr(VA), vr(VA), vr(VA)))
        p("s_add_u32 s47, s45, %d\ns_movk_i32 s52, 288\nv_lshl_add_u32 %s, v1, 4, s47\nv_mad_u32_u24 %s, v2, s52, %s" % (YOFF, vr(VYW), vr(VYW), vr(VYW)))
        p("s_mul_i32 s47, s46, %d\ns_add_u32 s47, s47, %d\nv_lshl_add_u32 v1, v1, 6, s47\nv_lshl_add_u32 v1, v2, 4, v1\nv_xor_b32 v2, 32, v1" % (USTR, U0 + 64))
        for kk in range(4):
            m = lanemask(lambda l: ((8 - kk + (l & 15)) >> 2) & 1)
            p("s_mov_b32 vcc_lo, %s\ns_mov_b32 vcc_hi, vcc_lo" % hx(m))
            p("v_cndmask_b32 %s, v1, v2, vcc\nv_cndmask_b32 %s, v2, v1, vcc" % (vr(VB + kk), vr(VB + kk + 4)))
        p("v_and_b32 v1, 31, v0\nv_lshrrev_b32 v2, 5, v0")
        p("s_movk_i32 s52, %d\nv_lshl_add_u32 %s, v2, 4, s45\nv_mad_u32_u24 %s, v1, s52, %s" % (TROW, vr(VTAB), vr(VTAB), vr(VTAB)))
        p("s_add_u32 s48, s45, %d\ns_add_u32 s47, s%d, 2048\ns_sub_u32 s59, s48, %d" % (FOFF, S_RHO, 4 * 0x4280 + 4))
        p("v_lshl_add_u32 %s, v2, 4, s48\nv_lshl_add_u32 %s, v1, 5, %s" % (vr(VF), vr(VF), vr(VF)))
        p("s_movk_i32 s52, 248\nv_sub_u32 v3, 4, v2\nv_lshlrev_b32 v3, v3, v1\nv_lshl_add_u32 v9, v2, 9, s48\nv_add_u32 %s, v3, v9\nv_mad_u32_u24 %s, v2, s52, %s\nv_lshl_add_u32 %s, v1, 2, v9"
           % (vr(VF + 1), vr(VF + 2), vr(VF + 1), vr(VF + 3)))
        p("v_lshlrev_b32 v1, 1, v0\nv_sub_u32 v1, s47, v1\nv_cvt_f32_u32 v1, v1")
        for n, k in enumerate((7, 11, 13)):
            p("v_add_f32 v2, %s, v1\nv_add_f32 v3, %s, v1\nv_cvt_pk_bf16_f32 v2, v2, v3" % (hx(f2u(-128.0 * k)), hx(f2u(-128.0 * k - 1))))
            p("v_mad_u32_u16 %s, v2, 4, s59\nv_cmp_eq_u32_sdwa %s, v2, v2 src0_sel:WORD_0 src1_sel:WORD_1" % (vr(E + n), sr(4 + 2 * n, 2)))
        p("s_lshl_b32 s47, s%d, 2\ns_add_u32 s47, s47, s48\ns_add_u32 s52, s47, 508\ns_sub_u32 s54, s48, 8\ns_mov_b32 s10, s%d\ns_mov_b32 s11, 0" % (S_RHO, S_RHO))
        p("v_lshlrev_b32 v1, 3, v0\nv_sub_u32 %s, s52, v1\nv_add_u32 v1, -512, %s\nv_max_i32 %s, s54, v1" % (vr(E + 3), vr(E + 3), vr(E + 4)))
        p("s_lshl_b32 s47, s46, 2\ns_add_u32 s47, s47, %d\nv_mov_b32 v15, s47\nv_mov_b32 v16, 1\nv_mov_b32 v17, 2\nv_mov_b32 v18, %d" % (FLG, FLG))
        p("s_mul_i32 s47, s46, %d\ns_add_u32 s47, s47, %d\ns_sub_u32 s47, s47, s45\nv_add_u32 v8, s47, %s" % (TASTR, TA0, vr(VTAB)))
        p("s_mov_b32 vcc_lo, 0x22222222\ns_mov_b32 vcc_hi, vcc_lo\ns_mov_b32 s52, 0x33333333\ns_mov_b32 s53, s52")
        p("s_mov_b32 s47, %s\ns_waitcnt vmcnt(11)" % hx(2 * 0x9E3779B1))
        p("ds_write2_b64 v110, %s, %s offset0:0 offset1:%d" % (vr(G0, 2), vr(G0 + 2, 2), SXR // 8))
        p("global_store_dwordx4 %s, %s, %s sc1" % (vr(VDA), vr(G0, 4), sr(S_WS, 2)))
        p("s_waitcnt vmcnt(10)")
        p("ds_write2_b64 v110, %s, %s offset0:16 offset1:%d" % (vr(G1, 2), vr(G1 + 2, 2), SXR // 8 + 16))
        p("global_store_dwordx4 %s, %s, %s offset:1024 sc1" % (vr(VDA), vr(G1, 4), sr(S_WS, 2)))
        p("s_waitcnt lgkmcnt(0)\ns_barrier")
        self.stamp(1)
        p("s_setprio %d\ns_waitcnt vmcnt(4)" % self.opt.get("ckprio", 1))
        self.stamp(2)
        FR = 96
        body = self.kgen_pass(0)
        cut0 = self.opt.get("hat", 30)
        p("\n".join(body[:cut0]))
        body = body[cut0:]
        p("s_waitcnt vmcnt(3)\nv_mul_lo_u32 %s, %s, s47\nv_add_u32 %s, 2, %s" % (vr(HI), vr(HI), vr(HI), vr(HI)))
        p("\n".join(schedule(self.hash_ops(G0, H0, HI, ROT) + self.hash_ops(G1, H1, HI, ROT))))
        p("v_cndmask_b32 %s, %s, %s, vcc\ns_mov_b64 exec, s[52:53]" % (vr(H0), vr(H0), vr(H1)))
        p("global_store_dword %s, %s, %s sc1" % (vr(VCA), vr(H0), sr(S_WS, 2)))
        p("s_mov_b64 exec, -1")
        self.touch("pf0", 19)
        cut = self.opt.get("pfat", 10)
        p("\n".join(body[:cut]))
        self.touch("pf1", 19)
        sw = self.opt.get("psw", 0)
        if sw:
            p("\n".join(body[cut:sw]))
            p("s_setprio %d" % self.opt.get("ckprio2", 0))
            cut = sw
        p("\n".join(body[cut:]))

        def tab_read(h, ks):
            a = vr(8 if h else VTAB)
            p("ds_read_b128 %s, %s offset:%d" % (vr(FR + 8 * ks, 4), a, 32 * ks))
            p("ds_read_b128 %s, %s offset:%d" % (vr(FR + 8 * ks + 4, 4), a, LO0 * TROW + 32 * ks))

        def mf(h, ks):
            c = "0" if (h == 0 and ks == 0) else vr(D, 16)
            return "v_mfma_f32_32x32x16_bf16 %s, %s, %s, %s" % (vr(D, 16), vr(FR + 8 * ks, 4), vr(FR + 8 * ks + 4, 4), c)
        late = self.opt.get("late", 1)
        tail = "v_mov_b64 v[2:3], 0\nv_mov_b32 v1, s54"
        if late:
            seq = [(0, ks) for ks in range(8)] + [(1, ks) for ks in range(8)]
            for n in range(6):
                tab_read(*seq[n])
            p(tail)
            self.stamp(11)
            p("s_barrier")
            for n in range(16):
                if n + 6 < 16:
                    tab_read(*seq[n + 6])
                p("s_waitcnt lgkmcnt(%d)" % (2 * min(6, 15 - n)))
                p(mf(*seq[n]))
            p("ds_write_b64 v1, v[2:3]")
        else:
            for ks in range(8):
                tab_read(0, ks)
            p(tail)
            for ks in range(8):
                p("s_waitcnt lgkmcnt(%d)" % (14 - 2 * ks))
                p(mf(0, ks))
            self.stamp(11)
            p("s_barrier")
            for ks in range(8):
                tab_read(1, ks)
            p("ds_write_b64 v1, v[2:3]")
            for ks in range(8):
                p("s_waitcnt lgkmcnt(%d)" % (15 - 2 * ks))
                p(mf(1, ks))
        self.stamp(3)
        p("s_waitcnt vmcnt(%d)\nv_add_f32 %s, %s, v7" % (3, vr(D), vr(D)))
        p("ds_write_b128 %s, %s" % (vr(VF), vr(D, 4)))
        p("ds_write_b64 %s, %s offset:1024\nds_write_b64 %s, %s offset:1032" % (vr(VF + 1), vr(D + 4, 2), vr(VF + 2), vr(D + 6, 2)))
        q = []

        def issue(line, tag=None):
            p(line)
            q.append(tag)

        def wait_for(tags):
            last = max(i for i, t in enumerate(q) if t in tags)
            p("s_waitcnt lgkmcnt(%d)" % min(len(q) - 1 - last, 15))
        src = {}
        for k in range(8):
            src[k] = (E, 16 * (7 - k), 4)
        for k in range(8, 12):
            src[k] = (E + 1, 32 * (11 - k), 6)
        for k in range(12, 14):
            src[k] = (E + 2, 64 * (13 - k), 8)
        src[14] = (E + 3, 128, None)
        src[15] = (E + 3, 0, None)
        src[16] = (E + 4, 0, None)
        npass = self.opt.get("npass", 2)
        deleg = self.opt.get("deleg", 0) and npass > 1
        order = list(range(16, 7 if deleg else -1, -1))
        LA = 4

        def rd(k):
            a, o, _ = src[k]
            issue("ds_read2_b32 %s, %s offset0:%d offset1:%d" % (vr(96 + 2 * k, 2), vr(a), o, o + 1), ("e", k))
        for k in order[:LA]:
            rd(k)
        for r in range(4):
            issue("ds_write_b32 %s, %s offset:%d" % (vr(VF + 3), vr(D + 8 + r), 2048 + 128 * r))
        issue("ds_write_b32 v15, v16 offset:%d" % F_C)
        for i, k in enumerate(order):
            if i % 2 == 0:
                wait_for({("e", kk) for kk in order[i:i + 2]})
            a = 96 + 2 * k
            if src[k][2]:
                p("v_cndmask_b32 %s, %s, %s, %s" % (vr(a), vr(a), vr(a + 1), sr(src[k][2], 2)))
            if k == 14:
                p("v_cndmask_b32 %s, %s, %s, s[10:11]" % (vr(a + 1), vr(a + 1), vr(a)))
            p("v_cvt_pk_bf16_f32 %s, %s, %s" % (vr(132 + k), vr(a + 1), vr(a)))
            if i + LA < len(order):
                rd(order[i + LA])
            issue("ds_write_addtid_b32 %s offset:%d" % (vr(132 + k), 256 * k))
            issue("ds_write_addtid_b32 %s offset:%d" % (vr(132 + k), KC1 + 4 + 256 * k))
        self.dump_lds("K", "s45", 12288, "s46")
        ACC, BUF = 48, 64
        one = npass == 1
        passes = {1: [(0, 1, 2, 3)], 2: [(0, 1), (2, 3)], 3: [(0, 1), (2,), (3,)]}[npass]
        stages = [(k0, js, tuple(range(4 - js[0]))) for js in passes for k0 in range(16)]
        SZ, NA = (32, 4) if one else (24, 2)
        areg = lambda s, j: BUF + SZ * (s % 3) + 4 * (j % NA)
        breg = lambda s, x: BUF + SZ * (s % 3) + 4 * NA + 4 * x

        def rdA(s, j):
            o = 4032 - 64 * stages[s][0] - 1024 * j
            return [("ds_read_b64 %s, %s offset:%d" % (vr(areg(s, j), 2), vr(VA), o), s), ("ds_read_b64 %s, %s offset:%d" % (vr(areg(s, j) + 2, 2), vr(VA), o + 8), s)]

        def rdB(s, x):
            k0 = stages[s][0]
            return [("ds_read_b128 %s, %s offset:%d" % (vr(breg(s, x), 4), vr(VB + (k0 & 7)), 1024 * x + 512 * (1 - (k0 >> 3)) + 448 - 64 * (k0 & 7)), s)]

        def reads(s):
            _, js, qs = stages[s]
            return sum((rdA(s, j) for j in js), []) + sum((rdB(s, x) for x in qs), [])
        if one:
            p("s_waitcnt lgkmcnt(0)")
        for s in (0, 1):
            for j in stages[s][1]:
                for l, t in rdA(s, j):
                    issue(l, t)
        self.touch("pf3", 19)
        p("s_waitcnt lgkmcnt(0)")
        q.clear()
        self.stamp(4)
        self.spin4("C_u", "v18", F_U, 4, sleep=0)
        p("s_setprio %d" % self.opt.get("cprio", 2))
        self.stamp(5)
        for s in (0, 1):
            for x in range(4):
                for l, t in rdB(s, x):
                    issue(l, t)
        first = set()
        pending = []

        def ywrite(tiles, val):
            for T in tiles:
                issue("ds_write_b128 %s, %s offset:%d" % (vr(VYW), vr(ACC + 4 * T, 4), YT * T))
            issue("ds_write_b32 v15, %s" % vr(val))
        for s, (k0, js, qs) in enumerate(stages):
            if deleg and s == 12:
                issue("ds_read_b32 v4, v15 offset:%d" % F_K, 14)
            nxt = reads(s + 2) if s + 2 < len(stages) else []
            wait_for({s})
            if deleg and s == 14:
                p("v_readfirstlane_b32 s47, v4\ns_cmp_lg_u32 s47, 0\ns_cbranch_scc1 C_k_g")
                self.spin("C_k", "ds_read_b32 v4, v15 offset:%d\ns_waitcnt lgkmcnt(0)\nv_readfirstlane_b32 s47, v4" % F_K, "s47", 0)
            mm = [(j, x) for j in js for x in qs if j + x < 4]
            if k0 == 15:
                mm.sort(key=lambda a: (a[0] + a[1] > js[-1], a[0] + a[1]))
            elif len(mm) == 3:
                mm = [(2, 1), (2, 0), (3, 0)]
            tot, done = len(nxt), 0
            for m, (j, x) in enumerate(mm):
                T = j + x
                c = vr(ACC + 4 * T, 4) if T in first else "0"
                first.add(T)
                p("v_mfma_f32_16x16x32_bf16 %s, %s, %s, %s" % (vr(ACC + 4 * T, 4), vr(areg(s, j), 4), vr(breg(s, x), 4), c))
                while done < -(-tot * (m + 1) // len(mm)):
                    issue(*nxt.pop(0))
                    done += 1
            if pending and (k0 == 1 or len(mm) > 2):
                ywrite(*pending.pop())
            if k0 == 15 and s + 1 < len(stages):
                pending.append((js, 16 if js[0] == 0 else 17))
        self.stamp(6)
        p("v_mov_b32 v17, 4")
        ywrite(passes[-1], 17)
        p("s_or_b32 s47, s2, s46\ns_cmp_lg_u32 s47, 0\ns_cbranch_scc1 C_end")
        p("ds_read_b32 v4, v18 offset:%d\nv_mov_b32 v5, 0\ns_waitcnt lgkmcnt(0)\nglobal_store_dword v5, v4, %s" % (F_NON, sr(S_WS, 2)))
        p.label("C_end")
        self.stamp(7)
        self.stamp_flush()
        p("s_endpgm")

    def role_A(self):
        self.role = 2
        p = self.p
        ROT, VXD, VCK, VST, VU, VY, VO = 136, 137, 138, 139, 140, 141, 142
        XD, ST, CK, XF, XN, PK = 4, 20, 36, 40, 72, 104
        p.label("A_main")
        pfa = self.opt.get("pfa", 3)
        if pfa:
            self.touch_addr(11)
            p("s_lshr_b32 s47, %d, s46\ns_bitcmp1_b32 s47, 0\ns_cbranch_scc1 A_pf\nv_mov_b32 v11, 0" % pfa)
            p.label("A_pf")
            if self.opt.get("pfw", 0) == 0:
                p("global_load_dword v10, v11, s[60:61]")
        p("v_and_b32 v2, 7, v0\nv_lshlrev_b32 v2, 4, v2\nv_add_u32 v2, %d, v2\nds_write_b128 v2, v[12:15]" % FLG)
        self.hk()
        self.srd(68, S_WS, WS_SPAN)
        p("v_and_b32 v1, 3, v0\nv_lshrrev_b32 v2, 2, v0\ns_lshl_b32 s47, s46, 4\nv_add_u32 v2, s47, v2\nv_mul_u32_u24 %s, 7, v1" % vr(ROT))
        p("s_lshl_b32 s47, s%d, 6\ns_add_u32 s47, s47, %d\nv_lshl_add_u32 %s, v2, 13, s47\nv_lshl_add_u32 %s, v1, 4, %s" % (S_CQ, WS_XD, vr(VXD), vr(VXD), vr(VXD)))
        p("s_lshr_b32 s47, s%d, 4\ns_lshl_b32 s47, s47, 2\ns_add_u32 s47, s47, s46\ns_lshl_b32 s47, s47, 12\ns_and_b32 s48, s%d, 15\ns_lshl_b32 s48, s48, 2\ns_add_u32 s47, s47, s48\ns_add_u32 s47, s47, %d\nv_lshl_add_u32 %s, v0, 6, s47" % (S_CQ, S_CQ, WS_CHK, vr(VCK)))
        p("s_lshl_b32 s47, s46, 10\ns_add_u32 s47, s47, %d\nv_lshl_add_u32 %s, v0, 4, s47" % (WS_ST, vr(VST)))
        p("s_mov_b32 s12, 0x11111111\ns_mov_b32 s13, s12")
        for k in range(1, 4):
            p("s_mov_b32 s%d, %d\ns_mov_b32 s%d, %d\ns_mov_b32 s%d, 0x%08x\ns_mov_b32 s%d, s%d" % (8 + k, k << 19, 4 + k, k << 12, 12 + 2 * k, 0x11111111 << k, 13 + 2 * k, 12 + 2 * k))
        so = lambda b, k: "0" if k == 0 else "s%d" % (b + k)
        p("s_setprio %d" % self.opt.get("akprio", 0))
        self.stamp(1)
        p("s_lshl_b32 s47, s46, 2\ns_add_u32 s47, s47, %d\nv_mov_b32 v146, s47\nv_mov_b32 v147, 1" % FLG)
        if pfa and self.opt.get("pfw", 0) == 1:
            p("global_load_dword v10, v11, s[60:61]")
        if pfa and self.opt.get("pfw", 0) == 2:
            p("s_waitcnt vmcnt(6)\nglobal_load_dword v10, v11, s[60:61]")
        p("s_waitcnt lgkmcnt(0)\ns_barrier\ns_waitcnt vmcnt(%d)" % (1 if pfa else 0))
        p("\n".join(self.kgen_pass(1)))
        self.stamp(12)
        p("v_mov_b32 v104, %d\ns_mov_b32 s57, %d\ns_waitcnt lgkmcnt(0)\ns_barrier\ns_setprio 2" % (FLG, POLL_MAX))
        self.stamp(3)

        def poll_loads(fill=None):
            for k in range(4):
                p("buffer_load_dwordx4 %s, %s, s[68:71], %s offen sc1" % (vr(XD + 4 * k, 4), vr(VXD), so(8, k)))
                p("buffer_load_dwordx4 %s, %s, s[68:71], %s offen sc1" % (vr(ST + 4 * k, 4), vr(VST), so(4, k)))
                if fill:
                    p("\n".join(fill[k]))
            p("buffer_load_dword %s, %s, s[68:71], 0 offen sc1" % (vr(CK), vr(VCK)))
        q0 = Prog()
        q0("ds_read_b32 v3, v104 offset:28")
        q0("s_mov_b64 s[64:65], %s\ns_mov_b32 s66, 2097152\ns_mov_b32 s67, 0x00020000" % sr(S_OUT, 2))
        q0("s_lshl_b32 s47, s%d, 3\ns_lshl_b32 s48, s%d, 10\ns_add_u32 s47, s47, s48\nv_lshl_add_u32 %s, v2, 13, s47\nv_lshl_add_u32 %s, v1, 11, %s" % (S_CQ, S_RHO, vr(VO), vr(VO), vr(VO)))
        q0("s_and_b32 s47, s46, 1\ns_lshl_b32 s47, s47, 5\ns_lshl_b32 s48, s46, 8\ns_add_u32 s48, s48, %d\nv_lshlrev_b32 v2, 2, v0\nv_xor_b32 v2, s47, v2\nv_add_u32 %s, s48, v2" % (U0 + 1024, vr(VU)))
        q0("s_lshl_b32 s47, s46, 6\ns_add_u32 s47, s47, %d\ns_movk_i32 s48, 288\nv_lshl_add_u32 v2, v1, 2, s47\nv_and_b32 v1, 48, v0\nv_add_u32 v2, v1, v2\nv_bfe_u32 v1, v0, 2, 2\nv_mad_u32_u24 %s, v1, s48, v2" % (YOFF, vr(VY)))
        n = len(q0.lines)
        if self.opt.get("ilv", 1):
            poll_loads([q0.lines[n * k // 3:n * (k + 1) // 3] for k in range(3)] + [["s_nop 0"]])
        else:
            poll_loads()
            p("\n".join(q0.lines))
        p("v_mov_b32 v1, %d\ns_waitcnt lgkmcnt(0)\nv_readfirstlane_b32 s%d, v3" % (FLG, S_NONCE))

        def norm_ops(k):
            x, st, xf, xn, NB = XD + 4 * k, ST + 4 * k, XF + 8 * k, XN + 8 * k, 114
            L = ["v_lshlrev_b32 %s, 16, %s" % (vr(NB), vr(st + 2)), "v_and_b32 %s, s%d, %s" % (vr(NB + 1), S_HI, vr(st + 2)),
                 "v_pk_mul_f32 %s, %s, %s neg_lo:[1,0] neg_hi:[1,0]" % (vr(NB, 2), vr(NB, 2), vr(st, 2))]
            for r in range(2):
                for hf in range(2):
                    a = xf + 4 * r + 2 * hf
                    L += ["v_lshlrev_b32 %s, 16, %s" % (vr(a), vr(x + 2 * r + hf)), "v_and_b32 %s, s%d, %s" % (vr(a + 1), S_HI, vr(x + 2 * r + hf)),
                          "v_pk_fma_f32 %s, %s, %s, %s op_sel:[0,%d,%d] op_sel_hi:[1,%d,%d]" % (vr(xn + 4 * r + 2 * hf, 2), vr(a, 2), vr(st, 2), vr(NB, 2), r, r, r, r)]
            for c in range(4):
                L.append("v_cvt_pk_bf16_f32 %s, %s, %s" % (vr(PK + c), vr(xn + c), vr(xn + 4 + c)))
            for c in (0, 2):
                L.append("ds_write2st64_b32 %s, %s, %s offset0:%d offset1:%d" % (vr(VU), vr(PK + c), vr(PK + c + 1), 4 * k + 20 * c, 4 * k + 20 * (c + 1)))
            return L

        def chk_ops(k, H):
            return ["v_add_u32 v113, s%d, %s" % (S_NONCE, vr(ST + 4 * k + 3))] + self.hash_ops(XD + 4 * k, H, 113, ROT)
        for k in range(4):
            p("s_waitcnt vmcnt(%d)" % (7 - 2 * k))
            if k in (0, 3):
                self.stamp(10 if k == 0 else 11)
            L = norm_ops(k) + chk_ops(k, 112 if k else 37)
            if k:
                L += ["v_cndmask_b32 v37, v37, v112, %s" % sr(12 + 2 * k, 2)]
            p("\n".join(schedule(L)))
        p("s_waitcnt vmcnt(0)\nv_cmp_ne_u32 s[58:59], v37, %s" % vr(CK))
        p("s_cmp_eq_u64 s[58:59], 0\ns_cbranch_scc1 A_ready")
        for k in range(4):
            p("s_and_b64 s[48:49], s[58:59], %s\ns_cbranch_scc0 A_r%d_ok" % (sr(12 + 2 * k, 2), k))
            p.label("A_r%d" % k)
            p("buffer_load_dwordx4 %s, %s, s[68:71], %s offen sc1" % (vr(XD + 4 * k, 4), vr(VXD), so(8, k)))
            p("buffer_load_dwordx4 %s, %s, s[68:71], %s offen sc1" % (vr(ST + 4 * k, 4), vr(VST), so(4, k)))
            p("buffer_load_dword %s, %s, s[68:71], 0 offen sc1" % (vr(CK), vr(VCK)))
            p("s_sub_u32 s57, s57, 1\ns_cmp_eq_u32 s57, 0\ns_cbranch_scc1 A_ready\ns_waitcnt vmcnt(0)")
            p("\n".join(chk_ops(k, 112)))
            p("v_cmp_ne_u32 vcc, v112, %s\ns_and_b64 s[48:49], vcc, %s\ns_cbranch_scc1 A_r%d" % (vr(CK), sr(12 + 2 * k, 2), k))
            p("\n".join(schedule(norm_ops(k))))
            p.label("A_r%d_ok" % k)
        p.label("A_ready")
        if self.stamps:
            p("s_sub_u32 s%d, %d, s57" % (S_STAMP + 18, POLL_MAX + 1))
        p("ds_write_b32 v146, v147 offset:%d\ns_setprio 0" % F_U)
        self.stamp(4)
        if "U" in self.dump:
            p("s_mul_i32 s48, s46, %d\ns_add_u32 s48, s48, %d\ns_add_u32 s47, s46, 4" % (USTR, U0))
            self.dump_lds("U", "s48", 5120, "s47")
        npass = self.opt.get("npass", 2)
        if self.opt.get("deleg", 0) and npass > 1:
            p("s_lshl_b32 s45, s46, 14\ns_mov_b32 m0, s45\ns_add_u32 s48, s45, %d\ns_add_u32 s47, s%d, %d" % (FOFF - 4 * 0x4280 - 4, S_RHO, 2048 - 896))
            p("v_lshlrev_b32 v2, 1, v0\nv_sub_u32 v2, s47, v2\nv_cvt_f32_u32 v2, v2\nv_add_f32 v3, -1.0, v2\nv_cvt_pk_bf16_f32 v2, v2, v3")
            p("v_mad_u32_u16 v3, v2, 4, s48\nv_cmp_eq_u32_sdwa s[58:59], v2, v2 src0_sel:WORD_0 src1_sel:WORD_1")
            self.spin("A_c", "ds_read_b32 v2, v146 offset:%d\ns_waitcnt lgkmcnt(0)\nv_readfirstlane_b32 s47, v2" % F_C, "s47")
            for k in range(8):
                p("ds_read2_b32 %s, v3 offset0:%d offset1:%d" % (vr(116 + 2 * k, 2), 16 * (7 - k), 16 * (7 - k) + 1))
            for k in range(8):
                a = 116 + 2 * k
                if k % 2 == 0:
                    p("s_waitcnt lgkmcnt(%d)" % (6 + k))
                p("v_cndmask_b32 %s, %s, %s, s[58:59]\nv_cvt_pk_bf16_f32 %s, %s, %s" % (vr(a), vr(a), vr(a + 1), vr(a), vr(a + 1), vr(a)))
                p("ds_write_addtid_b32 %s offset:%d\nds_write_addtid_b32 %s offset:%d" % (vr(a), 256 * k, vr(a), KC1 + 4 + 256 * k))
            p("ds_write_b32 v146, v147 offset:%d" % F_K)
        GG, YY = 4, 116
        p("s_cmp_eq_u32 s%d, 1\ns_cbranch_scc1 A_pre1" % S_RHO)
        for rho in range(2):
            if rho:
                p.label("A_pre1")
            L = []
            for i in range(16):
                k, c = i >> 2, i & 3
                x, xn, g, t = XF + 8 * k + 4 * rho + c, XN + 8 * k + 4 * rho + c, GG + i, 104 + (i % 8)
                L += ["v_mul_f32 %s, %s, %s" % (vr(t), hx(f2u(-LOG2E)), vr(xn)), "v_exp_f32 %s, %s" % (vr(t), vr(t)),
                      "v_add_f32 %s, 1.0, %s" % (vr(t), vr(t)), "v_rcp_f32 %s, %s" % (vr(t), vr(t)),
                      "v_mul_f32 %s, %s, %s" % (vr(g), vr(xn), vr(t))]
                if rho:
                    L.append("v_mov_b32 %s, %s" % (vr(x - 4), vr(x)))
            p("\n".join(schedule(L)))
            if rho == 0:
                p("s_branch A_pre2")
        p.label("A_pre2")
        self.stamp(5)
        p("s_setprio 3")
        self.spin("A_sel", "ds_read_b32 v2, v1 offset:16\ns_waitcnt lgkmcnt(0)\nv_readfirstlane_b32 s47, v2", "s47")
        p("s_sub_u32 s47, s47, 1\ns_lshl_b32 s47, s47, 10\ns_lshl_b32 s48, s%d, 3\ns_add_u32 s47, s47, s48\nv_mov_b32 v3, 0x7ffffff0" % S_CQ)
        for k in (3, 2, 1, 0):
            p("s_sub_u32 s48, s47, %d\nv_cmp_ne_u32 vcc, s48, %s\nv_cndmask_b32 %s, v3, %s, vcc" % (k << 19, vr(VO), vr(VO + k), vr(VO)))
        halves = {1: [(2, (0, 1, 2, 3))], 2: [(0, (0, 1)), (2, (2, 3))], 3: [(0, (0, 1)), (1, (2,)), (2, (3,))]}[npass]
        for half, ks in halves:
            self.spin4("A_y%d" % half, "v1", F_Y, 104, shift=half, sleep=(0 if half == 2 and npass > 1 else 1))
            if half != 1:
                self.stamp(6 if half else 2)
            for k in ks:
                for c in (0, 2):
                    p("ds_read2st64_b32 %s, %s offset0:%d offset1:%d" % (vr(YY + 4 * k + c, 2), vr(VY), 5 * k + 64 * c, 5 * k + 64 * (c + 1)))
            for n, k in enumerate(ks):
                p("s_waitcnt lgkmcnt(%d)" % (2 * (len(ks) - 1 - n)))
                y = YY + 4 * k
                for c in range(4):
                    p("v_fma_f32 %s, %s, %s, %s" % (vr(y + c), vr(y + c), vr(GG + 4 * k + c), vr(XF + 8 * k + c)))
                p("v_cvt_pk_bf16_f32 %s, %s, %s\nv_cvt_pk_bf16_f32 %s, %s, %s" % (vr(y), vr(y), vr(y + 1), vr(y + 1), vr(y + 2), vr(y + 3)))
                p("buffer_store_dwordx2 %s, %s, s[64:67], %s offen" % (vr(y, 2), vr(VO + k), so(8, k)))
        self.stamp(7)
        if self.stamps or self.opt.get("ev"):
            p("s_waitcnt vmcnt(0)")
        self.stamp(8)
        self.stamp_flush()
        p("s_endpgm")

    def role_F(self):
        self.role = 3
        p = self.p
        D, IDX, VSTA, VKEY, VSX, NON, FL = 72, 70, 71, 76, 68, 83, 77
        p.label("F_main")
        VW, VWD, VTR, VTD, VXB, VQ, SG, XQ, BV = 85, 86, 87, 88, 89, 90, 92, 91, 96
        p("s_mul_i32 s16, s%d, 43\ns_add_u32 s17, s16, 43\ns_lshr_b32 s16, s16, 1\ns_lshr_b32 s17, s17, 1\ns_add_u32 s18, s16, s%d\ns_min_u32 s19, s18, 171" % (S_XCD, S_J))
        p("v_and_b32 v1, 35, v0\nv_bfe_u32 v2, v0, 2, 2\nv_lshl_add_u32 v1, v2, 3, v1\nv_bfe_u32 v14, v0, 4, 1\nv_lshl_add_u32 v1, v14, 2, v1\nv_mul_u32_u24 v1, 2752, v1\ns_lshl_b32 s47, s19, 4\nv_add_u32 %s, s47, v1" % vr(VW))
        p("s_lshl_b32 s47, s19, 13\nv_lshl_add_u32 %s, v0, 4, s47" % vr(VWD))
        p("v_mul_u32_u24 v2, %d, v2\nv_and_b32 v1, 48, v0\nv_lshl_add_u32 v2, v1, 1, v2\nv_and_b32 v14, 3, v0\nv_lshl_add_u32 v2, v14, 3, v2\nv_add_u32 %s, %d, v2" % (WDR, vr(VTD), WDL))
        p("v_and_b32 v14, 15, v0\nv_cmp_eq_u32 vcc, 1, v14\nv_mov_b32 v14, %d\nv_mov_b32 v2, %d\nv_cndmask_b32 v14, v14, v2, vcc\nv_add_u32 %s, v14, v1" % (XR, ON, vr(VXB)))
        p("v_and_b32 v1, 60, v0\nv_lshlrev_b32 v1, 2, v1\nv_and_b32 v2, 1, v0\nv_lshl_add_u32 v1, v2, 3, v1\nv_bfe_u32 v2, v0, 1, 1\ns_movk_i32 s47, %d\nv_mad_u32_u24 v1, v2, s47, v1\nv_add_u32 %s, %d, v1" % (WUL - WGL, vr(VTR), WGL))
        p("v_lshrrev_b32 v1, 4, v0\ns_lshl_b32 s47, s%d, 3\nv_lshl_add_u32 %s, v1, 1, s47" % (S_CQ, vr(VQ)))
        for i in range(8):
            p("v_mov_b64 %s, 0" % vr(BV + 2 * i, 2))
        self.srd(60, S_WG, 512 * 2752)
        self.srd(64, S_WU, 512 * 2752)
        for v in range(4):
            p(setmask(8 + 2 * v, lanemask(lambda l: (l & 15) == 4 * v + (l >> 4))))
        self.srd(68, S_WS, WS_SPAN)
        p("s_mov_b32 s52, 0xaaaaaaaa\ns_mov_b32 s53, s52\ns_mov_b32 s48, 0x07060302")
        p(setmask(54, lanemask(lambda l: l in (0, 20, 40, 60))))
        p("v_mov_b32 %s, %d\nv_mov_b32 v3, s45\ns_mov_b32 s47, 0x9E3779B1\ns_setprio 3" % (vr(FL), FLG))
        p("s_barrier\ns_waitcnt vmcnt(1)")
        self.stamp(1)
        for ks in range(4):
            p("ds_read_b128 %s, %s offset:%d" % (vr(4 + 4 * ks, 4), vr(VSX), 64 * ks))
        for ks in range(16):
            if ks + 4 < 16:
                p("ds_read_b128 %s, %s offset:%d" % (vr(4 + 4 * (ks + 4), 4), vr(VSX), 64 * (ks + 4)))
            p("s_waitcnt lgkmcnt(%d)" % min(4, 15 - ks))
            p("v_mfma_f32_16x16x32_bf16 %s, %s, %s, %s" % (vr(D, 4), vr(4 + 4 * ks, 4), vr(4 + 4 * ks, 4), "0" if ks == 0 else vr(D, 4)))
        self.stamp(9)
        p("s_waitcnt vmcnt(0)\nv_mul_lo_u32 %s, %s, s47\nv_add_u32 %s, 1, %s" % (vr(NON), vr(NON), vr(NON), vr(NON)))
        MEAN, VAR, TW, t, u, NB, GR = 4, 5, 6, 7, 8, 10, 80
        RS = GR
        rb = lambda r: ["v_cvt_pk_bf16_f32 %s, %s, %s" % (vr(r), vr(r), vr(r)), "v_and_b32 %s, s%d, %s" % (vr(r), S_HI, vr(r))]
        L = ["v_cndmask_b32 %s, %s, %s, s[52:53]" % (vr(VAR), vr(D), vr(D + 1)),
             "v_mul_f32 %s, %s, %s" % (vr(MEAN), hx(f2u(1 / 512)), vr(D + 2)),
             "v_mul_f32 %s, %s, %s" % (vr(VAR), hx(f2u(1 / 512)), vr(VAR)),
             "v_fma_f32 %s, -%s, %s, %s" % (vr(VAR), vr(MEAN), vr(MEAN), vr(VAR)),
             "v_max_f32 %s, 0, %s" % (vr(VAR), vr(VAR))]
        L += rb(VAR) + ["v_add_f32 %s, %s, %s" % (vr(VAR), hx(f2u(1e-5)), vr(VAR))] + rb(VAR) + rb(MEAN)
        L += ["v_sqrt_f32 %s, %s" % (vr(VAR), vr(VAR))] + rb(VAR)
        L += ["v_rcp_f32 %s, %s" % (vr(RS), vr(VAR)),
              "v_mov_b32_dpp %s, %s quad_perm:[1,1,1,1] %s" % (vr(GR + 1), vr(RS), DPPF),
              "v_mov_b32_dpp %s, %s quad_perm:[1,1,1,1] %s" % (vr(t), vr(MEAN), DPPF),
              "v_perm_b32 %s, %s, %s, s48" % (vr(GR + 2), vr(t), vr(MEAN)),
              "v_mov_b32_dpp %s, %s quad_perm:[3,3,3,3] %s" % (vr(TW), vr(D + 2), DPPF)]
        p("\n".join(schedule(L)))
        p("s_mov_b64 exec, s[54:55]\nbuffer_store_dwordx4 %s, %s, s[68:71], 0 offen sc1\ns_mov_b64 exec, -1" % (vr(GR, 4), vr(VSTA)))
        self.stamp(2)
        L = ["v_fma_f32 %s, -%s, %s, %s" % (vr(t), vr(MEAN), vr(TW), vr(D + 3)),
             "v_mul_f32 %s, %s, %s" % (vr(t), vr(t), vr(RS)),
             "v_cvt_pk_bf16_f32 %s, %s, %s" % (vr(t), vr(t), vr(t)),
             "v_ashrrev_i32 %s, 31, %s" % (vr(u), vr(t)),
             "v_or_b32 %s, 0x80000000, %s" % (vr(u), vr(u)),
             "v_xor_b32 %s, %s, %s" % (vr(t), vr(t), vr(u)),
             "v_and_or_b32 %s, %s, s%d, %s" % (vr(t), vr(t), S_HI, vr(IDX)),
             "v_max_u32_dpp %s, %s, %s quad_perm:[1,0,3,2] %s" % (vr(t), vr(t), vr(t), DPPF)]
        L += ["v_readlane_b32 s%d, %s, %d" % (47 + G, vr(t), 20 * G) for G in range(4)]
        L += ["s_max_u32 s47, s47, s48", "s_max_u32 s49, s49, s50", "s_max_u32 s47, s47, s49", "v_mov_b32 v12, s47", "v_mov_b32 v13, %s" % vr(NON),
              "v_readfirstlane_b32 s%d, %s" % (S_NONCE, vr(NON)), "ds_write_b32 %s, %s offset:28" % (vr(FL), vr(NON))]
        p("\n".join(schedule(L)))
        p("s_mov_b64 exec, 1\nbuffer_store_dwordx2 v[12:13], v3, s[68:71], 0 offen sc1\ns_mov_b64 exec, -1")
        p("v_lshlrev_b32 %s, %d, v0\nv_add_u32 %s, %d, %s" % (vr(VKEY), KSH, vr(VKEY), WS_KEY, vr(VKEY)))
        p("s_movk_i32 s58, %d\ns_movk_i32 s59, %d\ns_movk_i32 s46, %d\ns_mov_b32 s57, %d" % (64 << KSH, 128 << KSH, 192 << KSH, POLL_MAX))
        ne = self.opt.get("ne", 7)

        def key_loads():
            for i, so in enumerate(("0", "s58", "s59", "s46")):
                p("buffer_load_dwordx2 %s, %s, s[68:71], %s offen sc1" % (vr(4 + 2 * i, 2), vr(VKEY), so))

        VW, VWD, VTR, VTD, VXB, VQ, SG, XQ, BV = 85, 86, 87, 88, 89, 90, 92, 91, 96

        def dma(i):
            for srd, base in ((60, WGL), (64, WUL)):
                p("s_mov_b32 m0, %d\ns_mov_b32 s47, %d\nbuffer_load_dwordx4 %s, %s, s47 offen lds" % (base + 1024 * i, 64 * 2752 * i, vr(VW), sr(srd, 4)))
        if ne:
            p("s_setprio 0")
            p("s_cmp_ge_u32 s18, s17\ns_cbranch_scc1 F_b0")
            for i in range(ne):
                dma(i)
            p.label("F_b0")
        p("s_waitcnt lgkmcnt(0)")
        self.stamp(11)
        p("s_barrier")
        self.stamp(3)
        key_loads()
        n0 = max(ne, self.opt.get("n0", 0))
        p("s_setprio %d\ns_cmp_ge_u32 s18, s17\ns_cbranch_scc1 F_kwait" % self.opt.get("dprio", 0))
        for i in range(ne, n0):
            dma(i)
        p("s_setprio 3\ns_waitcnt vmcnt(%d)\ns_branch F_kchk" % (2 * (n0 - ne)))
        p.label("F_kpoll")
        key_loads()
        p.label("F_kwait")
        p("s_setprio 3\ns_waitcnt vmcnt(0)")
        p.label("F_kchk")
        p("v_xor_b32 v5, %s, v5\nv_xor_b32 v7, %s, v7\nv_xor_b32 v9, %s, v9\nv_xor_b32 v11, %s, v11\nv_or3_b32 v5, v5, v7, v9\nv_or_b32 v5, v5, v11\nv_cmp_ne_u32 vcc, 0, v5" % ((vr(NON),) * 4))
        p("v_max3_u32 v4, v4, v6, v8\nv_max_u32 v4, v4, v10")
        p("s_cmp_eq_u64 vcc, 0\ns_cbranch_scc1 F_kgot\ns_sub_u32 s57, s57, 1\ns_cmp_lg_u32 s57, 0\ns_cbranch_scc1 F_kpoll")
        p.label("F_kgot")
        for n in (8, 4, 2, 1):
            p("v_max_u32_dpp v4, v4, v4 row_ror:%d %s" % (n, DPPF))
        p("v_readlane_b32 s47, v4, 0\nv_readlane_b32 s48, v4, 16\nv_readlane_b32 s49, v4, 32\nv_readlane_b32 s54, v4, 48")
        p("s_max_u32 s47, s47, s48\ns_max_u32 s49, s49, s54\ns_max_u32 s55, s47, s49")
        p("s_and_b32 s47, s55, 0xffff\ns_sub_u32 s54, 0xffff, s47\ns_and_b32 s54, s54, 2047")
        p("s_lshl_b32 s47, s54, 10\nv_lshl_add_u32 v1, v0, 4, s47\ns_mov_b32 m0, %d\nv_add_u32 %s, s47, %s\nglobal_load_lds_dwordx4 v1, %s" % (XR, vr(VQ), vr(VQ), sr(S_X, 2)))
        p("s_lshr_b32 s48, s54, 1\ns_lshl_b32 s48, s48, 4\ns_add_u32 s48, s48, %d\nv_mov_b32 v2, s48\nbuffer_load_dwordx4 %s, v2, s[68:71], 0 offen sc1" % (WS_ST, vr(SG, 4)))
        p("global_load_ushort %s, %s, %s" % (vr(XQ), vr(VQ), sr(S_X, 2)))
        p("s_add_u32 s47, s54, 1\nv_mov_b32 v2, s47\nds_write_b32 %s, v2 offset:16" % vr(FL))
        self.stamp(4)
        p("s_cmp_ge_u32 s18, s17\ns_cbranch_scc1 F_nounit")
        if n0 < 8:
            p("s_setprio %d" % self.opt.get("dprio", 0))
            for i in range(n0, 8):
                dma(i)
        self.spin4("F_c", vr(FL), F_C, 16)
        p("s_setprio %d" % self.opt.get("fprio", 3))
        p("v_add_u32 v1, 4096, %s" % vr(VWD))
        for m in range(8):
            p("s_mov_b32 m0, %d\ns_nop 0\nglobal_load_lds_dwordx4 %s, %s offset:%d" % (WDL + WDR * m - 1024 * (m & 3), vr(VWD) if m < 4 else "v1", sr(S_WD, 2), 1024 * (m & 3)))
        self.stamp(10)
        TA, AD = 40, 112
        TBs = [4 + 4 * s if s < 4 else 20 + 4 * (s - 4) if s < 9 else 56 + 4 * (s - 9) if s < 12 else 144 + 4 * (s - 12) for s in range(16)]

        def sel_stats():
            p("s_and_b32 s47, s54, 1\ns_cmp_eq_u32 s47, 1\ns_cselect_b64 vcc, -1, 0\ns_cselect_b32 s47, 0, 16")
            p("v_cndmask_b32 %s, %s, %s, vcc\nv_lshlrev_b32 %s, s47, %s\nv_and_b32 %s, s%d, %s\nv_mul_f32 %s, -%s, %s"
              % (vr(SG), vr(SG), vr(SG + 1), vr(SG + 1), vr(SG + 2), vr(SG + 1), S_HI, vr(SG + 1), vr(SG + 1), vr(SG + 1), vr(SG)))
        p("s_waitcnt vmcnt(8)")
        self.stamp(12)
        WF = [112 + 4 * (s % 8) for s in range(16)]

        def rdW(s):
            o = 1024 * (s >> 1) + 512 * (s & 1)
            p("ds_read_b64_tr_b16 %s, %s offset:%d\nds_read_b64_tr_b16 %s, %s offset:%d\nds_read_b128 %s, %s offset:%d"
              % (vr(WF[s], 2), vr(VTR), o, vr(WF[s] + 2, 2), vr(VTR), o + 256, vr(TBs[s], 4), vr(VXB), 64 * s))
        for s in range(4):
            rdW(s)
        sel_stats()
        for s in range(16):
            if s + 4 < 16:
                rdW(s + 4)
            p("s_waitcnt lgkmcnt(%d)" % (3 * min(4, 15 - s)))
            p("v_mfma_f32_16x16x32_bf16 %s, %s, %s, %s" % (vr(D, 4), vr(WF[s], 4), vr(TBs[s], 4), "0" if s == 0 else vr(D, 4)))
        p("s_setprio %d\ns_waitcnt vmcnt(0)" % self.opt.get("fp2", 3))
        self.stamp(5)
        rdD = []
        for s in range(8):
            for hf in range(2):
                rdD.append("ds_read_b64_tr_b16 %s, %s offset:%d" % (vr(AD + 4 * s + 2 * hf, 2), vr(VTD), 128 * s + 4 * WDR * hf))
        g, u, t = 44, 48, 52
        L = []
        for r in range(4):
            L += ["v_mul_f32 %s, %s, %s" % (vr(g + r), vr(D + r), vr(SG)), "v_fmac_f32_dpp %s, %s, %s row_shl:1 %s" % (vr(g + r), vr(D + r), vr(SG + 1), DPPF)]
        L += ["v_cvt_pk_bf16_f32 v40, %s, %s" % (vr(g), vr(g + 1)), "v_cvt_pk_bf16_f32 v41, %s, %s" % (vr(g + 2), vr(g + 3)),
              "v_permlane32_swap_b32 v40, v42", "v_permlane32_swap_b32 v41, v43"]
        for q2 in range(2):
            L += ["v_lshlrev_b32 %s, 16, %s" % (vr(g + 2 * q2), vr(40 + q2)), "v_and_b32 %s, s%d, %s" % (vr(g + 2 * q2 + 1), S_HI, vr(40 + q2)),
                  "v_lshlrev_b32 %s, 16, %s" % (vr(u + 2 * q2), vr(42 + q2)), "v_and_b32 %s, s%d, %s" % (vr(u + 2 * q2 + 1), S_HI, vr(42 + q2))]
        for r in range(4):
            L += ["v_mul_f32 %s, %s, %s" % (vr(t + r), hx(f2u(-LOG2E)), vr(g + r)), "v_exp_f32 %s, %s" % (vr(t + r), vr(t + r)), "v_add_f32 %s, 1.0, %s" % (vr(t + r), vr(t + r)),
                  "v_rcp_f32 %s, %s" % (vr(t + r), vr(t + r)), "v_mul_f32 %s, %s, %s" % (vr(g + r), vr(g + r), vr(t + r))]
        for q2 in range(2):
            L += ["v_cvt_pk_bf16_f32 %s, %s, %s" % (vr(40 + q2), vr(g + 2 * q2), vr(g + 2 * q2 + 1)),
                  "v_lshlrev_b32 %s, 16, %s" % (vr(g + 2 * q2), vr(40 + q2)), "v_and_b32 %s, s%d, %s" % (vr(g + 2 * q2 + 1), S_HI, vr(40 + q2)),
                  "v_mul_f32 %s, %s, %s" % (vr(g + 2 * q2), vr(g + 2 * q2), vr(u + 2 * q2)),
                  "v_mul_f32 %s, %s, %s" % (vr(g + 2 * q2 + 1), vr(g + 2 * q2 + 1), vr(u + 2 * q2 + 1)),
                  "v_cvt_pk_bf16_f32 %s, %s, %s" % (vr(40 + q2), vr(g + 2 * q2), vr(g + 2 * q2 + 1))]
        L += ["v_readlane_b32 s%d, %s, %d" % (60 + pr, vr(40 + (pr & 1)), 16 * (pr >> 1)) for pr in range(4)]
        for i in range(4):
            L.append("s_mov_b32 s%d, 0x%08x" % (64 + i, 0x07060500 + i))
        L += ["s_lshl_b32 s47, s18, 11", "s_add_u32 s47, s47, %d" % WS_FP, "v_lshl_add_u32 v1, v0, 4, s47"]
        p("\n".join(rdD[:4] + merge_prop(schedule(L), rdD[4:])))
        for v in range(4):
            p("s_mov_b64 exec, %s\nv_mov_b64 %s, s[60:61]\nv_mov_b64 %s, s[62:63]" % (sr(8 + 2 * v, 2), vr(BV + 4 * v, 2), vr(BV + 4 * v + 2, 2)))
        p("s_mov_b64 exec, -1\ns_setprio %d\ns_waitcnt lgkmcnt(0)" % self.opt.get("fp3", 3))
        AC = 4
        for s in (0, 4, 1, 5, 2, 6, 3, 7):
            d = AC + 4 * (s >> 2)
            p("v_mfma_f32_16x16x32_bf16 %s, %s, %s, %s" % (vr(d, 4), vr(AD + 4 * s, 4), vr(BV + 4 * (s & 3), 4), "0" if (s & 3) == 0 else vr(d, 4)))
        for hh in range(2):
            for e in range(4):
                p("v_perm_b32 %s, %s, %s, s%d" % (vr(AC + 4 * hh + e), vr(AC + 4 * hh + e), vr(NON), 64 + e))
            p("buffer_store_dwordx4 %s, v1, s[68:71], 0 offen offset:%d sc1" % (vr(AC + 4 * hh, 4), 1024 * hh))
        p("s_branch F_row")
        p.label("F_nounit")
        p("s_waitcnt vmcnt(0)")
        sel_stats()
        p.label("F_row")
        p("s_setprio %d" % self.opt.get("fp4", 1))
        self.stamp(6)
        p("s_and_b32 s47, s54, 1\ns_cmp_lg_u32 s47, s%d\ns_cbranch_scc1 F_done" % S_RHO)
        rbs = lambda r: "v_cvt_pk_bf16_f32 %s, %s, %s\nv_and_b32 %s, s%d, %s" % (r, r, r, r, S_HI, r)
        p("s_ashr_i32 s47, s55, 31\ns_not_b32 s47, s47\ns_or_b32 s47, s47, 0x80000000\ns_xor_b32 s47, s47, s55\ns_and_b32 s47, s47, 0xffff0000")
        p("v_mov_b32 v25, s47\nv_mul_f32 v25, %s, v25\nv_exp_f32 v25, v25\nv_add_f32 v25, 1.0, v25\nv_rcp_f32 v25, v25\n%s" % (hx(f2u(-LOG2E)), rbs("v25")))
        p("s_lshr_b32 s47, s54, 9\ns_mul_i32 s47, s47, %d\ns_bfe_u32 s48, s54, 0x20003\ns_mul_i32 s48, s48, 288\ns_add_u32 s47, s47, s48" % YT)
        p("s_bfe_u32 s48, s54, 0x40005\ns_lshl_b32 s48, s48, 4\ns_add_u32 s47, s47, s48\ns_bfe_u32 s48, s54, 0x20001\ns_lshl_b32 s48, s48, 2\ns_add_u32 s47, s47, s48\ns_add_u32 s47, s47, %d" % YOFF)
        p("v_lshrrev_b32 v26, 4, v0\nv_lshl_add_u32 v26, v26, 14, s47")
        p("s_lshr_b32 s47, s%d, 6\ns_lshl_b32 s47, s47, 10\ns_bfe_u32 s48, s%d, 0x40002\ns_lshl_b32 s48, s48, 4\ns_add_u32 s47, s47, s48\ns_and_b32 s48, s%d, 3\ns_lshl_b32 s48, s48, 8\ns_add_u32 s47, s47, s48\ns_add_u32 s47, s47, %d" % (S_CQ, S_CQ, S_CQ, WS_FP))
        p("v_lshl_add_u32 v27, v0, 11, s47\nv_add_u32 v28, 0x20000, v27\nv_min_u32 v29, 43, v0\nv_lshl_add_u32 v29, v29, 11, s47\nv_add_u32 v29, 0x40000, v29")
        p("s_mov_b32 s58, 0x0c0c0400\ns_mov_b32 s59, 0x04000c0c")
        if self.opt.get("pace", 1):
            self.spin("F_p", "ds_read_b32 v16, %s\ns_waitcnt lgkmcnt(0)\nv_readfirstlane_b32 s47, v16" % vr(FL), "s47")
        p("s_mov_b32 s57, %d\ns_waitcnt vmcnt(0)" % POLL_MAX)
        p("v_lshlrev_b32 %s, 16, %s\nv_fma_f32 v24, %s, %s, %s\n%s" % (vr(XQ), vr(XQ), vr(XQ), vr(SG), vr(SG + 1), rbs("v24")))
        p("s_setprio 3")
        p.label("F_poll")
        for i in range(3):
            p("buffer_load_dwordx4 %s, %s, s[68:71], 0 offen sc1" % (vr(12 + 4 * i, 4), vr(27 + i)))
        p("s_mov_b64 s[60:61], 0\ns_waitcnt vmcnt(0)")
        for i in range(3):
            b = 12 + 4 * i
            p("v_perm_b32 v30, %s, %s, s58\nv_perm_b32 v31, %s, %s, s59\nv_or_b32 v30, v30, v31\nv_cmp_ne_u32 vcc, s%d, v30\ns_or_b64 s[60:61], s[60:61], vcc"
              % (vr(b + 1), vr(b), vr(b + 3), vr(b + 2), S_NONCE))
        p("s_cmp_eq_u64 s[60:61], 0\ns_cbranch_scc1 F_got\ns_sub_u32 s57, s57, 1\ns_cmp_lg_u32 s57, 0\ns_cbranch_scc1 F_poll")
        p.label("F_got")
        self.stamp(7)
        for c in range(12):
            p("v_and_b32 %s, 0xffffff00, %s" % (vr(12 + c), vr(12 + c)))
        for c in range(4):
            p("v_add_f32 %s, %s, %s" % (vr(12 + c), vr(12 + c), vr(16 + c)))
        p("s_mov_b32 exec_hi, 0xfff")
        for c in range(4):
            p("v_add_f32 %s, %s, %s" % (vr(12 + c), vr(12 + c), vr(20 + c)))
        p("s_mov_b64 exec, -1")
        p("v_permlane32_swap_b32 v12, v14\nv_permlane32_swap_b32 v13, v15\nv_add_f32 v12, v12, v14\nv_add_f32 v13, v13, v15\nv_permlane16_swap_b32 v12, v13\nv_add_f32 v12, v12, v13")
        for n in (8, 4, 2, 1):
            p("v_add_f32_dpp v12, v12, v12 row_ror:%d %s" % (n, DPPF))
        p(rbs("v12") + "\nv_mul_f32 v12, v12, v25\n" + rbs("v12") + "\nv_add_f32 v12, v12, v24\n" + rbs("v12"))
        p("v_mul_f32 v13, %s, v12\nv_exp_f32 v13, v13\nv_add_f32 v13, 1.0, v13\nv_rcp_f32 v13, v13\nv_mul_f32 v12, v12, v13\n%s" % (hx(f2u(-LOG2E)), rbs("v12")))
        self.spin("F_y", "ds_read_b128 v[16:19], %s\ns_waitcnt lgkmcnt(0)\nv_min3_u32 v16, v16, v17, v18\nv_min_u32 v16, v16, v19\nv_readfirstlane_b32 s47, v16\ns_lshr_b32 s47, s47, 2" % vr(FL), "s47")
        p("ds_read_b32 v13, v26\ns_waitcnt lgkmcnt(0)")
        p(rbs("v13") + "\nv_mul_f32 v13, v13, v12\n" + rbs("v13") + "\nv_add_f32 v13, v13, %s\nv_cvt_pk_bf16_f32 v13, v13, v13" % vr(XQ))
        p("s_mov_b32 exec_lo, 0x00010001\ns_mov_b32 exec_hi, 0x00010001")
        p("global_store_short %s, v13, %s" % (vr(VQ), sr(S_OUT, 2)))
        p.label("F_done")
        self.stamp(8)
        self.stamp_flush()
        p.label("L_end")
        p("s_endpgm")

    def build(self, header):
        self.entry()
        self.role_F()
        self.role_C()
        self.role_A()
        body = self.p.emit()
        s = header
        s += "; @launch grid=(256,1,1) block=(576,1,1) lds=%d\n" % LDS_BYTES
        s += '.amdgcn_target "amdgcn-amd-amdhsa--gfx950"\n.text\n.globl %s\n.p2align 8\n.type %s,@function\n%s:\n' % (NAME, NAME, NAME)
        s += body
        s += "L_code_end:\n"
        s += """.section .rodata,"a"
.p2align 6
.amdhsa_kernel %s
  .amdhsa_next_free_vgpr 168
  .amdhsa_next_free_sgpr 102
  .amdhsa_accum_offset 168
  .amdhsa_group_segment_fixed_size 0
  .amdhsa_kernarg_size 136
  .amdhsa_user_sgpr_count 2
  .amdhsa_user_sgpr_kernarg_segment_ptr 1
  .amdhsa_system_sgpr_workgroup_id_x 1
.end_amdhsa_kernel
""" % NAME
        return s


if __name__ == "__main__":
    ap = argparse.ArgumentParser()
    ap.add_argument("out")
    ap.add_argument("--stamps", action="store_true")
    ap.add_argument("--dump", default="")
    ap.add_argument("--opt", default="")
    a = ap.parse_args()
    ref = open("recurrent_scan__ssm_conv_s4__moe_arch_mod__prompt.s.ref").read().split("\n")
    header = "\n".join(l for l in ref if l.startswith(";") and "@launch" not in l and not l.startswith("; Override") and not l.startswith("; grid=")) + "\n"
    opt = dict((kv.split("=")[0], int(kv.split("=")[1])) for kv in a.opt.split(",") if kv)
    g = Gen(stamps=a.stamps, dump=set(a.dump.split(",")) if a.dump else None, opt=opt)
    open(a.out, "w").write(g.build(header))
    print("wrote", a.out, "pads", g.p.npad)
```

```python
import sys, math, struct, argparse
from asmlib import Prog, vr, sr, schedule

NAME = "recurrent_scan__ssm_conv_s4__moe_arch_mod__prompt_kernel"

WS_ST = 0x1000
WS_KEY = 0x8000
KSH = 5
WS_CHK = 0x10000
WS_FP = 0x30000
WS_DBG = 0x90000
WS_XD = 0x100000
WS_DUMP = 0x400000
WS_SPAN = 0x300000

REG = 16384
TROW = 272
LO0 = 21
KC1 = 4480
FOFF = 8960
YOFF = 8960
YT = 1280
U0 = 65536
USTR = 5120
FLG = U0 + 4 * USTR
F_Y, F_SEL, F_NON, F_C, F_U, F_K = 0, 16, 28, 32, 48, 64
XR = FLG + 256
ON = XR + 1024
WGL = ON + 1024
WUL = WGL + 8192 + 128
SX = WGL
SXR = 1056
TA0 = WUL + 8192
TASTR = 53 * TROW
WDL = TA0
WDR = 1088
LDS_BYTES = TA0 + 4 * TASTR

LOG2E = 1.4426950408889634
INV2PI = 0.15915494309189535
HK = [0x9E37F1B5, 0x7B45C2D3, 0x5A8D3EE9, 0xC3A5B671]
POLL_MAX = 4000
SPIN_MAX = 200000

S_X, S_ARE, S_AIM, S_BRE, S_BIM, S_CRE, S_CIM, S_LDT = 4, 6, 8, 10, 12, 14, 16, 18
S_DSK, S_WR, S_WG, S_WU, S_WD, S_OUT, S_WS = 20, 24, 26, 28, 30, 32, 36
S_EP, S_NONCE, S_WAVE, S_XCD, S_J, S_CQ, S_RHO = 38, 39, 40, 41, 42, 43, 44
S_HI = 56
S_HK = 72
S_STAMP = 76
DPPF = "row_mask:0xf bank_mask:0xf"
PARAMS = (S_ARE, S_AIM, S_BRE, S_BIM, S_CRE, S_CIM)


def f2u(x):
    return struct.unpack("<I", struct.pack("<f", x))[0]


def hx(x):
    return "0x%08x" % (x & 0xFFFFFFFF)


def lanemask(f):
    return sum(1 << l for l in range(64) if f(l))


def setmask(reg, m):
    if reg in ("exec", "vcc"):
        return "s_mov_b32 %s_lo, %s\ns_mov_b32 %s_hi, %s" % (reg, hx(m), reg, hx(m >> 32))
    return "s_mov_b32 s%d, %s\ns_mov_b32 s%d, %s" % (reg, hx(m), reg + 1, hx(m >> 32))


def merge_prop(a, b):
    out = []
    i = j = 0
    while i < len(a) or j < len(b):
        if j >= len(b) or (i < len(a) and i * len(b) <= j * len(a)):
            out.append(a[i]); i += 1
        else:
            out.append(b[j]); j += 1
    return out


class Gen:
    def __init__(self, stamps=False, dump=None, opt=None):
        self.p = Prog()
        self.stamps = stamps
        self.dump = dump or set()
        self.opt = opt or {}
        self.role = 0

    def stamp(self, i):
        if self.opt.get("ev") == self.role * 100 + i:
            self.p("s_memrealtime s[100:101]\ns_waitcnt lgkmcnt(0)")
        if self.stamps:
            self.p("%s %s\ns_waitcnt lgkmcnt(0)" % ("s_memtime" if self.opt.get("cyc") else "s_memrealtime", sr(S_STAMP + 2 * i, 2)))

    def stamp_flush(self):
        p = self.p
        if self.opt.get("ev", -1) // 100 == self.role:
            p.label("EV_pad")
            p("s_memrealtime s[98:99]\ns_waitcnt lgkmcnt(0)\ns_sub_u32 s98, s98, s100\ns_cmp_lt_u32 s98, 2000\ns_cbranch_scc1 EV_pad")
        if not self.stamps:
            return
        p("s_mov_b64 exec, -1")
        p("s_mul_i32 s47, s2, 9\ns_add_u32 s47, s47, s%d\ns_lshl_b32 s47, s47, 6\ns_add_u32 s47, s47, %d" % (S_WAVE, WS_DBG))
        p("v_mov_b32 v2, 0")
        for i in range(13):
            p("v_writelane_b32 v2, s%d, %d" % (S_STAMP + 2 * i, i))
        p("v_mbcnt_lo_u32_b32 v1, -1, 0\nv_mbcnt_hi_u32_b32 v1, -1, v1\nv_lshl_add_u32 v1, v1, 2, s47")
        p("s_mov_b64 exec, 0xffff")
        p("global_store_dword v1, v2, %s" % sr(S_WS, 2))
        p("s_mov_b64 exec, -1")

    def dump_lds(self, tag, lds_sgpr, nbytes, slot):
        if tag not in self.dump:
            return
        p = self.p
        p("s_waitcnt lgkmcnt(0)")
        p("s_lshl_b32 s49, s2, 3\ns_add_u32 s49, s49, %s\ns_lshl_b32 s49, s49, 14\ns_add_u32 s49, s49, %d" % (slot, WS_DUMP))
        p("v_lshl_add_u32 v164, v0, 4, %s" % lds_sgpr)
        p("v_lshl_add_u32 v165, v0, 4, s49")
        for o in range(0, nbytes, 1024):
            p("ds_read_b128 v[160:163], v164 offset:%d\ns_waitcnt lgkmcnt(0)" % o)
            p("global_store_dwordx4 v165, v[160:163], %s\nv_add_u32 v165, 1024, v165\ns_nop 1" % sr(S_WS, 2))
        p("s_waitcnt vmcnt(0)")

    def nonce(self):
        self.p("s_mul_i32 s%d, s%d, 0x9E3779B1\ns_add_u32 s%d, s%d, 1" % (S_NONCE, S_EP, S_NONCE, S_NONCE))

    def hk(self):
        for k in range(4):
            self.p("s_mov_b32 s%d, %s" % (S_HK + k, hx(HK[k])))

    def hash_ops(self, G, H, HI, ROT):
        L = ["v_dot2_u32_u16 %s, %s, s%d, %s" % (vr(H), vr(G + q), S_HK + q, vr(HI if q == 0 else H)) for q in range(4)]
        L.append("v_alignbit_b32 %s, %s, %s, %s" % (vr(H), vr(H), vr(H), vr(ROT)))
        for qp in ("[1,0,3,2]", "[2,3,0,1]"):
            L.append("v_add_u32_dpp %s, %s, %s quad_perm:%s %s" % (vr(H), vr(H), vr(H), qp, DPPF))
        return L

    def srd(self, d, ptr, size):
        self.p("s_mov_b64 %s, %s\ns_mov_b32 s%d, %d\ns_mov_b32 s%d, 0x00020000" % (sr(d, 2), sr(ptr, 2), d + 2, size, d + 3))

    def spin(self, name, body, sres, sleep=1):
        p = self.p
        p("s_mov_b32 s57, %d" % SPIN_MAX)
        p.label(name + "_w")
        p(body)
        p("s_cmp_lg_u32 %s, 0\ns_cbranch_scc1 %s_g" % (sres, name))
        p("s_sleep %s\ns_sub_u32 s57, s57, 1\ns_cmp_lg_u32 s57, 0\ns_cbranch_scc1 %s_w" % (sleep, name))
        p.label(name + "_g")

    def spin4(self, name, addr, off, t, shift=0, sleep=1):
        body = "ds_read_b128 %s, %s offset:%d\ns_waitcnt lgkmcnt(0)\nv_min3_u32 %s, %s, %s, %s\nv_min_u32 %s, %s, %s\nv_readfirstlane_b32 s47, %s" % (
            vr(t, 4), addr, off, vr(t), vr(t), vr(t + 1), vr(t + 2), vr(t), vr(t), vr(t + 3), vr(t))
        if shift:
            body += "\ns_lshr_b32 s47, s47, %d" % shift
        self.spin(name, body, "s47", sleep)

    def kg_consts(self):
        self.p("s_mov_b32 s64, %s\ns_mov_b32 s65, %s\ns_mov_b32 s66, %s\ns_mov_b32 s67, %s\nv_mov_b32 v35, 0x3f80"
               % (hx(f2u(LOG2E)), hx(f2u(INV2PI)), hx(f2u(256 * LOG2E)), hx(f2u(256 * INV2PI))))

    def touch_addr(self, V):
        p = self.p
        p("s_mul_i32 s52, s%d, 43\ns_add_u32 s53, s52, 43\ns_lshr_b32 s52, s52, 1\ns_lshr_b32 s53, s53, 1" % S_XCD)
        p("s_cmp_ge_u32 s46, 2\ns_cbranch_scc1 T%d_1" % self.role)
        p("s_lshl_b32 s47, s%d, 4\nv_lshrrev_b32 v1, 2, v0\nv_add_u32 v1, s47, v1\nv_mul_u32_u24 v1, 2752, v1" % S_J)
        p("s_lshl_b32 s47, s52, 4\ns_lshl_b32 s48, s53, 4\nv_add_u32 v2, s47, v1\nv_and_b32 v2, 0xffffff80, v2\nv_add_u32 v1, s48, v1")
        p("v_and_b32 v3, 3, v0\nv_lshl_add_u32 v3, v3, 7, v2\nv_cmp_lt_u32 vcc, v3, v1\nv_cndmask_b32 %s, v2, v3, vcc" % vr(V))
        p("s_cmp_eq_u32 s46, 0\ns_cselect_b32 s60, s%d, s%d\ns_cselect_b32 s61, s%d, s%d\ns_branch T%d_3" % (S_WG, S_WU, S_WG + 1, S_WU + 1, self.role))
        p.label("T%d_1" % self.role)
        p("s_cmp_eq_u32 s46, 2\ns_cbranch_scc1 T%d_2" % self.role)
        p("s_lshl_b32 s47, s%d, 16\ns_lshl_b32 s48, s%d, 7\ns_add_u32 s47, s47, s48\nv_lshl_add_u32 %s, v0, 10, s47\ns_mov_b64 s[60:61], %s\ns_branch T%d_3" % (S_J, S_XCD, vr(V), sr(S_OUT, 2), self.role))
        p.label("T%d_2" % self.role)
        p("s_mul_i32 s47, s%d, 43\nv_min_u32 v1, 42, v0\nv_add_u32 v1, s47, v1\ns_lshl_b32 s47, s52, 13\nv_lshl_add_u32 v1, v1, 7, s47\nv_min_u32 %s, %d, v1\ns_mov_b64 s[60:61], %s"
          % (S_J, vr(V), 1376 * 1024 - 128, sr(S_WD, 2)))
        p.label("T%d_3" % self.role)

    def touch(self, where, V):
        m = self.opt.get(where, {"pf0": 0, "pf1": 4, "pf2": 0, "pf3": 0}[where])
        if m:
            self.p("s_lshr_b32 s47, %d, s46\ns_bitcmp0_b32 s47, 0\ns_cbranch_scc1 T_s%s\nglobal_load_dword v167, %s, s[60:61]" % (m, where, vr(V)))
            self.p.label("T_s%s" % where)

    def param_addr(self):
        self.p("s_lshl_b32 s48, s%d, 2\ns_add_u32 s48, s48, s46\ns_lshl_b32 s48, s48, 8\nv_lshl_add_u32 v3, v0, 1, s48\ns_lshr_b32 s49, s48, 7\nv_mov_b32 v5, s49" % S_CQ)
        self.p("v_mov_b64 v[52:53], 0\nv_mov_b64 v[72:73], 0\nv_mov_b64 v[94:95], 0\nv_mov_b32 v4, 0")

    def param_loads(self, h):
        for r, s in zip((52, 53, 72, 73, 94, 95), PARAMS):
            self.p("global_load_short_d16_hi %s, v3, %s offset:%d" % (vr(r), sr(s, 2), 128 * h))
        self.p("global_load_short_d16_hi v4, v5, %s" % sr(S_LDT, 2))

    def cmul(self, d, x, y):
        return ["v_pk_mul_f32 %s, %s, %s op_sel:[0,0] op_sel_hi:[1,0]" % (vr(d, 2), vr(x, 2), vr(y, 2)),
                "v_pk_fma_f32 %s, %s, %s, %s op_sel:[1,1,0] op_sel_hi:[0,1,1] neg_lo:[1,0,0]" % (vr(d, 2), vr(x, 2), vr(y, 2), vr(d, 2))]

    def kgen_pass(self, h):
        PRM = 4
        Z1, Z8, ZW, ZR = 52, 54, 56, 58
        LR, WR_, PR, CR, T = 70, 74, 80, 84, 92
        bc = "op_sel:[0,0] op_sel_hi:[1,0]"
        L = ["v_mul_f32 v4, s64, v4", "v_exp_f32 v4, v4", "v_cvt_pk_bf16_f32 v4, v4, v4", "v_and_b32 v4, s%d, v4" % S_HI,
             "v_pk_mul_f32 %s, %s, v[4:5] %s" % (vr(T, 2), vr(Z1, 2), bc)]
        for z, sp, t in ((Z1, 64, PR), (ZW, 66, PR + 2)):
            L += ["v_pk_mul_f32 %s, %s, %s" % (vr(t, 2), vr(T, 2), sr(sp, 2)),
                  "v_exp_f32 %s, %s" % (vr(t), vr(t)),
                  "v_fract_f32 %s, %s" % (vr(t + 1), vr(t + 1)),
                  "v_cos_f32 %s, %s" % (vr(z), vr(t + 1)),
                  "v_sin_f32 %s, %s" % (vr(z + 1), vr(t + 1)),
                  "v_pk_mul_f32 %s, %s, %s %s" % (vr(z, 2), vr(z, 2), vr(t, 2), bc)]
        L += ["v_pk_mul_f32 %s, %s, v[4:5] %s" % (vr(LR + 2, 2), vr(LR + 2, 2), bc)]
        L += self.cmul(LR, LR + 2, T + 2)
        cnt = [0, 0]

        def put(row, z, conj=False):
            c = CR + 4 * int(conj) + cnt[int(conj)] % 4
            cnt[int(conj)] += 1
            return ["v_cvt_pk_bf16_f32 %s, %s, %s%s" % (vr(c), vr(z), "-" if conj else "", vr(z + 1)),
                    "ds_write_addtid_b32 %s offset:%d" % (vr(c), row * TROW)]
        zr = {1: Z1}
        for r in range(2, 8):
            zr[r] = ZR + 2 * (r - 2)
        L += self.cmul(zr[2], Z1, Z1) + self.cmul(zr[4], zr[2], zr[2]) + self.cmul(Z8, zr[4], zr[4])
        sL, sH = [], []
        for j in range(32):
            cur, nxt = LR + 2 * (j & 1), LR + 2 * ((j + 1) & 1)
            if j < 31:
                sL += self.cmul(nxt, cur, Z8)
            sL += put(LO0 + j, cur, True)
        sH += put(1, Z1) + put(2, zr[2]) + put(4, zr[4])
        for r, (a, b) in ((3, (2, 1)), (5, (4, 1)), (6, (4, 2)), (7, (4, 3))):
            sH += self.cmul(zr[r], zr[a], zr[b]) + put(r, zr[r])
        rows_for = {1: [(8, 0), (9, 2), (10, 4), (11, 6)], 2: [(12, 0), (13, 4)], 3: [(14, 0), (15, 4)]}
        for m in range(4, 9):
            rows_for[m] = [(12 + m, 0)]
        wreg = {1: ZW}
        pc = 0
        for m in range(1, 9):
            if m > 1:
                wreg[m] = WR_ + 2 * (m % 3)
                sH += self.cmul(wreg[m], wreg[m - 1], ZW)
            for row, r in rows_for[m]:
                if r == 0:
                    sH += put(row, wreg[m])
                else:
                    t = PR + 2 * (pc & 1)
                    pc += 1
                    sH += self.cmul(t, wreg[m], zr[r]) + put(row, t)
        return schedule(L + merge_prop(sH, sL), keep_ds_order=False)

    def entry(self):
        p = self.p
        p("s_cmp_ge_u32 s2, 256\ns_cbranch_scc1 L_end")
        p("s_load_dwordx16 s[4:19], s[0:1], 0\ns_load_dwordx16 s[20:35], s[0:1], 64\ns_load_dwordx2 s[36:37], s[0:1], 128")
        if self.stamps:
            for i in range(13):
                p("s_mov_b32 s%d, 0" % (S_STAMP + 2 * i))
            p("%s %s" % ("s_memtime" if self.opt.get("cyc") else "s_memrealtime", sr(S_STAMP, 2)))
        p("v_lshrrev_b32 v1, 6, v0\nv_and_b32 v0, 63, v0\ns_and_b32 s%d, s2, 7\nv_readfirstlane_b32 s%d, v1" % (S_XCD, S_WAVE))
        p("s_lshr_b32 s%d, s2, 3\ns_lshr_b32 s%d, s2, 4\ns_lshl_b32 s45, s%d, 4\ns_add_u32 s%d, s%d, s45\ns_and_b32 s%d, s%d, 1\ns_mov_b32 s%d, 0xffff0000"
          % (S_J, S_CQ, S_XCD, S_CQ, S_CQ, S_RHO, S_J, S_HI))
        p("s_add_u32 s46, s%d, 3\ns_and_b32 s46, s46, 3\ns_lshl_b32 s47, s2, 13" % S_WAVE)
        p("s_cmp_gt_u32 s%d, 4\ns_cbranch_scc1 A_init\ns_cmp_lg_u32 s%d, 0\ns_cbranch_scc1 C_init" % (S_WAVE, S_WAVE))
        self.init_F()
        self.init_C()
        self.init_A()

    def init_F(self):
        p = self.p
        self.role = 3
        p("v_lshlrev_b32 v2, 4, v0\nv_mov_b32 v4, 0x3f803f80\nv_mov_b32 v5, v4\nv_mov_b32 v6, v4\nv_mov_b32 v7, v4\nv_add_u32 v3, %d, v2\nds_write_b128 v3, v[4:7]" % ON)
        D, IDX, VSTA, VKEY, VSX, NON, FL = 72, 70, 71, 76, 68, 83, 77
        p("v_bfe_u32 v1, v0, 2, 2\nv_and_b32 v2, 1, v0\nv_lshl_add_u32 v1, v1, 1, v2\ns_lshl_b32 s47, s2, 3\ns_sub_u32 s47, 0xffff, s47\nv_sub_u32 %s, s47, v1" % vr(IDX))
        p("v_mul_u32_u24 v1, %d, v1\nv_add_u32 %s, %d, v1\ns_mov_b32 exec_lo, 0x44444444\ns_mov_b32 exec_hi, exec_lo\nv_mov_b32 %s, %d" % (SXR, vr(VSX), SX, vr(VSX), ON))
        p("s_mov_b32 exec_lo, 0x88888888\ns_mov_b32 exec_hi, exec_lo\nv_mov_b32 %s, %d\ns_mov_b64 exec, -1" % (vr(VSX), SX + 8 * SXR))
        p("v_and_b32 v1, 48, v0\nv_add_u32 %s, v1, %s" % (vr(VSX), vr(VSX)))
        p("s_lshl_b32 s47, s2, 6\ns_add_u32 s47, s47, %d\nv_add_u32 %s, s47, v1\ns_lshl_b32 s45, s2, %d\ns_add_u32 s45, s45, %d" % (WS_ST, vr(VSTA), KSH, WS_KEY))
        p("v_lshlrev_b32 v2, 4, v0\nv_mov_b32 v3, 0\ns_mov_b32 m0, %d\ns_waitcnt lgkmcnt(0)" % (SX + 8 * SXR))
        for _ in range(self.opt.get("fdel", 0)):
            p("s_nop 15")
        p("global_load_lds_dwordx4 v2, %s\nglobal_load_dword %s, v3, %s\ns_branch F_main" % (sr(S_WR, 2), vr(NON), sr(S_WS, 2)))

    def init_C(self):
        p = self.p
        self.role = 1
        ROT, VDA, VCA, VA, VB, VYW = 107, 108, 109, 20, 21, 34
        p.label("C_init")
        p("s_setprio 2\ns_lshl_b32 s48, s46, 8\ns_add_u32 s48, s47, s48")
        p("v_and_b32 v10, 60, v0\nv_lshl_add_u32 v11, v10, 1, s48\nv_and_b32 v2, 3, v0\nv_lshl_add_u32 v11, v2, 11, v11")
        self.param_addr()
        p("s_lshl_b32 s45, s46, 14\ns_mov_b32 m0, s45")
        self.hk()
        p("v_mul_u32_u24 %s, 7, v2" % vr(ROT))
        p("s_lshl_b32 s48, s46, 11\ns_add_u32 s47, s47, s48\ns_add_u32 s47, s47, %d\nv_lshl_add_u32 %s, v0, 4, s47" % (WS_XD, vr(VDA)))
        p("s_and_b32 s47, s2, 63\ns_lshl_b32 s47, s47, 2\ns_lshr_b32 s48, s2, 6\ns_add_u32 s47, s47, s48\ns_lshl_b32 s47, s47, 6")
        p("s_lshl_b32 s48, s46, 15\ns_add_u32 s47, s47, s48\ns_add_u32 s47, s47, %d" % WS_CHK)
        p("v_lshl_add_u32 %s, v2, 14, s47\nv_add_u32 %s, v10, %s" % (vr(VCA), vr(VCA), vr(VCA)))
        p("s_lshl_b32 s47, s46, 8\ns_add_u32 s47, s47, %d\nv_mul_u32_u24 v110, %d, v2\nv_lshl_add_u32 v110, v10, 1, v110\nv_add_u32 v110, s47, v110" % (SX, 2 * SXR))
        self.kg_consts()
        p("ds_write_addtid_b32 v35 offset:0\nv_mov_b64 v[6:7], 0")
        p("s_waitcnt lgkmcnt(0)")
        self.stamp(9)
        for S in range(2):
            for r in range(2):
                p("global_load_dwordx2 %s, v11, %s offset:%d" % (vr(96 + 4 * S + 2 * r, 2), sr(S_X, 2), 1024 * r + 128 * S))
        self.param_loads(0)
        p("global_load_dword v106, v6, %s" % sr(S_WS, 2))
        p("s_mov_b64 exec, 1\nglobal_load_short_d16_hi v7, v5, %s\ns_mov_b64 exec, -1" % sr(S_DSK, 2))
        p("s_branch C_main")

    def init_A(self):
        p = self.p
        self.role = 2
        p.label("A_init")
        if self.opt.get("code"):
            p("s_getpc_b64 s[52:53]")
            p.label("A_pc")
            p("s_lshl_b32 s47, s46, 13\nv_lshl_add_u32 v1, v0, 7, s47\nv_min_u32 v1, L_code_end-A_pc-4, v1\nglobal_load_dword v10, v1, s[52:53]")
        self.param_addr()
        p("s_mul_i32 s47, s46, %d\ns_add_u32 s47, s47, %d\ns_mov_b32 m0, s47" % (TASTR, TA0))
        self.kg_consts()
        p("ds_write_addtid_b32 v35 offset:0")
        p("v_mov_b32 v12, 0\nv_mov_b32 v13, 0\nv_mov_b32 v14, 0\nv_mov_b32 v15, 0")
        p("s_mul_i32 s48, s46, %d\ns_add_u32 s48, s48, %d\nv_lshl_add_u32 v2, v0, 4, s48\nds_write_b128 v2, v[12:15]" % (USTR, U0))
        p("s_waitcnt lgkmcnt(0)")
        self.param_loads(1)
        p("s_branch A_main")

    def role_C(self):
        self.role = 1
        p = self.p
        G0, G1, H0, H1, HI, ROT, VDA, VCA = 96, 100, 104, 105, 106, 107, 108, 109
        E, VA, VB, VTAB, VF, VYW, D = 10, 20, 21, 29, 30, 34, 36
        p.label("C_main")
        self.touch_addr(19)
        p("v_and_b32 v1, 15, v0\nv_lshrrev_b32 v2, 4, v0")
        p("s_add_u32 s47, s45, 64\ns_movk_i32 s52, %d\nv_and_b32 v3, 1, v0\nv_lshl_add_u32 %s, v2, 4, s47\nv_mad_u32_u24 %s, v3, s52, %s\nv_lshlrev_b32 v3, 2, v1\nv_sub_u32 %s, %s, v3"
          % (KC1 + 4, vr(VA), vr(VA), vr(VA), vr(VA), vr(VA)))
        p("s_add_u32 s47, s45, %d\ns_movk_i32 s52, 288\nv_lshl_add_u32 %s, v1, 4, s47\nv_mad_u32_u24 %s, v2, s52, %s" % (YOFF, vr(VYW), vr(VYW), vr(VYW)))
        p("s_mul_i32 s47, s46, %d\ns_add_u32 s47, s47, %d\nv_lshl_add_u32 v1, v1, 6, s47\nv_lshl_add_u32 v1, v2, 4, v1\nv_xor_b32 v2, 32, v1" % (USTR, U0 + 64))
        for kk in range(4):
            m = lanemask(lambda l: ((8 - kk + (l & 15)) >> 2) & 1)
            p("s_mov_b32 vcc_lo, %s\ns_mov_b32 vcc_hi, vcc_lo" % hx(m))
            p("v_cndmask_b32 %s, v1, v2, vcc\nv_cndmask_b32 %s, v2, v1, vcc" % (vr(VB + kk), vr(VB + kk + 4)))
        p("v_and_b32 v1, 31, v0\nv_lshrrev_b32 v2, 5, v0")
        p("s_movk_i32 s52, %d\nv_lshl_add_u32 %s, v2, 4, s45\nv_mad_u32_u24 %s, v1, s52, %s" % (TROW, vr(VTAB), vr(VTAB), vr(VTAB)))
        p("s_add_u32 s48, s45, %d\ns_add_u32 s47, s%d, 2048\ns_sub_u32 s59, s48, %d" % (FOFF, S_RHO, 4 * 0x4280 + 4))
        p("v_lshl_add_u32 %s, v2, 4, s48\nv_lshl_add_u32 %s, v1, 5, %s" % (vr(VF), vr(VF), vr(VF)))
        p("s_movk_i32 s52, 248\nv_sub_u32 v3, 4, v2\nv_lshlrev_b32 v3, v3, v1\nv_lshl_add_u32 v9, v2, 9, s48\nv_add_u32 %s, v3, v9\nv_mad_u32_u24 %s, v2, s52, %s\nv_lshl_add_u32 %s, v1, 2, v9"
           % (vr(VF + 1), vr(VF + 2), vr(VF + 1), vr(VF + 3)))
        p("v_lshlrev_b32 v1, 1, v0\nv_sub_u32 v1, s47, v1\nv_cvt_f32_u32 v1, v1")
        for n, k in enumerate((7, 11, 13)):
            p("v_add_f32 v2, %s, v1\nv_add_f32 v3, %s, v1\nv_cvt_pk_bf16_f32 v2, v2, v3" % (hx(f2u(-128.0 * k)), hx(f2u(-128.0 * k - 1))))
            p("v_mad_u32_u16 %s, v2, 4, s59\nv_cmp_eq_u32_sdwa %s, v2, v2 src0_sel:WORD_0 src1_sel:WORD_1" % (vr(E + n), sr(4 + 2 * n, 2)))
        p("s_lshl_b32 s47, s%d, 2\ns_add_u32 s47, s47, s48\ns_add_u32 s52, s47, 508\ns_sub_u32 s54, s48, 8\ns_mov_b32 s10, s%d\ns_mov_b32 s11, 0" % (S_RHO, S_RHO))
        p("v_lshlrev_b32 v1, 3, v0\nv_sub_u32 %s, s52, v1\nv_add_u32 v1, -512, %s\nv_max_i32 %s, s54, v1" % (vr(E + 3), vr(E + 3), vr(E + 4)))
        p("s_lshl_b32 s47, s46, 2\ns_add_u32 s47, s47, %d\nv_mov_b32 v15, s47\nv_mov_b32 v16, 1\nv_mov_b32 v17, 2\nv_mov_b32 v18, %d" % (FLG, FLG))
        p("s_mul_i32 s47, s46, %d\ns_add_u32 s47, s47, %d\ns_sub_u32 s47, s47, s45\nv_add_u32 v8, s47, %s" % (TASTR, TA0, vr(VTAB)))
        p("s_mov_b32 vcc_lo, 0x22222222\ns_mov_b32 vcc_hi, vcc_lo\ns_mov_b32 s52, 0x33333333\ns_mov_b32 s53, s52")
        p("s_mov_b32 s47, %s\ns_waitcnt vmcnt(11)" % hx(2 * 0x9E3779B1))
        p("ds_write2_b64 v110, %s, %s offset0:0 offset1:%d" % (vr(G0, 2), vr(G0 + 2, 2), SXR // 8))
        p("global_store_dwordx4 %s, %s, %s sc1" % (vr(VDA), vr(G0, 4), sr(S_WS, 2)))
        p("s_waitcnt vmcnt(10)")
        p("ds_write2_b64 v110, %s, %s offset0:16 offset1:%d" % (vr(G1, 2), vr(G1 + 2, 2), SXR // 8 + 16))
        p("global_store_dwordx4 %s, %s, %s offset:1024 sc1" % (vr(VDA), vr(G1, 4), sr(S_WS, 2)))
        p("s_waitcnt lgkmcnt(0)\ns_barrier")
        self.stamp(1)
        p("s_setprio %d\ns_waitcnt vmcnt(4)" % self.opt.get("ckprio", 1))
        self.stamp(2)
        FR = 96
        body = self.kgen_pass(0)
        cut0 = self.opt.get("hat", 30)
        p("\n".join(body[:cut0]))
        body = body[cut0:]
        p("s_waitcnt vmcnt(3)\nv_mul_lo_u32 %s, %s, s47\nv_add_u32 %s, 2, %s" % (vr(HI), vr(HI), vr(HI), vr(HI)))
        p("\n".join(schedule(self.hash_ops(G0, H0, HI, ROT) + self.hash_ops(G1, H1, HI, ROT))))
        p("v_cndmask_b32 %s, %s, %s, vcc\ns_mov_b64 exec, s[52:53]" % (vr(H0), vr(H0), vr(H1)))
        p("global_store_dword %s, %s, %s sc1" % (vr(VCA), vr(H0), sr(S_WS, 2)))
        p("s_mov_b64 exec, -1")
        self.touch("pf0", 19)
        cut = self.opt.get("pfat", 10)
        p("\n".join(body[:cut]))
        self.touch("pf1", 19)
        sw = self.opt.get("psw", 0)
        if sw:
            p("\n".join(body[cut:sw]))
            p("s_setprio %d" % self.opt.get("ckprio2", 0))
            cut = sw
        p("\n".join(body[cut:]))

        def tab_read(h, ks):
            a = vr(8 if h else VTAB)
            p("ds_read_b128 %s, %s offset:%d" % (vr(FR + 8 * ks, 4), a, 32 * ks))
            p("ds_read_b128 %s, %s offset:%d" % (vr(FR + 8 * ks + 4, 4), a, LO0 * TROW + 32 * ks))

        def mf(h, ks):
            c = "0" if (h == 0 and ks == 0) else vr(D, 16)
            return "v_mfma_f32_32x32x16_bf16 %s, %s, %s, %s" % (vr(D, 16), vr(FR + 8 * ks, 4), vr(FR + 8 * ks + 4, 4), c)
        late = self.opt.get("late", 1)
        tail = "v_mov_b64 v[2:3], 0\nv_mov_b32 v1, s54"
        if late:
            seq = [(0, ks) for ks in range(8)] + [(1, ks) for ks in range(8)]
            for n in range(6):
                tab_read(*seq[n])
            p(tail)
            self.stamp(11)
            p("s_barrier")
            for n in range(16):
                if n + 6 < 16:
                    tab_read(*seq[n + 6])
                p("s_waitcnt lgkmcnt(%d)" % (2 * min(6, 15 - n)))
                p(mf(*seq[n]))
            p("ds_write_b64 v1, v[2:3]")
        else:
            for ks in range(8):
                tab_read(0, ks)
            p(tail)
            for ks in range(8):
                p("s_waitcnt lgkmcnt(%d)" % (14 - 2 * ks))
                p(mf(0, ks))
            self.stamp(11)
            p("s_barrier")
            for ks in range(8):
                tab_read(1, ks)
            p("ds_write_b64 v1, v[2:3]")
            for ks in range(8):
                p("s_waitcnt lgkmcnt(%d)" % (15 - 2 * ks))
                p(mf(1, ks))
        self.stamp(3)
        p("s_waitcnt vmcnt(%d)\nv_add_f32 %s, %s, v7" % (3, vr(D), vr(D)))
        p("ds_write_b128 %s, %s" % (vr(VF), vr(D, 4)))
        p("ds_write_b64 %s, %s offset:1024\nds_write_b64 %s, %s offset:1032" % (vr(VF + 1), vr(D + 4, 2), vr(VF + 2), vr(D + 6, 2)))
        q = []

        def issue(line, tag=None):
            p(line)
            q.append(tag)

        def wait_for(tags):
            last = max(i for i, t in enumerate(q) if t in tags)
            p("s_waitcnt lgkmcnt(%d)" % min(len(q) - 1 - last, 15))
        src = {}
        for k in range(8):
            src[k] = (E, 16 * (7 - k), 4)
        for k in range(8, 12):
            src[k] = (E + 1, 32 * (11 - k), 6)
        for k in range(12, 14):
            src[k] = (E + 2, 64 * (13 - k), 8)
        src[14] = (E + 3, 128, None)
        src[15] = (E + 3, 0, None)
        src[16] = (E + 4, 0, None)
        npass = self.opt.get("npass", 2)
        deleg = self.opt.get("deleg", 0) and npass > 1
        order = list(range(16, 7 if deleg else -1, -1))
        LA = 4

        def rd(k):
            a, o, _ = src[k]
            issue("ds_read2_b32 %s, %s offset0:%d offset1:%d" % (vr(96 + 2 * k, 2), vr(a), o, o + 1), ("e", k))
        for k in order[:LA]:
            rd(k)
        for r in range(4):
            issue("ds_write_b32 %s, %s offset:%d" % (vr(VF + 3), vr(D + 8 + r), 2048 + 128 * r))
        issue("ds_write_b32 v15, v16 offset:%d" % F_C)
        for i, k in enumerate(order):
            if i % 2 == 0:
                wait_for({("e", kk) for kk in order[i:i + 2]})
            a = 96 + 2 * k
            if src[k][2]:
                p("v_cndmask_b32 %s, %s, %s, %s" % (vr(a), vr(a), vr(a + 1), sr(src[k][2], 2)))
            if k == 14:
                p("v_cndmask_b32 %s, %s, %s, s[10:11]" % (vr(a + 1), vr(a + 1), vr(a)))
            p("v_cvt_pk_bf16_f32 %s, %s, %s" % (vr(132 + k), vr(a + 1), vr(a)))
            if i + LA < len(order):
                rd(order[i + LA])
            issue("ds_write_addtid_b32 %s offset:%d" % (vr(132 + k), 256 * k))
            issue("ds_write_addtid_b32 %s offset:%d" % (vr(132 + k), KC1 + 4 + 256 * k))
        self.dump_lds("K", "s45", 12288, "s46")
        ACC, BUF = 48, 64
        one = npass == 1
        passes = {1: [(0, 1, 2, 3)], 2: [(0, 1), (2, 3)], 3: [(0, 1), (2,), (3,)]}[npass]
        stages = [(k0, js, tuple(range(4 - js[0]))) for js in passes for k0 in range(16)]
        SZ, NA = (32, 4) if one else (24, 2)
        areg = lambda s, j: BUF + SZ * (s % 3) + 4 * (j % NA)
        breg = lambda s, x: BUF + SZ * (s % 3) + 4 * NA + 4 * x

        def rdA(s, j):
            o = 4032 - 64 * stages[s][0] - 1024 * j
            return [("ds_read_b64 %s, %s offset:%d" % (vr(areg(s, j), 2), vr(VA), o), s), ("ds_read_b64 %s, %s offset:%d" % (vr(areg(s, j) + 2, 2), vr(VA), o + 8), s)]

        def rdB(s, x):
            k0 = stages[s][0]
            return [("ds_read_b128 %s, %s offset:%d" % (vr(breg(s, x), 4), vr(VB + (k0 & 7)), 1024 * x + 512 * (1 - (k0 >> 3)) + 448 - 64 * (k0 & 7)), s)]

        def reads(s):
            _, js, qs = stages[s]
            return sum((rdA(s, j) for j in js), []) + sum((rdB(s, x) for x in qs), [])
        if one:
            p("s_waitcnt lgkmcnt(0)")
        for s in (0, 1):
            for j in stages[s][1]:
                for l, t in rdA(s, j):
                    issue(l, t)
        self.touch("pf3", 19)
        p("s_waitcnt lgkmcnt(0)")
        q.clear()
        self.stamp(4)
        self.spin4("C_u", "v18", F_U, 4, sleep=0)
        p("s_setprio %d" % self.opt.get("cprio", 2))
        self.stamp(5)
        for s in (0, 1):
            for x in range(4):
                for l, t in rdB(s, x):
                    issue(l, t)
        first = set()
        pending = []

        def ywrite(tiles, val):
            for T in tiles:
                issue("ds_write_b128 %s, %s offset:%d" % (vr(VYW), vr(ACC + 4 * T, 4), YT * T))
            issue("ds_write_b32 v15, %s" % vr(val))
        for s, (k0, js, qs) in enumerate(stages):
            if deleg and s == 12:
                issue("ds_read_b32 v4, v15 offset:%d" % F_K, 14)
            nxt = reads(s + 2) if s + 2 < len(stages) else []
            wait_for({s})
            if deleg and s == 14:
                p("v_readfirstlane_b32 s47, v4\ns_cmp_lg_u32 s47, 0\ns_cbranch_scc1 C_k_g")
                self.spin("C_k", "ds_read_b32 v4, v15 offset:%d\ns_waitcnt lgkmcnt(0)\nv_readfirstlane_b32 s47, v4" % F_K, "s47", 0)
            mm = [(j, x) for j in js for x in qs if j + x < 4]
            if k0 == 15:
                mm.sort(key=lambda a: (a[0] + a[1] > js[-1], a[0] + a[1]))
            elif len(mm) == 3:
                mm = [(2, 1), (2, 0), (3, 0)]
            tot, done = len(nxt), 0
            for m, (j, x) in enumerate(mm):
                T = j + x
                c = vr(ACC + 4 * T, 4) if T in first else "0"
                first.add(T)
                p("v_mfma_f32_16x16x32_bf16 %s, %s, %s, %s" % (vr(ACC + 4 * T, 4), vr(areg(s, j), 4), vr(breg(s, x), 4), c))
                while done < -(-tot * (m + 1) // len(mm)):
                    issue(*nxt.pop(0))
                    done += 1
            if pending and (k0 == 1 or len(mm) > 2):
                ywrite(*pending.pop())
            if k0 == 15 and s + 1 < len(stages):
                pending.append((js, 16 if js[0] == 0 else 17))
        self.stamp(6)
        p("v_mov_b32 v17, 4")
        ywrite(passes[-1], 17)
        p("s_or_b32 s47, s2, s46\ns_cmp_lg_u32 s47, 0\ns_cbranch_scc1 C_end")
        p("ds_read_b32 v4, v18 offset:%d\nv_mov_b32 v5, 0\ns_waitcnt lgkmcnt(0)\nglobal_store_dword v5, v4, %s" % (F_NON, sr(S_WS, 2)))
        p.label("C_end")
        self.stamp(7)
        self.stamp_flush()
        p("s_endpgm")

    def role_A(self):
        self.role = 2
        p = self.p
        ROT, VXD, VCK, VST, VU, VY, VO = 136, 137, 138, 139, 140, 141, 142
        XD, ST, CK, XF, XN, PK = 4, 20, 36, 40, 72, 104
        p.label("A_main")
        pfa = self.opt.get("pfa", 3)
        if pfa:
            self.touch_addr(11)
            p("s_lshr_b32 s47, %d, s46\ns_bitcmp1_b32 s47, 0\ns_cbranch_scc1 A_pf\nv_mov_b32 v11, 0" % pfa)
            p.label("A_pf")
            if self.opt.get("pfw", 2) == 0:
                p("global_load_dword v10, v11, s[60:61]")
        p("v_and_b32 v2, 7, v0\nv_lshlrev_b32 v2, 4, v2\nv_add_u32 v2, %d, v2\nds_write_b128 v2, v[12:15]" % FLG)
        self.hk()
        self.srd(68, S_WS, WS_SPAN)
        p("v_and_b32 v1, 3, v0\nv_lshrrev_b32 v2, 2, v0\ns_lshl_b32 s47, s46, 4\nv_add_u32 v2, s47, v2\nv_mul_u32_u24 %s, 7, v1" % vr(ROT))
        p("s_lshl_b32 s47, s%d, 6\ns_add_u32 s47, s47, %d\nv_lshl_add_u32 %s, v2, 13, s47\nv_lshl_add_u32 %s, v1, 4, %s" % (S_CQ, WS_XD, vr(VXD), vr(VXD), vr(VXD)))
        p("s_lshr_b32 s47, s%d, 4\ns_lshl_b32 s47, s47, 2\ns_add_u32 s47, s47, s46\ns_lshl_b32 s47, s47, 12\ns_and_b32 s48, s%d, 15\ns_lshl_b32 s48, s48, 2\ns_add_u32 s47, s47, s48\ns_add_u32 s47, s47, %d\nv_lshl_add_u32 %s, v0, 6, s47" % (S_CQ, S_CQ, WS_CHK, vr(VCK)))
        p("s_lshl_b32 s47, s46, 10\ns_add_u32 s47, s47, %d\nv_lshl_add_u32 %s, v0, 4, s47" % (WS_ST, vr(VST)))
        p("s_mov_b32 s12, 0x11111111\ns_mov_b32 s13, s12")
        for k in range(1, 4):
            p("s_mov_b32 s%d, %d\ns_mov_b32 s%d, %d\ns_mov_b32 s%d, 0x%08x\ns_mov_b32 s%d, s%d" % (8 + k, k << 19, 4 + k, k << 12, 12 + 2 * k, 0x11111111 << k, 13 + 2 * k, 12 + 2 * k))
        so = lambda b, k: "0" if k == 0 else "s%d" % (b + k)
        p("s_setprio %d" % self.opt.get("akprio", 0))
        self.stamp(1)
        p("s_lshl_b32 s47, s46, 2\ns_add_u32 s47, s47, %d\nv_mov_b32 v146, s47\nv_mov_b32 v147, 1" % FLG)
        if pfa and self.opt.get("pfw", 2) == 1:
            p("global_load_dword v10, v11, s[60:61]")
        if pfa and self.opt.get("pfw", 2) == 2:
            p("s_waitcnt vmcnt(6)\nglobal_load_dword v10, v11, s[60:61]")
        p("s_waitcnt lgkmcnt(0)\ns_barrier")
        if pfa and self.opt.get("pfw", 2) == 3:
            p("global_load_dword v10, v11, s[60:61]")
        p("s_waitcnt vmcnt(%d)" % (1 if pfa else 0))
        p("\n".join(self.kgen_pass(1)))
        self.stamp(12)
        p("v_mov_b32 v104, %d\ns_mov_b32 s57, %d\ns_waitcnt lgkmcnt(0)\ns_barrier\ns_setprio 2" % (FLG, POLL_MAX))
        self.stamp(3)

        def poll_loads(fill=None):
            for k in range(4):
                p("buffer_load_dwordx4 %s, %s, s[68:71], %s offen sc1" % (vr(XD + 4 * k, 4), vr(VXD), so(8, k)))
                p("buffer_load_dwordx4 %s, %s, s[68:71], %s offen sc1" % (vr(ST + 4 * k, 4), vr(VST), so(4, k)))
                if fill:
                    p("\n".join(fill[k]))
            p("buffer_load_dword %s, %s, s[68:71], 0 offen sc1" % (vr(CK), vr(VCK)))
        q0 = Prog()
        q0("ds_read_b32 v3, v104 offset:28")
        q0("s_mov_b64 s[64:65], %s\ns_mov_b32 s66, 2097152\ns_mov_b32 s67, 0x00020000" % sr(S_OUT, 2))
        q0("s_lshl_b32 s47, s%d, 3\ns_lshl_b32 s48, s%d, 10\ns_add_u32 s47, s47, s48\nv_lshl_add_u32 %s, v2, 13, s47\nv_lshl_add_u32 %s, v1, 11, %s" % (S_CQ, S_RHO, vr(VO), vr(VO), vr(VO)))
        q0("s_and_b32 s47, s46, 1\ns_lshl_b32 s47, s47, 5\ns_lshl_b32 s48, s46, 8\ns_add_u32 s48, s48, %d\nv_lshlrev_b32 v2, 2, v0\nv_xor_b32 v2, s47, v2\nv_add_u32 %s, s48, v2" % (U0 + 1024, vr(VU)))
        q0("s_lshl_b32 s47, s46, 6\ns_add_u32 s47, s47, %d\ns_movk_i32 s48, 288\nv_lshl_add_u32 v2, v1, 2, s47\nv_and_b32 v1, 48, v0\nv_add_u32 v2, v1, v2\nv_bfe_u32 v1, v0, 2, 2\nv_mad_u32_u24 %s, v1, s48, v2" % (YOFF, vr(VY)))
        n = len(q0.lines)
        if self.opt.get("ilv", 1):
            poll_loads([q0.lines[n * k // 3:n * (k + 1) // 3] for k in range(3)] + [["s_nop 0"]])
        else:
            poll_loads()
            p("\n".join(q0.lines))
        p("v_mov_b32 v1, %d\ns_waitcnt lgkmcnt(0)\nv_readfirstlane_b32 s%d, v3" % (FLG, S_NONCE))

        def norm_ops(k):
            x, st, xf, xn, NB = XD + 4 * k, ST + 4 * k, XF + 8 * k, XN + 8 * k, 114
            L = ["v_lshlrev_b32 %s, 16, %s" % (vr(NB), vr(st + 2)), "v_and_b32 %s, s%d, %s" % (vr(NB + 1), S_HI, vr(st + 2)),
                 "v_pk_mul_f32 %s, %s, %s neg_lo:[1,0] neg_hi:[1,0]" % (vr(NB, 2), vr(NB, 2), vr(st, 2))]
            for r in range(2):
                for hf in range(2):
                    a = xf + 4 * r + 2 * hf
                    L += ["v_lshlrev_b32 %s, 16, %s" % (vr(a), vr(x + 2 * r + hf)), "v_and_b32 %s, s%d, %s" % (vr(a + 1), S_HI, vr(x + 2 * r + hf)),
                          "v_pk_fma_f32 %s, %s, %s, %s op_sel:[0,%d,%d] op_sel_hi:[1,%d,%d]" % (vr(xn + 4 * r + 2 * hf, 2), vr(a, 2), vr(st, 2), vr(NB, 2), r, r, r, r)]
            for c in range(4):
                L.append("v_cvt_pk_bf16_f32 %s, %s, %s" % (vr(PK + c), vr(xn + c), vr(xn + 4 + c)))
            for c in (0, 2):
                L.append("ds_write2st64_b32 %s, %s, %s offset0:%d offset1:%d" % (vr(VU), vr(PK + c), vr(PK + c + 1), 4 * k + 20 * c, 4 * k + 20 * (c + 1)))
            return L

        def chk_ops(k, H):
            return ["v_add_u32 v113, s%d, %s" % (S_NONCE, vr(ST + 4 * k + 3))] + self.hash_ops(XD + 4 * k, H, 113, ROT)
        for k in range(4):
            p("s_waitcnt vmcnt(%d)" % (7 - 2 * k))
            if k in (0, 3):
                self.stamp(10 if k == 0 else 11)
            L = norm_ops(k) + chk_ops(k, 112 if k else 37)
            if k:
                L += ["v_cndmask_b32 v37, v37, v112, %s" % sr(12 + 2 * k, 2)]
            p("\n".join(schedule(L)))
        p("s_waitcnt vmcnt(0)\nv_cmp_ne_u32 s[58:59], v37, %s" % vr(CK))
        p("s_cmp_eq_u64 s[58:59], 0\ns_cbranch_scc1 A_ready")
        for k in range(4):
            p("s_and_b64 s[48:49], s[58:59], %s\ns_cbranch_scc0 A_r%d_ok" % (sr(12 + 2 * k, 2), k))
            p.label("A_r%d" % k)
            p("buffer_load_dwordx4 %s, %s, s[68:71], %s offen sc1" % (vr(XD + 4 * k, 4), vr(VXD), so(8, k)))
            p("buffer_load_dwordx4 %s, %s, s[68:71], %s offen sc1" % (vr(ST + 4 * k, 4), vr(VST), so(4, k)))
            p("buffer_load_dword %s, %s, s[68:71], 0 offen sc1" % (vr(CK), vr(VCK)))
            p("s_sub_u32 s57, s57, 1\ns_cmp_eq_u32 s57, 0\ns_cbranch_scc1 A_ready\ns_waitcnt vmcnt(0)")
            p("\n".join(chk_ops(k, 112)))
            p("v_cmp_ne_u32 vcc, v112, %s\ns_and_b64 s[48:49], vcc, %s\ns_cbranch_scc1 A_r%d" % (vr(CK), sr(12 + 2 * k, 2), k))
            p("\n".join(schedule(norm_ops(k))))
            p.label("A_r%d_ok" % k)
        p.label("A_ready")
        if self.stamps:
            p("s_sub_u32 s%d, %d, s57" % (S_STAMP + 18, POLL_MAX + 1))
        p("ds_write_b32 v146, v147 offset:%d\ns_setprio 0" % F_U)
        self.stamp(4)
        if "U" in self.dump:
            p("s_mul_i32 s48, s46, %d\ns_add_u32 s48, s48, %d\ns_add_u32 s47, s46, 4" % (USTR, U0))
            self.dump_lds("U", "s48", 5120, "s47")
        npass = self.opt.get("npass", 2)
        if self.opt.get("deleg", 0) and npass > 1:
            p("s_lshl_b32 s45, s46, 14\ns_mov_b32 m0, s45\ns_add_u32 s48, s45, %d\ns_add_u32 s47, s%d, %d" % (FOFF - 4 * 0x4280 - 4, S_RHO, 2048 - 896))
            p("v_lshlrev_b32 v2, 1, v0\nv_sub_u32 v2, s47, v2\nv_cvt_f32_u32 v2, v2\nv_add_f32 v3, -1.0, v2\nv_cvt_pk_bf16_f32 v2, v2, v3")
            p("v_mad_u32_u16 v3, v2, 4, s48\nv_cmp_eq_u32_sdwa s[58:59], v2, v2 src0_sel:WORD_0 src1_sel:WORD_1")
            self.spin("A_c", "ds_read_b32 v2, v146 offset:%d\ns_waitcnt lgkmcnt(0)\nv_readfirstlane_b32 s47, v2" % F_C, "s47")
            for k in range(8):
                p("ds_read2_b32 %s, v3 offset0:%d offset1:%d" % (vr(116 + 2 * k, 2), 16 * (7 - k), 16 * (7 - k) + 1))
            for k in range(8):
                a = 116 + 2 * k
                if k % 2 == 0:
                    p("s_waitcnt lgkmcnt(%d)" % (6 + k))
                p("v_cndmask_b32 %s, %s, %s, s[58:59]\nv_cvt_pk_bf16_f32 %s, %s, %s" % (vr(a), vr(a), vr(a + 1), vr(a), vr(a + 1), vr(a)))
                p("ds_write_addtid_b32 %s offset:%d\nds_write_addtid_b32 %s offset:%d" % (vr(a), 256 * k, vr(a), KC1 + 4 + 256 * k))
            p("ds_write_b32 v146, v147 offset:%d" % F_K)
        GG, YY = 4, 116
        p("s_cmp_eq_u32 s%d, 1\ns_cbranch_scc1 A_pre1" % S_RHO)
        for rho in range(2):
            if rho:
                p.label("A_pre1")
            L = []
            for i in range(16):
                k, c = i >> 2, i & 3
                x, xn, g, t = XF + 8 * k + 4 * rho + c, XN + 8 * k + 4 * rho + c, GG + i, 104 + (i % 8)
                L += ["v_mul_f32 %s, %s, %s" % (vr(t), hx(f2u(-LOG2E)), vr(xn)), "v_exp_f32 %s, %s" % (vr(t), vr(t)),
                      "v_add_f32 %s, 1.0, %s" % (vr(t), vr(t)), "v_rcp_f32 %s, %s" % (vr(t), vr(t)),
                      "v_mul_f32 %s, %s, %s" % (vr(g), vr(xn), vr(t))]
                if rho:
                    L.append("v_mov_b32 %s, %s" % (vr(x - 4), vr(x)))
            p("\n".join(schedule(L)))
            if rho == 0:
                p("s_branch A_pre2")
        p.label("A_pre2")
        self.stamp(5)
        p("s_setprio 3")
        self.spin("A_sel", "ds_read_b32 v2, v1 offset:16\ns_waitcnt lgkmcnt(0)\nv_readfirstlane_b32 s47, v2", "s47")
        p("s_sub_u32 s47, s47, 1\ns_lshl_b32 s47, s47, 10\ns_lshl_b32 s48, s%d, 3\ns_add_u32 s47, s47, s48\nv_mov_b32 v3, 0x7ffffff0" % S_CQ)
        for k in (3, 2, 1, 0):
            p("s_sub_u32 s48, s47, %d\nv_cmp_ne_u32 vcc, s48, %s\nv_cndmask_b32 %s, v3, %s, vcc" % (k << 19, vr(VO), vr(VO + k), vr(VO)))
        halves = {1: [(2, (0, 1, 2, 3))], 2: [(0, (0, 1)), (2, (2, 3))], 3: [(0, (0, 1)), (1, (2,)), (2, (3,))]}[npass]
        for half, ks in halves:
            self.spin4("A_y%d" % half, "v1", F_Y, 104, shift=half, sleep=(0 if half == 2 and npass > 1 else 1))
            if half != 1:
                self.stamp(6 if half else 2)
            for k in ks:
                for c in (0, 2):
                    p("ds_read2st64_b32 %s, %s offset0:%d offset1:%d" % (vr(YY + 4 * k + c, 2), vr(VY), 5 * k + 64 * c, 5 * k + 64 * (c + 1)))
            for n, k in enumerate(ks):
                p("s_waitcnt lgkmcnt(%d)" % (2 * (len(ks) - 1 - n)))
                y = YY + 4 * k
                for c in range(4):
                    p("v_fma_f32 %s, %s, %s, %s" % (vr(y + c), vr(y + c), vr(GG + 4 * k + c), vr(XF + 8 * k + c)))
                p("v_cvt_pk_bf16_f32 %s, %s, %s\nv_cvt_pk_bf16_f32 %s, %s, %s" % (vr(y), vr(y), vr(y + 1), vr(y + 1), vr(y + 2), vr(y + 3)))
                p("buffer_store_dwordx2 %s, %s, s[64:67], %s offen" % (vr(y, 2), vr(VO + k), so(8, k)))
        self.stamp(7)
        if self.stamps or self.opt.get("ev"):
            p("s_waitcnt vmcnt(0)")
        self.stamp(8)
        self.stamp_flush()
        p("s_endpgm")

    def role_F(self):
        self.role = 3
        p = self.p
        D, IDX, VSTA, VKEY, VSX, NON, FL = 72, 70, 71, 76, 68, 83, 77
        p.label("F_main")
        VW, VWD, VTR, VTD, VXB, VQ, SG, XQ, BV = 85, 86, 87, 88, 89, 90, 92, 91, 96
        p("s_mul_i32 s16, s%d, 43\ns_add_u32 s17, s16, 43\ns_lshr_b32 s16, s16, 1\ns_lshr_b32 s17, s17, 1\ns_add_u32 s18, s16, s%d\ns_min_u32 s19, s18, 171" % (S_XCD, S_J))
        p("v_and_b32 v1, 35, v0\nv_bfe_u32 v2, v0, 2, 2\nv_lshl_add_u32 v1, v2, 3, v1\nv_bfe_u32 v14, v0, 4, 1\nv_lshl_add_u32 v1, v14, 2, v1\nv_mul_u32_u24 v1, 2752, v1\ns_lshl_b32 s47, s19, 4\nv_add_u32 %s, s47, v1" % vr(VW))
        p("s_lshl_b32 s47, s19, 13\nv_lshl_add_u32 %s, v0, 4, s47" % vr(VWD))
        p("v_mul_u32_u24 v2, %d, v2\nv_and_b32 v1, 48, v0\nv_lshl_add_u32 v2, v1, 1, v2\nv_and_b32 v14, 3, v0\nv_lshl_add_u32 v2, v14, 3, v2\nv_add_u32 %s, %d, v2" % (WDR, vr(VTD), WDL))
        p("v_and_b32 v14, 15, v0\nv_cmp_eq_u32 vcc, 1, v14\nv_mov_b32 v14, %d\nv_mov_b32 v2, %d\nv_cndmask_b32 v14, v14, v2, vcc\nv_add_u32 %s, v14, v1" % (XR, ON, vr(VXB)))
        p("v_and_b32 v1, 60, v0\nv_lshlrev_b32 v1, 2, v1\nv_and_b32 v2, 1, v0\nv_lshl_add_u32 v1, v2, 3, v1\nv_bfe_u32 v2, v0, 1, 1\ns_movk_i32 s47, %d\nv_mad_u32_u24 v1, v2, s47, v1\nv_add_u32 %s, %d, v1" % (WUL - WGL, vr(VTR), WGL))
        p("v_lshrrev_b32 v1, 4, v0\ns_lshl_b32 s47, s%d, 3\nv_lshl_add_u32 %s, v1, 1, s47" % (S_CQ, vr(VQ)))
        for i in range(8):
            p("v_mov_b64 %s, 0" % vr(BV + 2 * i, 2))
        self.srd(60, S_WG, 512 * 2752)
        self.srd(64, S_WU, 512 * 2752)
        for v in range(4):
            p(setmask(8 + 2 * v, lanemask(lambda l: (l & 15) == 4 * v + (l >> 4))))
        self.srd(68, S_WS, WS_SPAN)
        p("s_mov_b32 s52, 0xaaaaaaaa\ns_mov_b32 s53, s52\ns_mov_b32 s48, 0x07060302")
        p(setmask(54, lanemask(lambda l: l in (0, 20, 40, 60))))
        p("v_mov_b32 %s, %d\nv_mov_b32 v3, s45\ns_mov_b32 s47, 0x9E3779B1\ns_setprio 3" % (vr(FL), FLG))
        p("s_barrier\ns_waitcnt vmcnt(1)")
        self.stamp(1)
        for ks in range(4):
            p("ds_read_b128 %s, %s offset:%d" % (vr(4 + 4 * ks, 4), vr(VSX), 64 * ks))
        for ks in range(16):
            if ks + 4 < 16:
                p("ds_read_b128 %s, %s offset:%d" % (vr(4 + 4 * (ks + 4), 4), vr(VSX), 64 * (ks + 4)))
            p("s_waitcnt lgkmcnt(%d)" % min(4, 15 - ks))
            p("v_mfma_f32_16x16x32_bf16 %s, %s, %s, %s" % (vr(D, 4), vr(4 + 4 * ks, 4), vr(4 + 4 * ks, 4), "0" if ks == 0 else vr(D, 4)))
        self.stamp(9)
        p("s_waitcnt vmcnt(0)\nv_mul_lo_u32 %s, %s, s47\nv_add_u32 %s, 1, %s" % (vr(NON), vr(NON), vr(NON), vr(NON)))
        MEAN, VAR, TW, t, u, NB, GR = 4, 5, 6, 7, 8, 10, 80
        RS = GR
        rb = lambda r: ["v_cvt_pk_bf16_f32 %s, %s, %s" % (vr(r), vr(r), vr(r)), "v_and_b32 %s, s%d, %s" % (vr(r), S_HI, vr(r))]
        L = ["v_cndmask_b32 %s, %s, %s, s[52:53]" % (vr(VAR), vr(D), vr(D + 1)),
             "v_mul_f32 %s, %s, %s" % (vr(MEAN), hx(f2u(1 / 512)), vr(D + 2)),
             "v_mul_f32 %s, %s, %s" % (vr(VAR), hx(f2u(1 / 512)), vr(VAR)),
             "v_fma_f32 %s, -%s, %s, %s" % (vr(VAR), vr(MEAN), vr(MEAN), vr(VAR)),
             "v_max_f32 %s, 0, %s" % (vr(VAR), vr(VAR))]
        L += rb(VAR) + ["v_add_f32 %s, %s, %s" % (vr(VAR), hx(f2u(1e-5)), vr(VAR))] + rb(VAR) + rb(MEAN)
        L += ["v_sqrt_f32 %s, %s" % (vr(VAR), vr(VAR))] + rb(VAR)
        L += ["v_rcp_f32 %s, %s" % (vr(RS), vr(VAR)),
              "v_mov_b32_dpp %s, %s quad_perm:[1,1,1,1] %s" % (vr(GR + 1), vr(RS), DPPF),
              "v_mov_b32_dpp %s, %s quad_perm:[1,1,1,1] %s" % (vr(t), vr(MEAN), DPPF),
              "v_perm_b32 %s, %s, %s, s48" % (vr(GR + 2), vr(t), vr(MEAN)),
              "v_mov_b32_dpp %s, %s quad_perm:[3,3,3,3] %s" % (vr(TW), vr(D + 2), DPPF)]
        p("\n".join(schedule(L)))
        p("s_mov_b64 exec, s[54:55]\nbuffer_store_dwordx4 %s, %s, s[68:71], 0 offen sc1\ns_mov_b64 exec, -1" % (vr(GR, 4), vr(VSTA)))
        self.stamp(2)
        L = ["v_fma_f32 %s, -%s, %s, %s" % (vr(t), vr(MEAN), vr(TW), vr(D + 3)),
             "v_mul_f32 %s, %s, %s" % (vr(t), vr(t), vr(RS)),
             "v_cvt_pk_bf16_f32 %s, %s, %s" % (vr(t), vr(t), vr(t)),
             "v_ashrrev_i32 %s, 31, %s" % (vr(u), vr(t)),
             "v_or_b32 %s, 0x80000000, %s" % (vr(u), vr(u)),
             "v_xor_b32 %s, %s, %s" % (vr(t), vr(t), vr(u)),
             "v_and_or_b32 %s, %s, s%d, %s" % (vr(t), vr(t), S_HI, vr(IDX)),
             "v_max_u32_dpp %s, %s, %s quad_perm:[1,0,3,2] %s" % (vr(t), vr(t), vr(t), DPPF)]
        L += ["v_readlane_b32 s%d, %s, %d" % (47 + G, vr(t), 20 * G) for G in range(4)]
        L += ["s_max_u32 s47, s47, s48", "s_max_u32 s49, s49, s50", "s_max_u32 s47, s47, s49", "v_mov_b32 v12, s47", "v_mov_b32 v13, %s" % vr(NON),
              "v_readfirstlane_b32 s%d, %s" % (S_NONCE, vr(NON)), "ds_write_b32 %s, %s offset:28" % (vr(FL), vr(NON))]
        p("\n".join(schedule(L)))
        p("s_mov_b64 exec, 1\nbuffer_store_dwordx2 v[12:13], v3, s[68:71], 0 offen sc1\ns_mov_b64 exec, -1")
        p("v_lshlrev_b32 %s, %d, v0\nv_add_u32 %s, %d, %s" % (vr(VKEY), KSH, vr(VKEY), WS_KEY, vr(VKEY)))
        p("s_movk_i32 s58, %d\ns_movk_i32 s59, %d\ns_movk_i32 s46, %d\ns_mov_b32 s57, %d" % (64 << KSH, 128 << KSH, 192 << KSH, POLL_MAX))
        ne = self.opt.get("ne", 7)

        def key_loads():
            for i, so in enumerate(("0", "s58", "s59", "s46")):
                p("buffer_load_dwordx2 %s, %s, s[68:71], %s offen sc1" % (vr(4 + 2 * i, 2), vr(VKEY), so))

        VW, VWD, VTR, VTD, VXB, VQ, SG, XQ, BV = 85, 86, 87, 88, 89, 90, 92, 91, 96

        def dma(i):
            for srd, base in ((60, WGL), (64, WUL)):
                p("s_mov_b32 m0, %d\ns_mov_b32 s47, %d\nbuffer_load_dwordx4 %s, %s, s47 offen lds" % (base + 1024 * i, 64 * 2752 * i, vr(VW), sr(srd, 4)))
        if ne:
            p("s_setprio 0")
            p("s_cmp_ge_u32 s18, s17\ns_cbranch_scc1 F_b0")
            for i in range(ne):
                dma(i)
            p.label("F_b0")
        p("s_waitcnt lgkmcnt(0)")
        self.stamp(11)
        p("s_barrier")
        self.stamp(3)
        key_loads()
        n0 = max(ne, self.opt.get("n0", 0))
        p("s_setprio %d\ns_cmp_ge_u32 s18, s17\ns_cbranch_scc1 F_kwait" % self.opt.get("dprio", 0))
        for i in range(ne, n0):
            dma(i)
        p("s_setprio 3\ns_waitcnt vmcnt(%d)\ns_branch F_kchk" % (2 * (n0 - ne)))
        p.label("F_kpoll")
        key_loads()
        p.label("F_kwait")
        p("s_setprio 3\ns_waitcnt vmcnt(0)")
        p.label("F_kchk")
        p("v_xor_b32 v5, %s, v5\nv_xor_b32 v7, %s, v7\nv_xor_b32 v9, %s, v9\nv_xor_b32 v11, %s, v11\nv_or3_b32 v5, v5, v7, v9\nv_or_b32 v5, v5, v11\nv_cmp_ne_u32 vcc, 0, v5" % ((vr(NON),) * 4))
        p("v_max3_u32 v4, v4, v6, v8\nv_max_u32 v4, v4, v10")
        p("s_cmp_eq_u64 vcc, 0\ns_cbranch_scc1 F_kgot\ns_sub_u32 s57, s57, 1\ns_cmp_lg_u32 s57, 0\ns_cbranch_scc1 F_kpoll")
        p.label("F_kgot")
        for n in (8, 4, 2, 1):
            p("v_max_u32_dpp v4, v4, v4 row_ror:%d %s" % (n, DPPF))
        p("v_readlane_b32 s47, v4, 0\nv_readlane_b32 s48, v4, 16\nv_readlane_b32 s49, v4, 32\nv_readlane_b32 s54, v4, 48")
        p("s_max_u32 s47, s47, s48\ns_max_u32 s49, s49, s54\ns_max_u32 s55, s47, s49")
        p("s_and_b32 s47, s55, 0xffff\ns_sub_u32 s54, 0xffff, s47\ns_and_b32 s54, s54, 2047")
        p("s_lshl_b32 s47, s54, 10\nv_lshl_add_u32 v1, v0, 4, s47\ns_mov_b32 m0, %d\nv_add_u32 %s, s47, %s\nglobal_load_lds_dwordx4 v1, %s" % (XR, vr(VQ), vr(VQ), sr(S_X, 2)))
        p("s_lshr_b32 s48, s54, 1\ns_lshl_b32 s48, s48, 4\ns_add_u32 s48, s48, %d\nv_mov_b32 v2, s48\nbuffer_load_dwordx4 %s, v2, s[68:71], 0 offen sc1" % (WS_ST, vr(SG, 4)))
        p("global_load_ushort %s, %s, %s" % (vr(XQ), vr(VQ), sr(S_X, 2)))
        p("s_add_u32 s47, s54, 1\nv_mov_b32 v2, s47\nds_write_b32 %s, v2 offset:16" % vr(FL))
        self.stamp(4)
        p("s_cmp_ge_u32 s18, s17\ns_cbranch_scc1 F_nounit")
        if n0 < 8:
            p("s_setprio %d" % self.opt.get("dprio", 0))
            for i in range(n0, 8):
                dma(i)
        self.spin4("F_c", vr(FL), F_C, 16)
        p("s_setprio %d" % self.opt.get("fprio", 3))
        p("v_add_u32 v1, 4096, %s" % vr(VWD))
        for m in range(8):
            p("s_mov_b32 m0, %d\ns_nop 0\nglobal_load_lds_dwordx4 %s, %s offset:%d" % (WDL + WDR * m - 1024 * (m & 3), vr(VWD) if m < 4 else "v1", sr(S_WD, 2), 1024 * (m & 3)))
        self.stamp(10)
        TA, AD = 40, 112
        TBs = [4 + 4 * s if s < 4 else 20 + 4 * (s - 4) if s < 9 else 56 + 4 * (s - 9) if s < 12 else 144 + 4 * (s - 12) for s in range(16)]

        def sel_stats():
            p("s_and_b32 s47, s54, 1\ns_cmp_eq_u32 s47, 1\ns_cselect_b64 vcc, -1, 0\ns_cselect_b32 s47, 0, 16")
            p("v_cndmask_b32 %s, %s, %s, vcc\nv_lshlrev_b32 %s, s47, %s\nv_and_b32 %s, s%d, %s\nv_mul_f32 %s, -%s, %s"
              % (vr(SG), vr(SG), vr(SG + 1), vr(SG + 1), vr(SG + 2), vr(SG + 1), S_HI, vr(SG + 1), vr(SG + 1), vr(SG + 1), vr(SG)))
        p("s_waitcnt vmcnt(8)")
        self.stamp(12)
        WF = [112 + 4 * (s % 8) for s in range(16)]

        def rdW(s):
            o = 1024 * (s >> 1) + 512 * (s & 1)
            p("ds_read_b64_tr_b16 %s, %s offset:%d\nds_read_b64_tr_b16 %s, %s offset:%d\nds_read_b128 %s, %s offset:%d"
              % (vr(WF[s], 2), vr(VTR), o, vr(WF[s] + 2, 2), vr(VTR), o + 256, vr(TBs[s], 4), vr(VXB), 64 * s))
        for s in range(4):
            rdW(s)
        sel_stats()
        for s in range(16):
            if s + 4 < 16:
                rdW(s + 4)
            p("s_waitcnt lgkmcnt(%d)" % (3 * min(4, 15 - s)))
            p("v_mfma_f32_16x16x32_bf16 %s, %s, %s, %s" % (vr(D, 4), vr(WF[s], 4), vr(TBs[s], 4), "0" if s == 0 else vr(D, 4)))
        p("s_setprio %d\ns_waitcnt vmcnt(0)" % self.opt.get("fp2", 3))
        self.stamp(5)
        rdD = []
        for s in range(8):
            for hf in range(2):
                rdD.append("ds_read_b64_tr_b16 %s, %s offset:%d" % (vr(AD + 4 * s + 2 * hf, 2), vr(VTD), 128 * s + 4 * WDR * hf))
        g, u, t = 44, 48, 52
        L = []
        for r in range(4):
            L += ["v_mul_f32 %s, %s, %s" % (vr(g + r), vr(D + r), vr(SG)), "v_fmac_f32_dpp %s, %s, %s row_shl:1 %s" % (vr(g + r), vr(D + r), vr(SG + 1), DPPF)]
        L += ["v_cvt_pk_bf16_f32 v40, %s, %s" % (vr(g), vr(g + 1)), "v_cvt_pk_bf16_f32 v41, %s, %s" % (vr(g + 2), vr(g + 3)),
              "v_permlane32_swap_b32 v40, v42", "v_permlane32_swap_b32 v41, v43"]
        for q2 in range(2):
            L += ["v_lshlrev_b32 %s, 16, %s" % (vr(g + 2 * q2), vr(40 + q2)), "v_and_b32 %s, s%d, %s" % (vr(g + 2 * q2 + 1), S_HI, vr(40 + q2)),
                  "v_lshlrev_b32 %s, 16, %s" % (vr(u + 2 * q2), vr(42 + q2)), "v_and_b32 %s, s%d, %s" % (vr(u + 2 * q2 + 1), S_HI, vr(42 + q2))]
        for r in range(4):
            L += ["v_mul_f32 %s, %s, %s" % (vr(t + r), hx(f2u(-LOG2E)), vr(g + r)), "v_exp_f32 %s, %s" % (vr(t + r), vr(t + r)), "v_add_f32 %s, 1.0, %s" % (vr(t + r), vr(t + r)),
                  "v_rcp_f32 %s, %s" % (vr(t + r), vr(t + r)), "v_mul_f32 %s, %s, %s" % (vr(g + r), vr(g + r), vr(t + r))]
        for q2 in range(2):
            L += ["v_cvt_pk_bf16_f32 %s, %s, %s" % (vr(40 + q2), vr(g + 2 * q2), vr(g + 2 * q2 + 1)),
                  "v_lshlrev_b32 %s, 16, %s" % (vr(g + 2 * q2), vr(40 + q2)), "v_and_b32 %s, s%d, %s" % (vr(g + 2 * q2 + 1), S_HI, vr(40 + q2)),
                  "v_mul_f32 %s, %s, %s" % (vr(g + 2 * q2), vr(g + 2 * q2), vr(u + 2 * q2)),
                  "v_mul_f32 %s, %s, %s" % (vr(g + 2 * q2 + 1), vr(g + 2 * q2 + 1), vr(u + 2 * q2 + 1)),
                  "v_cvt_pk_bf16_f32 %s, %s, %s" % (vr(40 + q2), vr(g + 2 * q2), vr(g + 2 * q2 + 1))]
        L += ["v_readlane_b32 s%d, %s, %d" % (60 + pr, vr(40 + (pr & 1)), 16 * (pr >> 1)) for pr in range(4)]
        for i in range(4):
            L.append("s_mov_b32 s%d, 0x%08x" % (64 + i, 0x07060500 + i))
        L += ["s_lshl_b32 s47, s18, 11", "s_add_u32 s47, s47, %d" % WS_FP, "v_lshl_add_u32 v1, v0, 4, s47"]
        p("\n".join(rdD[:4] + merge_prop(schedule(L), rdD[4:])))
        for v in range(4):
            p("s_mov_b64 exec, %s\nv_mov_b64 %s, s[60:61]\nv_mov_b64 %s, s[62:63]" % (sr(8 + 2 * v, 2), vr(BV + 4 * v, 2), vr(BV + 4 * v + 2, 2)))
        p("s_mov_b64 exec, -1\ns_setprio %d\ns_waitcnt lgkmcnt(0)" % self.opt.get("fp3", 3))
        AC = 4
        for s in (0, 4, 1, 5, 2, 6, 3, 7):
            d = AC + 4 * (s >> 2)
            p("v_mfma_f32_16x16x32_bf16 %s, %s, %s, %s" % (vr(d, 4), vr(AD + 4 * s, 4), vr(BV + 4 * (s & 3), 4), "0" if (s & 3) == 0 else vr(d, 4)))
        for hh in range(2):
            for e in range(4):
                p("v_perm_b32 %s, %s, %s, s%d" % (vr(AC + 4 * hh + e), vr(AC + 4 * hh + e), vr(NON), 64 + e))
            p("buffer_store_dwordx4 %s, v1, s[68:71], 0 offen offset:%d sc1" % (vr(AC + 4 * hh, 4), 1024 * hh))
        p("s_branch F_row")
        p.label("F_nounit")
        p("s_waitcnt vmcnt(0)")
        sel_stats()
        p.label("F_row")
        p("s_setprio %d" % self.opt.get("fp4", 1))
        self.stamp(6)
        p("s_and_b32 s47, s54, 1\ns_cmp_lg_u32 s47, s%d\ns_cbranch_scc1 F_done" % S_RHO)
        rbs = lambda r: "v_cvt_pk_bf16_f32 %s, %s, %s\nv_and_b32 %s, s%d, %s" % (r, r, r, r, S_HI, r)
        p("s_ashr_i32 s47, s55, 31\ns_not_b32 s47, s47\ns_or_b32 s47, s47, 0x80000000\ns_xor_b32 s47, s47, s55\ns_and_b32 s47, s47, 0xffff0000")
        p("v_mov_b32 v25, s47\nv_mul_f32 v25, %s, v25\nv_exp_f32 v25, v25\nv_add_f32 v25, 1.0, v25\nv_rcp_f32 v25, v25\n%s" % (hx(f2u(-LOG2E)), rbs("v25")))
        p("s_lshr_b32 s47, s54, 9\ns_mul_i32 s47, s47, %d\ns_bfe_u32 s48, s54, 0x20003\ns_mul_i32 s48, s48, 288\ns_add_u32 s47, s47, s48" % YT)
        p("s_bfe_u32 s48, s54, 0x40005\ns_lshl_b32 s48, s48, 4\ns_add_u32 s47, s47, s48\ns_bfe_u32 s48, s54, 0x20001\ns_lshl_b32 s48, s48, 2\ns_add_u32 s47, s47, s48\ns_add_u32 s47, s47, %d" % YOFF)
        p("v_lshrrev_b32 v26, 4, v0\nv_lshl_add_u32 v26, v26, 14, s47")
        p("s_lshr_b32 s47, s%d, 6\ns_lshl_b32 s47, s47, 10\ns_bfe_u32 s48, s%d, 0x40002\ns_lshl_b32 s48, s48, 4\ns_add_u32 s47, s47, s48\ns_and_b32 s48, s%d, 3\ns_lshl_b32 s48, s48, 8\ns_add_u32 s47, s47, s48\ns_add_u32 s47, s47, %d" % (S_CQ, S_CQ, S_CQ, WS_FP))
        p("v_lshl_add_u32 v27, v0, 11, s47\nv_add_u32 v28, 0x20000, v27\nv_min_u32 v29, 43, v0\nv_lshl_add_u32 v29, v29, 11, s47\nv_add_u32 v29, 0x40000, v29")
        p("s_mov_b32 s58, 0x0c0c0400\ns_mov_b32 s59, 0x04000c0c")
        if self.opt.get("pace", 1):
            self.spin("F_p", "ds_read_b32 v16, %s\ns_waitcnt lgkmcnt(0)\nv_readfirstlane_b32 s47, v16" % vr(FL), "s47")
        p("s_mov_b32 s57, %d\ns_waitcnt vmcnt(0)" % POLL_MAX)
        p("v_lshlrev_b32 %s, 16, %s\nv_fma_f32 v24, %s, %s, %s\n%s" % (vr(XQ), vr(XQ), vr(XQ), vr(SG), vr(SG + 1), rbs("v24")))
        p("s_setprio 3")
        p.label("F_poll")
        for i in range(3):
            p("buffer_load_dwordx4 %s, %s, s[68:71], 0 offen sc1" % (vr(12 + 4 * i, 4), vr(27 + i)))
        p("s_mov_b64 s[60:61], 0\ns_waitcnt vmcnt(0)")
        for i in range(3):
            b = 12 + 4 * i
            p("v_perm_b32 v30, %s, %s, s58\nv_perm_b32 v31, %s, %s, s59\nv_or_b32 v30, v30, v31\nv_cmp_ne_u32 vcc, s%d, v30\ns_or_b64 s[60:61], s[60:61], vcc"
              % (vr(b + 1), vr(b), vr(b + 3), vr(b + 2), S_NONCE))
        p("s_cmp_eq_u64 s[60:61], 0\ns_cbranch_scc1 F_got\ns_sub_u32 s57, s57, 1\ns_cmp_lg_u32 s57, 0\ns_cbranch_scc1 F_poll")
        p.label("F_got")
        self.stamp(7)
        for c in range(12):
            p("v_and_b32 %s, 0xffffff00, %s" % (vr(12 + c), vr(12 + c)))
        for c in range(4):
            p("v_add_f32 %s, %s, %s" % (vr(12 + c), vr(12 + c), vr(16 + c)))
        p("s_mov_b32 exec_hi, 0xfff")
        for c in range(4):
            p("v_add_f32 %s, %s, %s" % (vr(12 + c), vr(12 + c), vr(20 + c)))
        p("s_mov_b64 exec, -1")
        p("v_permlane32_swap_b32 v12, v14\nv_permlane32_swap_b32 v13, v15\nv_add_f32 v12, v12, v14\nv_add_f32 v13, v13, v15\nv_permlane16_swap_b32 v12, v13\nv_add_f32 v12, v12, v13")
        for n in (8, 4, 2, 1):
            p("v_add_f32_dpp v12, v12, v12 row_ror:%d %s" % (n, DPPF))
        p(rbs("v12") + "\nv_mul_f32 v12, v12, v25\n" + rbs("v12") + "\nv_add_f32 v12, v12, v24\n" + rbs("v12"))
        p("v_mul_f32 v13, %s, v12\nv_exp_f32 v13, v13\nv_add_f32 v13, 1.0, v13\nv_rcp_f32 v13, v13\nv_mul_f32 v12, v12, v13\n%s" % (hx(f2u(-LOG2E)), rbs("v12")))
        self.spin("F_y", "ds_read_b128 v[16:19], %s\ns_waitcnt lgkmcnt(0)\nv_min3_u32 v16, v16, v17, v18\nv_min_u32 v16, v16, v19\nv_readfirstlane_b32 s47, v16\ns_lshr_b32 s47, s47, 2" % vr(FL), "s47")
        p("ds_read_b32 v13, v26\ns_waitcnt lgkmcnt(0)")
        p(rbs("v13") + "\nv_mul_f32 v13, v13, v12\n" + rbs("v13") + "\nv_add_f32 v13, v13, %s\nv_cvt_pk_bf16_f32 v13, v13, v13" % vr(XQ))
        p("s_mov_b32 exec_lo, 0x00010001\ns_mov_b32 exec_hi, 0x00010001")
        p("global_store_short %s, v13, %s" % (vr(VQ), sr(S_OUT, 2)))
        p.label("F_done")
        self.stamp(8)
        self.stamp_flush()
        p.label("L_end")
        p("s_endpgm")

    def build(self, header):
        self.entry()
        self.role_F()
        self.role_C()
        self.role_A()
        body = self.p.emit()
        s = header
        s += "; @launch grid=(256,1,1) block=(576,1,1) lds=%d\n" % LDS_BYTES
        s += '.amdgcn_target "amdgcn-amd-amdhsa--gfx950"\n.text\n.globl %s\n.p2align 8\n.type %s,@function\n%s:\n' % (NAME, NAME, NAME)
        s += body
        s += "L_code_end:\n"
        s += """.section .rodata,"a"
.p2align 6
.amdhsa_kernel %s
  .amdhsa_next_free_vgpr 168
  .amdhsa_next_free_sgpr 102
  .amdhsa_accum_offset 168
  .amdhsa_group_segment_fixed_size 0
  .amdhsa_kernarg_size 136
  .amdhsa_user_sgpr_count 2
  .amdhsa_user_sgpr_kernarg_segment_ptr 1
  .amdhsa_system_sgpr_workgroup_id_x 1
.end_amdhsa_kernel
""" % NAME
        return s


if __name__ == "__main__":
    ap = argparse.ArgumentParser()
    ap.add_argument("out")
    ap.add_argument("--stamps", action="store_true")
    ap.add_argument("--dump", default="")
    ap.add_argument("--opt", default="")
    a = ap.parse_args()
    ref = open("recurrent_scan__ssm_conv_s4__moe_arch_mod__prompt.s.ref").read().split("\n")
    header = "\n".join(l for l in ref if l.startswith(";") and "@launch" not in l and not l.startswith("; Override") and not l.startswith("; grid=")) + "\n"
    opt = dict((kv.split("=")[0], int(kv.split("=")[1])) for kv in a.opt.split(",") if kv)
    g = Gen(stamps=a.stamps, dump=set(a.dump.split(",")) if a.dump else None, opt=opt)
    open(a.out, "w").write(g.build(header))
    print("wrote", a.out, "pads", g.p.npad)
```
